```python
import torch

def _softmax(x, axis=-1):
    return torch.softmax(x, dim=axis)
def _gelu(x):
    return torch.nn.functional.gelu(x, approximate="tanh")
def _silu(x):
    return torch.nn.functional.silu(x)
def _sigmoid(x):
    return torch.sigmoid(x)
def _layernorm(x, axis=-1, eps=1e-5):
    m = x.mean(dim=axis, keepdim=True)
    v = x.var(dim=axis, keepdim=True, unbiased=False)
    return (x - m) / torch.sqrt(v + eps)
def _scatter_add(tgt, idx, src, axis=0):
    return tgt.clone().index_add_(axis, idx, src)
def _segment_sum(src, seg, n):
    out = torch.zeros((n,) + src.shape[1:], dtype=src.dtype)
    return out.index_add_(0, seg, src)
def _pad(x, pw):
    flat = tuple(v for pair in reversed(pw) for v in pair)
    return torch.nn.functional.pad(x, flat)

kernel_name = 'concat_heads__gqa_block_cached__mha_block_cached__near_ridge'

def setup_inputs():

    _w = (lambda a: (lambda t: t.to(torch.bfloat16) if t.is_floating_point() else t)(torch.as_tensor(a)))
    def _A_setup():
        B, Sq, D = 8, 144, 512
        Hq, Hkv, Sk, Dh = 32, 32, 512, 128
        assert Hq % Hkv == 0, (Hq, Hkv)
        return {
            "x": _w((lambda *s: torch.randn(*s, dtype=torch.bfloat16) * 0.8)(B, Sq, D)),
            "k_cache": _w((lambda *s: torch.randn(*s, dtype=torch.bfloat16) * 0.8)(B, Hkv, Sk, Dh)),
            "v_cache": _w((lambda *s: torch.randn(*s, dtype=torch.bfloat16) * 0.05)(B, Hkv, Sk, Dh)),
            "wq": _w((lambda *s: torch.randn(*s, dtype=torch.bfloat16) * 0.8)(D, Hq * Dh) * (D ** -0.5)),
            "wo": _w((lambda *s: torch.randn(*s, dtype=torch.bfloat16) * 0.05)(Hq * Dh, D) * ((Hq * Dh) ** -0.5)),
        }
    _A_in = _A_setup()

    def _B_setup():
        B, Sq, D = 8, 144, 512
        H, Sk, Dh = 32, 512, 128
        return {
            "x": _w((lambda *s: torch.randn(*s, dtype=torch.bfloat16) * 0.8)(B, Sq, D)),
            "k_cache": _w((lambda *s: torch.randn(*s, dtype=torch.bfloat16) * 0.8)(B, H, Sk, Dh)),
            "v_cache": _w((lambda *s: torch.randn(*s, dtype=torch.bfloat16) * 0.05)(B, H, Sk, Dh)),
            "wq": _w((lambda *s: torch.randn(*s, dtype=torch.bfloat16) * 0.8)(D, H * Dh) * (D ** -0.5)),
            "wo": _w((lambda *s: torch.randn(*s, dtype=torch.bfloat16) * 0.05)(H * Dh, D) * ((H * Dh) ** -0.5)),
        }
    _B_in = _B_setup()

    return {
        "A_x": _A_in["x"],
        "A_k_cache": _A_in["k_cache"],
        "A_v_cache": _A_in["v_cache"],
        "A_wq": _A_in["wq"],
        "A_wo": _A_in["wo"],
        "B_x": _B_in["x"],
        "B_k_cache": _B_in["k_cache"],
        "B_v_cache": _B_in["v_cache"],
        "B_wq": _B_in["wq"],
        "B_wo": _B_in["wo"],
    }

def reference(A_x, A_k_cache, A_v_cache, A_wq, A_wo, B_x, B_k_cache, B_v_cache, B_wq, B_wo):
    def _A_ref(x, k_cache, v_cache, wq, wo):
        B, Sq, D = x.shape
        Hq, Dh = 32, 128
        Hkv = k_cache.shape[1]
        rep = Hq // Hkv
        q = (lambda x, *d: x.permute(*d))((x @ wq).reshape(B, Sq, Hq, Dh), 0, 2, 1, 3)
        k = (lambda x, n, axis: torch.repeat_interleave(x, n, dim=axis))(k_cache, rep, axis=1)
        v = (lambda x, n, axis: torch.repeat_interleave(x, n, dim=axis))(v_cache, rep, axis=1)
        scores = torch.einsum("bhqd,bhkd->bhqk", q, k) * (Dh ** -0.5)
        p = _softmax(scores, axis=-1)
        o = torch.einsum("bhqk,bhkd->bhqd", p, v)
        return (lambda x, *d: x.permute(*d))(o, 0, 2, 1, 3).reshape(B, Sq, Hq * Dh) @ wo

    def _B_ref(x, k_cache, v_cache, wq, wo):
        B, Sq, D = x.shape
        H, Dh = 32, 128
        q = (lambda x, *d: x.permute(*d))((x @ wq).reshape(B, Sq, H, Dh), 0, 2, 1, 3)
        scores = torch.einsum("bhqd,bhkd->bhqk", q, k_cache) * (Dh ** -0.5)
        p = _softmax(scores, axis=-1)
        o = torch.einsum("bhqk,bhkd->bhqd", p, v_cache)
        return (lambda x, *d: x.permute(*d))(o, 0, 2, 1, 3).reshape(B, Sq, H * Dh) @ wo

    a = _A_ref(A_x, A_k_cache, A_v_cache, A_wq, A_wo)
    b = _B_ref(B_x, B_k_cache, B_v_cache, B_wq, B_wo)
    return torch.concatenate([a, b], axis=-1)
```

```python
import re

TRANS = ("v_exp_f32", "v_log_f32", "v_rcp_f32", "v_rsq_f32", "v_sqrt_f32", "v_sin_f32", "v_cos_f32", "v_rcp_iflag_f32")

def parse_reg(tok):
    t = tok.strip()
    t = t.lstrip("-")
    if t.startswith("|") and t.endswith("|"):
        t = t[1:-1]
    if t.startswith("abs(") and t.endswith(")"):
        t = t[4:-1]
    m = re.fullmatch(r"([vas])(\d+)", t)
    if m:
        return [(m.group(1), int(m.group(2)))]
    m = re.fullmatch(r"([vas])\[(\d+):(\d+)\]", t)
    if m:
        return [(m.group(1), i) for i in range(int(m.group(2)), int(m.group(3)) + 1)]
    if t == "vcc":
        return [("s", 106), ("s", 107)]
    if t == "vcc_lo":
        return [("s", 106)]
    if t == "vcc_hi":
        return [("s", 107)]
    if t == "m0":
        return [("m", 0)]
    if t == "exec":
        return [("e", 0)]
    return []

class I:
    __slots__ = ("text", "op", "kind", "dst", "src", "ops", "label", "target", "passes", "srcC", "nopn", "tag")
    def __init__(self, text, tag=None):
        self.text = text
        self.tag = tag
        self.label = None
        self.target = None
        self.dst = []
        self.src = []
        self.srcC = []
        self.passes = 0
        self.nopn = 0
        s = text.split(";")[0].strip()
        if not s:
            self.kind = "empty"; self.op = ""; self.ops = []; return
        if s.endswith(":"):
            self.kind = "label"; self.label = s[:-1]; self.op = ""; self.ops = []; return
        if s.startswith("."):
            self.kind = "directive"; self.op = s.split()[0]; self.ops = []; return
        parts = s.split(None, 1)
        self.op = op = parts[0]
        rest = parts[1] if len(parts) > 1 else ""
        ops = [o.strip() for o in re.split(r",(?![^\[]*\])", rest)] if rest else []
        mods = []
        if ops:
            last = ops[-1].split()
            if len(last) > 1:
                ops[-1] = last[0]
                mods = last[1:]
        self.ops = ops
        R = [parse_reg(o) for o in ops]
        if op.startswith("v_mfma"):
            self.kind = "mfma"
            self.dst = R[0]; self.src = R[1] + R[2] + R[3]; self.srcC = R[3]
            if "16x16x32" in op or "16x16x16" in op: self.passes = 4
            elif "32x32x16" in op or "32x32x8" in op: self.passes = 8
            elif "4x4x4" in op: self.passes = 2
            else: raise ValueError("unknown mfma " + op)
        elif op.startswith("v_"):
            self.kind = "valu"
            base = op.replace("_e32", "").replace("_e64", "")
            if base in TRANS: self.kind = "trans"
            if op.startswith("v_cmp"):
                self.dst = R[0]; self.src = sum(R[1:], [])
                if op.startswith("v_cmpx"): self.dst = self.dst + [("e", 0)]
            elif op.startswith("v_permlane") and "swap" in op:
                self.dst = R[0] + R[1]; self.src = R[0] + R[1]
            elif op.startswith(("v_add_co", "v_sub_co", "v_addc_co", "v_subb_co")):
                self.dst = R[0] + R[1]; self.src = sum(R[2:], [])
            elif op.startswith(("v_fmac", "v_pk_fmac", "v_dot2c")):
                self.dst = R[0]; self.src = sum(R, [])
            elif op.startswith("v_writelane"):
                self.dst = R[0]; self.src = sum(R, [])
            else:
                self.dst = R[0]; self.src = sum(R[1:], [])
                if op.startswith("v_cndmask") and len(ops) == 3:
                    self.src = self.src + [("s", 106), ("s", 107)]
        elif op.startswith("ds_read") or op.startswith("ds_bpermute") or op.startswith("ds_swizzle") or op.startswith("ds_permute"):
            self.kind = "ds_read"; self.dst = R[0]; self.src = sum(R[1:], [])
        elif op.startswith("ds_write") or op.startswith("ds_add") or op.startswith("ds_or") or op.startswith("ds_max"):
            self.kind = "ds_write"; self.src = sum(R, [])
        elif op.startswith("buffer_load") or op.startswith("global_load"):
            if "lds" in mods or "_lds_" in op:
                self.kind = "dma"; self.src = sum(R, []) + [("m", 0)]
            else:
                self.kind = "vload"; self.dst = R[0]; self.src = sum(R[1:], [])
        elif op.startswith("buffer_store") or op.startswith("global_store"):
            self.kind = "vstore"; self.src = sum(R, [])
            if op.startswith("buffer_store"): self.tag = self.tag
        elif op.startswith("buffer_atomic") or op.startswith("global_atomic"):
            self.kind = "vatomic"; self.src = sum(R, [])
            if "sc0" in mods: self.dst = R[0]
        elif op in ("buffer_wbl2", "buffer_inv"):
            self.kind = "vcache"
        elif op == "s_nop":
            self.kind = "nop"; self.nopn = int(ops[0], 0) + 1
        elif op == "s_waitcnt":
            self.kind = "waitcnt"
        elif op == "s_barrier":
            self.kind = "barrier"
        elif op in ("s_branch",) or op.startswith("s_cbranch"):
            self.kind = "branch"; self.target = ops[0]
        elif op == "s_endpgm":
            self.kind = "end"
        elif op.startswith("s_load") or op.startswith("s_memtime") or op.startswith("s_memrealtime"):
            self.kind = "smem"; self.dst = R[0]; self.src = sum(R[1:], [])
        elif op.startswith("s_"):
            self.kind = "salu"
            if op.startswith("s_cmp") or op.startswith("s_bitcmp") or op in ("s_setprio", "s_sleep", "s_setreg_b32", "s_setreg_imm32_b32"):
                self.src = sum(R, [])
            elif "saveexec" in op:
                self.dst = R[0] + [("e", 0)]; self.src = sum(R[1:], []) + [("e", 0)]
            else:
                self.dst = R[0] if R else []; self.src = sum(R[1:], [])
                if op in ("s_addk_i32", "s_mulk_i32", "s_cmov_b32"):
                    self.src = self.src + R[0]
        else:
            raise ValueError("unknown instr: " + text)
    def states(self):
        if self.kind in ("label", "empty", "directive"): return 0
        if self.kind == "nop": return self.nopn
        return 1
    def store_data(self):
        if self.kind == "vstore" and ("x4" in self.op or "x3" in self.op):
            if self.op.startswith("buffer_store"): return parse_reg(self.ops[0])
            return parse_reg(self.ops[1])
        return []

def vgprs(l):
    return set(r for r in l if r[0] in "va")

def required_wait(prod, cons):
    need = 0
    pd = set(prod.dst); cs = set(cons.src); cd = set(cons.dst)
    is_valu_c = cons.kind in ("valu", "trans")
    is_valu_p = prod.kind in ("valu", "trans")
    if is_valu_p and cons.kind == "mfma" and (vgprs(pd) & cs):
        need = max(need, 2)
    if prod.kind == "mfma":
        P = prod.passes
        rd = {2: 5, 4: 8, 8: 12, 16: 20}[P]
        if cons.kind == "mfma":
            c = set(cons.srcC)
            ab = cs - c if False else set(parse_reg(cons.ops[1]) + parse_reg(cons.ops[2]))
            if pd & ab: need = max(need, rd)
            if pd & c:
                if set(prod.dst) == c and prod.passes == cons.passes:
                    need = max(need, 2 if P == 2 else 0)
                else:
                    need = max(need, {2: 4, 4: 6, 8: 10, 16: 18}[P])
            if (pd & cd) and not (pd & c):
                need = max(need, {2: 4, 4: 6, 8: 10, 16: 18}[P])
        elif is_valu_c:
            if pd & (cs | cd): need = max(need, rd)
            if set(prod.srcC) & cd: need = max(need, {2: 1, 4: 3, 8: 7, 16: 15}[P])
        elif cons.kind in ("ds_read", "ds_write", "vload", "vstore", "dma", "vatomic"):
            if pd & (cs | cd): need = max(need, rd)
            if set(prod.srcC) & cd: need = max(need, {2: 1, 4: 3, 8: 7, 16: 15}[P])
    if prod.kind == "trans" and cons.kind == "valu" and (pd & cs):
        need = max(need, 1)
    if prod.kind == "trans" and cons.kind == "trans" and (pd & cs):
        need = max(need, 1)
    if is_valu_p:
        sd = set(r for r in pd if r[0] == "s")
        if sd:
            if cons.kind in ("vload", "vstore", "dma", "vatomic") and (sd & cs): need = max(need, 5)
            if is_valu_c and (sd & cs):
                need = max(need, 4 if cons.op.startswith(("v_readlane", "v_writelane")) else 2)
            if cons.kind in ("salu", "branch", "smem") and (sd & cs): need = max(need, 4)
            if cons.kind == "branch" and cons.op in ("s_cbranch_vccz", "s_cbranch_vccnz") and (("s", 106) in sd): need = max(need, 5)
        if (vgprs(pd) & cs):
            if cons.op.startswith(("v_readfirstlane", "v_readlane")): need = max(need, 1)
            if cons.op.startswith("v_permlane"): need = max(need, 2)
            if "dpp" in cons.text or "row_" in cons.text or "quad_perm" in cons.text: need = max(need, 2)
        if ("e", 0) in pd and (is_valu_c or cons.kind == "mfma"): need = max(need, 5)
    if prod.kind == "salu":
        if ("m", 0) in pd and cons.kind == "dma": need = max(need, 1)
        if ("e", 0) in pd and ("dpp" in cons.text or "row_" in cons.text): need = max(need, 5)
    sdat = prod.store_data()
    if sdat and (set(sdat) & cd):
        need = max(need, 2 if is_valu_c else 1)
    return need

class Prog:
    def __init__(self):
        self.ins = []
    def e(self, text, tag=None):
        for line in text.split("\n"):
            if line.strip():
                self.ins.append(I(line.strip(), tag))
    def extend(self, other):
        self.ins.extend(other.ins if isinstance(other, Prog) else other)
    def __len__(self):
        return len(self.ins)

def mk(text):
    p = Prog(); p.e(text); return p.ins

def insert_lgkm(ins, strict=True):
    out = []
    pend = []
    smem_pending = False
    for i in ins:
        if i.kind == "waitcnt":
            m = re.search(r"lgkmcnt\((\d+)\)", i.text)
            if m:
                n = int(m.group(1))
                if n == 0:
                    pend = []; smem_pending = False
                elif not smem_pending:
                    pend = pend[len(pend) - n:] if n < len(pend) else pend
            out.append(i); continue
        if i.kind in ("label", "branch", "end"):
            live = [p for p in pend if p]
            if (live or smem_pending) and strict and i.tag != "ok_pending":
                raise RuntimeError("pending LDS reads at control-flow point: " + i.text + " pend=" + str(live))
            out.append(i); continue
        touched = set(i.src) | set(i.dst)
        if smem_pending and (touched & smem_regs):
            out.append(I("s_waitcnt lgkmcnt(0)")); pend = []; smem_pending = False
        k = -1
        for j, d in enumerate(pend):
            if d & touched: k = j
        if k >= 0:
            n = len(pend) - 1 - k
            if smem_pending: n = 0
            out.append(I(f"s_waitcnt lgkmcnt({min(n, 15)})"))
            if n > 15: raise RuntimeError("lgkm >15")
            pend = pend[k + 1:]
            if n == 0: smem_pending = False
        if i.kind in ("ds_read", "ds_write") and len(pend) >= 15 and not smem_pending:
            out.append(I("s_waitcnt lgkmcnt(14)")); pend = pend[len(pend) - 14:]
        if i.kind == "ds_read":
            pend.append(set(i.dst))
        elif i.kind == "ds_write":
            pend.append(set())
        elif i.kind == "smem":
            if not smem_pending: smem_regs = set()
            smem_pending = True
            smem_regs |= set(i.dst)
        if len(pend) > 15:
            pass
        out.append(i)
    return out

def fix_hazards(ins, maxlook=24, verbose=False):
    ins = list(ins)
    total = 0
    def maps():
        labels = {i.label: n for n, i in enumerate(ins) if i.kind == "label"}
        jumpers = {}
        for n, i in enumerate(ins):
            if i.kind == "branch":
                jumpers.setdefault(labels[i.target], []).append(n)
        return jumpers
    for rnd in range(10):
        changed = False
        jumpers = maps()
        n = 0
        while n < len(ins):
            c = ins[n]
            if c.kind in ("label", "empty", "directive", "nop", "waitcnt", "barrier", "end"):
                n += 1; continue
            need_add = 0
            stack = [(n, 0)]
            seen = {}
            while stack:
                pos, dist = stack.pop()
                preds = []
                if pos > 0:
                    pv = ins[pos - 1]
                    if not (pv.kind == "end" or (pv.kind == "branch" and pv.op == "s_branch")):
                        preds.append(pos - 1)
                if ins[pos].kind == "label":
                    preds += jumpers.get(pos, [])
                for p in preds:
                    pi = ins[p]
                    if pi.kind not in ("label", "empty", "directive", "nop", "waitcnt", "barrier"):
                        w = required_wait(pi, c)
                        if w > dist:
                            need_add = max(need_add, w - dist)
                    d2 = dist + pi.states()
                    if d2 < maxlook and seen.get(p, 10**9) > d2:
                        seen[p] = d2
                        stack.append((p, d2))
            if need_add:
                k = need_add
                total += k
                if verbose: print("nop", k, "before", c.text)
                nops = []
                while k > 0:
                    t = min(k, 16); nops.append(I(f"s_nop {t - 1}", "hz")); k -= t
                ins[n:n] = nops
                n += len(nops)
                jumpers = maps()
                changed = True
            n += 1
        if not changed:
            break
    return ins, total

def interleave(main, fill, start=0, end=None):
    if end is None: end = len(main)
    out = list(main[:start])
    n = end - start
    if n <= 0:
        return out + list(fill) + list(main[end:])
    k = 0
    for j in range(n):
        out.append(main[start + j])
        tgt = (j + 1) * len(fill) // n
        while k < tgt:
            out.append(fill[k]); k += 1
    out += fill[k:]
    out += main[end:]
    return out

def render(ins):
    lines = []
    for i in ins:
        if i.kind in ("label", "directive"): lines.append(i.text)
        else: lines.append("  " + i.text)
    return "\n".join(lines) + "\n"
```

```python
from asmlib import *
from gen_k2 import stamp, stamp_flush, kd, finalize
import struct

def fbits(x): return struct.unpack("<I", struct.pack("<f", x))[0]
CSCALE = 1.4426950408889634 / (128 ** 0.5)
L_LO = 2.0 ** -64
L_HI = 2.0 ** 16

XS = [0, 18432]
WS0 = 36864
SLOT = 32768
QX = 3 * SLOT + 16384

V_LANE = 0
V_DK = [1, 2]; V_DV = [3, 4]
V_KA = [5, 6, 7, 8]
V_VA = list(range(9, 17))
V_DW = 17; V_DX = 18
V_XA = [19, 20]; V_XT = [21, 22]
V_WA = [23, 24, 25, 26]
V_T0 = 27
V_ONES = 28
V_O = 32
V_OT = 160
V_S = 192; V_P = 216; V_NM = 236
def vq(b, n=4): return f"v[{b}:{b+n-1}]"
def aq(b, n=4): return f"a[{b}:{b+n-1}]"
def O_(T, qt): return V_O + (T * 4 + qt) * 4 if qt < 4 else V_OT + T * 4
def S_(buf, kt): return V_S + buf * 8 + kt * 4
def P_(qt): return V_P + qt * 4
def NM_(qt): return V_NM + qt * 4
A_Q = 0
def Q_(qt, u): return A_Q + (qt * 4 + u) * 4 if qt < 4 else 64 + u * 4
A_L = 80
def L_(qt): return A_L + qt * 4
A_K = 100
def K_(buf, kt, u): return A_K + buf * 32 + (kt * 4 + u) * 4
A_V = 164
def Vf(buf, T): return A_V + buf * 32 + T * 4
A_FR = 128
def FA(buf, T): return A_FR + buf * 52 + T * 4
def FB(buf, qt): return A_FR + buf * 52 + 32 + qt * 4

S_X = "s[4:7]"; S_WQ = "s[8:11]"; S_K = "s[12:15]"; S_V = "s[16:19]"; S_OW = "s[20:23]"

def gen_k1(name, mapping="M1", kvflags="nt", wflags="", oflags="", stamps=False, ws_sreg="s[54:55]"):
    p = Prog(); e = p.e; L = name
    e("s_cmp_ge_u32 s2, 256")
    e(f"s_cbranch_scc1 {L}_done")
    stamp(p, 0, stamps)
    e("s_load_dwordx8 s[36:43], s[0:1], 0")
    e("s_load_dwordx8 s[44:51], s[0:1], 40")
    e("s_load_dwordx2 s[54:55], s[0:1], 96")
    e("v_lshrrev_b32 v27, 6, v0")
    e("v_and_b32 v0, 63, v0")
    e("v_readfirstlane_b32 s3, v27")
    e("s_and_b32 s52, s2, 7")
    e("s_lshr_b32 s27, s52, 2")
    if mapping == "M1":
        e("s_lshr_b32 s28, s2, 5")
        e("s_bfe_u32 s53, s2, 0x20003")
        e("s_and_b32 s52, s52, 3")
        e("s_lshl_b32 s29, s52, 3")
        e("s_lshl_b32 s56, s53, 1")
        e("s_add_u32 s29, s29, s56")
        e("s_lshl_b32 s26, s28, 1")
        e("s_lshl_b32 s56, s53, 2")
        e("s_add_u32 s26, s26, s56")
        e("s_and_b32 s26, s26, 15")
    elif mapping == "M4":
        e("s_lshr_b32 s56, s2, 3")
        e("s_and_b32 s53, s56, 7")
        e("s_lshr_b32 s56, s56, 3")
        e("s_and_b32 s57, s52, 1")
        e("s_lshl_b32 s28, s57, 2")
        e("s_add_u32 s28, s28, s56")
        e("s_bfe_u32 s57, s52, 0x10001")
        e("s_lshl_b32 s29, s57, 4")
        e("s_lshl_b32 s57, s53, 1")
        e("s_add_u32 s29, s29, s57")
        e("s_lshl_b32 s26, s56, 2")
        e("s_add_u32 s26, s26, s57")
        e("s_and_b32 s26, s26, 15")
    elif mapping == "M2":
        e("s_lshr_b32 s56, s2, 3")
        e("s_and_b32 s53, s56, 15")
        e("s_lshr_b32 s56, s56, 4")
        e("s_and_b32 s57, s52, 3")
        e("s_lshl_b32 s28, s57, 1")
        e("s_add_u32 s28, s28, s56")
        e("s_lshl_b32 s29, s53, 1")
        e("s_lshl_b32 s26, s56, 3")
        e("s_and_b32 s57, s53, 3")
        e("s_lshl_b32 s57, s57, 1")
        e("s_add_u32 s26, s26, s57")
        e("s_and_b32 s26, s26, 15")
    e("s_and_b32 s24, s3, 1")
    e("s_lshr_b32 s25, s3, 1")
    e("s_waitcnt lgkmcnt(0)")
    e("s_cmp_eq_u32 s27, 0")
    for k in range(8):
        e(f"s_cselect_b32 s{36+k}, s{36+k}, s{44+k}")
    e("s_mul_i32 s52, s28, 147456")
    e("s_add_u32 s4, s36, s52\ns_addc_u32 s5, s37, 0\ns_mov_b32 s6, 147456\ns_mov_b32 s7, 0x20000")
    e("s_lshl_b32 s52, s29, 8")
    e("s_add_u32 s8, s42, s52\ns_addc_u32 s9, s43, 0\ns_sub_u32 s10, 0x400000, s52\ns_mov_b32 s11, 0x20000")
    e("s_lshl_b32 s52, s28, 5\ns_add_u32 s52, s52, s29")
    e("s_lshr_b32 s53, s52, 15\ns_lshl_b32 s52, s52, 17")
    e("s_add_u32 s12, s38, s52\ns_addc_u32 s13, s39, s53\ns_mov_b32 s14, 262144\ns_mov_b32 s15, 0x20000")
    e("s_add_u32 s16, s40, s52\ns_addc_u32 s17, s41, s53\ns_mov_b32 s18, 262144\ns_mov_b32 s19, 0x20000")
    e("s_lshl_b32 s52, s27, 3\ns_add_u32 s52, s52, s28\ns_mul_i32 s52, s52, 1179648")
    e("s_add_u32 s20, s54, s52\ns_addc_u32 s21, s55, 0\ns_mov_b32 s22, 1179648\ns_mov_b32 s23, 0x20000")

    lane = "v0"
    e("v_lshrrev_b32 v27, 5, v0")
    e("s_lshl_b32 s52, s24, 1")
    e("v_add_u32 v27, s52, v27")
    e("v_lshlrev_b32 v29, 2, v27")
    e("v_and_b32 v30, 31, v0")
    e("v_xor_b32 v29, v29, v30")
    e("v_lshlrev_b32 v29, 4, v29")
    e(f"v_lshl_add_u32 v{V_DW}, v27, 13, v29")
    e("v_lshrrev_b32 v27, 3, v0")
    e("s_lshl_b32 s52, s24, 3")
    e("v_add_u32 v27, s52, v27")
    e("v_lshrrev_b32 v29, 1, v27")
    e("v_and_b32 v29, 7, v29")
    e("v_and_b32 v30, 7, v0")
    e("v_xor_b32 v29, v29, v30")
    e("v_lshlrev_b32 v29, 4, v29")
    e(f"v_lshl_add_u32 v{V_DX}, v27, 10, v29")
    e("v_lshrrev_b32 v27, 4, v0")
    e("s_lshl_b32 s52, s24, 3")
    e("v_add_u32 v27, s52, v27")
    e("v_and_b32 v30, 15, v0")
    for ii in range(2):
        e(f"v_add_u32 v29, {4*ii}, v27")
        e(f"v_xor_b32 v31, v29, v30")
        e(f"v_lshlrev_b32 v31, 4, v31")
        e(f"v_lshl_add_u32 v{V_DK[ii]}, v27, 8, v31")
        e(f"v_and_b32 v29, 7, v29")
        e(f"v_lshlrev_b32 v29, 1, v29")
        e(f"v_xor_b32 v31, v29, v30")
        e(f"v_lshlrev_b32 v31, 4, v31")
        e(f"v_lshl_add_u32 v{V_DV[ii]}, v27, 8, v31")
    def dma_W(c_expr_sreg, slot_lds, lst):
        lst.append(f"s_lshl_b32 s37, {c_expr_sreg}, 18")
        for k in range(8):
            lst.append(f"s_add_u32 m0, {slot_lds}, {k*2048}")
            if k: lst.append("s_add_u32 s37, s37, 32768")
            else: lst.append("s_nop 0")
            lst.append(f"buffer_load_dwordx4 v{V_DW}, {S_WQ}, s37 offen {wflags} lds")
    def dma_X(xc_sreg, slot_lds, lst):
        lst.append(f"s_lshl_b32 s37, {xc_sreg}, 7")
        for k in range(9):
            lst.append(f"s_add_u32 m0, {slot_lds}, {k*2048}")
            if k: lst.append("s_add_u32 s37, s37, 16384")
            else: lst.append("s_nop 0")
            lst.append(f"buffer_load_dwordx4 v{V_DX}, {S_X}, s37 offen {wflags} lds")
    def dma_KV(region, slot_sreg, soff_sreg, extra_lds, extra_g, lst):
        isK = region < 2
        srd = S_K if isK else S_V
        vo = V_DK if isK else V_DV
        g = (region & 1) * 131072 + extra_g
        lst.append(f"s_add_u32 m0, {slot_sreg}, {region*8192 + extra_lds}")
        lst.append(f"s_add_u32 s37, {soff_sreg}, {g}")
        lst.append(f"buffer_load_dwordx4 v{vo[0]}, {srd}, s37 offen {kvflags} lds")
        lst.append(f"buffer_load_dwordx4 v{vo[1]}, {srd}, s37 offen offset:1024 {kvflags} lds")

    e("s_cmp_lt_u32 s3, 2")
    e(f"s_cbranch_scc0 {L}_kvpre")
    q = []
    q.append("s_lshl_b32 s38, s24, 10")
    q.append("s_lshr_b32 s39, s26, 1")
    q.append(f"s_add_u32 s40, s38, {XS[0]}")
    dma_X("s39", "s40", q)
    q.append(f"s_add_u32 s40, s38, {WS0}")
    dma_W("s26", "s40", q)
    q.append("s_add_u32 s41, s26, 1\ns_and_b32 s41, s41, 15")
    q.append(f"s_add_u32 s40, s38, {WS0+16384}")
    dma_W("s41", "s40", q)
    q.append("s_add_u32 s39, s39, 1\ns_and_b32 s39, s39, 7")
    q.append(f"s_add_u32 s40, s38, {XS[1]}")
    dma_X("s39", "s40", q)
    q.append("s_add_u32 s41, s26, 2\ns_and_b32 s41, s41, 15")
    q.append(f"s_add_u32 s40, s38, {WS0+32768}")
    dma_W("s41", "s40", q)
    e("\n".join(q))
    e(f"s_branch {L}_pre_done")
    e(f"{L}_kvpre:")
    q = []
    q.append("s_lshl_b32 s38, s24, 11")
    q.append(f"s_add_u32 s40, s38, {3*SLOT}")
    q.append("s_mov_b32 s41, 0")
    for region in (0, 1):
        for hg in range(2):
            dma_KV(region, "s40", "s41", hg*4096, hg*4096, q)
    q.append(f"s_add_u32 s40, s38, {4*SLOT}")
    q.append("s_mov_b32 s41, 8192")
    for region in (0, 1):
        for hg in range(2):
            dma_KV(region, "s40", "s41", hg*4096, hg*4096, q)
    q.append("s_mov_b32 s41, 0")
    for region in (2, 3):
        for hg in range(2):
            dma_KV(region, "s40", "s41", hg*4096, hg*4096, q)
    e("\n".join(q))
    e(f"{L}_pre_done:")
    stamp(p, 1, stamps)

    e("v_and_b32 v27, 15, v0")
    e("v_lshrrev_b32 v28, 4, v0")
    e("v_lshrrev_b32 v29, 1, v27")
    e("v_xor_b32 v29, v29, v28")
    e("s_lshl_b32 s52, s24, 13")
    e("v_lshlrev_b32 v30, 7, v27")
    e("v_add_u32 v30, s52, v30")
    for sp in range(2):
        e(f"v_xor_b32 v31, {4*sp}, v29")
        e(f"v_lshl_add_u32 v{V_XA[sp]}, v31, 4, v30")
    e("s_sub_u32 s52, 16384, s52")
    for sp in range(2):
        e(f"v_add_u32 v{V_XT[sp]}, s52, v{V_XA[sp]}")
    e("v_bfe_u32 v29, v0, 2, 2")
    e("v_lshl_add_u32 v30, v28, 3, v29")
    e("v_lshlrev_b32 v30, 9, v30")
    e(f"v_add_u32 v30, {WS0}, v30")
    e("v_lshlrev_b32 v29, 2, v29")
    e("v_and_b32 v31, 3, v0")
    e("v_xor_b32 v29, v29, v31")
    e("s_lshl_b32 s52, s25, 4")
    e("s_lshl_b32 s53, s24, 3")
    e("s_or_b32 s52, s52, s53")
    e("v_xor_b32 v29, s52, v29")
    for u in range(4):
        e(f"v_xor_b32 v31, {4*u}, v29")
        e(f"v_lshl_add_u32 v{V_WA[u]}, v31, 4, v30")
    e("v_xor_b32 v29, v27, v28")
    e("s_lshl_b32 s53, s24, 3")
    e("v_xor_b32 v29, s53, v29")
    e("s_lshl_b32 s52, s25, 13")
    e(f"s_add_u32 s52, s52, {3*SLOT}")
    e("v_lshlrev_b32 v30, 8, v27")
    e("v_add_u32 v30, s52, v30")
    for u in range(4):
        e(f"v_xor_b32 v31, {4*u}, v29")
        e(f"v_lshl_add_u32 v{V_KA[u]}, v31, 4, v30")
    e("v_bfe_u32 v29, v0, 2, 2")
    e("v_lshl_add_u32 v29, v28, 2, v29")
    e("v_lshlrev_b32 v30, 8, v29")
    e("v_and_b32 v31, 1, v0")
    e("v_lshl_add_u32 v30, v31, 3, v30")
    e("s_lshl_b32 s52, s25, 13")
    e(f"s_add_u32 s52, s52, {3*SLOT + 16384}")
    e("v_add_u32 v30, s52, v30")
    e("v_and_b32 v29, 7, v29")
    e("v_lshlrev_b32 v29, 1, v29")
    e("v_bfe_u32 v31, v0, 1, 1")
    e("v_xor_b32 v29, v29, v31")
    e("s_lshl_b32 s53, s24, 3")
    e("v_xor_b32 v29, s53, v29")
    for T in range(8):
        e(f"v_xor_b32 v31, {2*T}, v29")
        e(f"v_lshl_add_u32 v{V_VA[T]}, v31, 4, v30")
    for r in range(V_O, V_O + 144):
        e(f"v_mov_b32 v{r}, 0")

    def rdQ(buf, sp):
        q = []
        for T in range(8):
            u = T >> 1
            q.append(f"ds_read_b64_tr_b16 {aq(FA(buf,T),2)}, v{V_WA[u]} offset:{8*(T&1)}")
            q.append(f"ds_read_b64_tr_b16 {aq(FA(buf,T)+2,2)}, v{V_WA[u]} offset:{8*(T&1)+2048}")
        for qt in range(4):
            q.append(f"ds_read_b128 {aq(FB(buf,qt))}, v{V_XA[sp]} offset:{qt*2048}")
        q.append(f"ds_read_b128 {aq(FB(buf,4))}, v{V_XT[sp]}")
        return mk("\n".join(q))
    def mmQ(buf):
        q = []
        for T in range(8):
            for qt in range(4):
                q.append(f"v_mfma_f32_16x16x32_bf16 {vq(O_(T,qt))}, {aq(FA(buf,T))}, {aq(FB(buf,qt))}, {vq(O_(T,qt))}")
            if T < 4:
                q.append(f"v_mfma_f32_16x16x32_bf16 {vq(V_OT+T*4)}, {aq(FA(buf,T))}, {aq(FB(buf,4))}, {vq(V_OT+T*4)}")
        return mk("\n".join(q))
    e("s_cmp_lt_u32 s3, 2")
    e(f"s_cbranch_scc0 {L}_qw0")
    e("s_waitcnt vmcnt(25)")
    e(f"{L}_qw0:")
    e("s_barrier")
    p.extend(rdQ(0, 0))
    e("s_mov_b32 s30, 0")
    e("s_mov_b32 s42, 0")
    e(f"s_mov_b32 s43, {XS[1]-XS[0]}")
    e("s_add_u32 s44, s26, 3")
    e("s_lshl_b32 s38, s24, 10")
    e(f"s_add_u32 s45, s38, {WS0}")
    e("s_lshr_b32 s46, s26, 1\ns_add_u32 s46, s46, 2")
    e(f"s_add_u32 s47, s38, {XS[0]}")
    stamp(p, 2, stamps)
    def adv_wread():
        q = []
        q.append("s_add_u32 s42, s42, 1")
        q.append("s_cmp_eq_u32 s42, 3")
        q.append("s_mov_b32 s48, 16384")
        q.append("s_cmov_b32 s48, -32768")
        q.append("s_cselect_b32 s42, 0, s42")
        for u in range(4):
            q.append(f"v_add_u32 v{V_WA[u]}, s48, v{V_WA[u]}")
        return q
    def adv_wdma():
        q = []
        q.append("s_add_u32 s44, s44, 1")
        q.append("s_add_u32 s45, s45, 16384")
        q.append(f"s_add_u32 s48, s38, {WS0 + 3*16384}")
        q.append("s_cmp_eq_u32 s45, s48")
        q.append(f"s_cselect_b32 s48, {3*16384}, 0")
        q.append("s_sub_u32 s45, s45, s48")
        return q
    e(f"{L}_qloop:")
    e("s_cmp_lt_u32 s3, 2")
    e(f"s_cbranch_scc0 {L}_qe_w")
    e("s_cmp_lt_u32 s30, 7")
    e(f"s_cbranch_scc1 {L}_qe_w17")
    e("s_waitcnt vmcnt(0)")
    e(f"s_branch {L}_qe_w")
    e(f"{L}_qe_w17:")
    e("s_waitcnt vmcnt(17)")
    e(f"{L}_qe_w:")
    e("s_waitcnt lgkmcnt(0)")
    e("s_barrier")
    e("s_cmp_lt_u32 s3, 2")
    e(f"s_cbranch_scc0 {L}_qe_d")
    e("s_cmp_lt_u32 s30, 7")
    e(f"s_cbranch_scc0 {L}_qe_d")
    q = ["s_and_b32 s49, s44, 15"]; dma_W("s49", "s45", q); q += adv_wdma()
    e("\n".join(q))
    e(f"{L}_qe_d:")
    fill = mk("\n".join(adv_wread())) + rdQ(1, 1)
    p.extend(interleave(mmQ(0), fill, 0, 30))
    e("s_cmp_lt_u32 s3, 2")
    e(f"s_cbranch_scc0 {L}_qo_w")
    e("s_waitcnt vmcnt(8)")
    e(f"{L}_qo_w:")
    e("s_waitcnt lgkmcnt(0)")
    e("s_barrier")
    e("s_cmp_lt_u32 s3, 2")
    e(f"s_cbranch_scc0 {L}_qo_kv")
    e("s_cmp_lt_u32 s30, 6")
    e(f"s_cbranch_scc0 {L}_qo_kv")
    q = ["s_and_b32 s49, s44, 15"]; dma_W("s49", "s45", q); q += adv_wdma()
    q.append("s_and_b32 s49, s46, 7"); dma_X("s49", "s47", q)
    q.append("s_add_u32 s46, s46, 1")
    q.append(f"s_add_u32 s48, s38, {XS[0]}")
    q.append("s_cmp_eq_u32 s47, s48")
    q.append(f"s_mov_b32 s48, {-(XS[1]-XS[0])}")
    q.append(f"s_cmov_b32 s48, {XS[1]-XS[0]}")
    q.append("s_add_u32 s47, s47, s48")
    e("\n".join(q))
    e(f"{L}_qo_kv:")
    e("s_cmp_eq_u32 s30, 7")
    e(f"s_cbranch_scc0 {L}_qo_d")
    q = []
    q.append("s_lshr_b32 s48, s3, 1\ns_lshl_b32 s48, s48, 12")
    q.append("s_lshl_b32 s49, s24, 11\ns_add_u32 s49, s49, s48")
    for j in (1, 2, 3):
        q.append(f"s_add_u32 s40, s49, {((j+4)%5)*SLOT}")
        q.append(f"s_add_u32 s41, s48, {(j+1)*8192}")
        dma_KV(0, "s40", "s41", 0, 0, q); dma_KV(1, "s40", "s41", 0, 0, q)
        q.append(f"s_add_u32 s41, s48, {j*8192}")
        dma_KV(2, "s40", "s41", 0, 0, q); dma_KV(3, "s40", "s41", 0, 0, q)
    e("\n".join(q))
    e(f"{L}_qo_d:")
    tog0 = [f"v_add_u32 v{V_XA[0]}, s43, v{V_XA[0]}", f"v_add_u32 v{V_XT[0]}, s43, v{V_XT[0]}"]
    tog1 = [f"v_add_u32 v{V_XA[1]}, s43, v{V_XA[1]}", f"v_add_u32 v{V_XT[1]}, s43, v{V_XT[1]}", "s_sub_u32 s43, 0, s43"]
    fill = mk("\n".join(adv_wread() + tog0 + tog1)) + rdQ(0, 0)
    p.extend(interleave(mmQ(1), fill, 0, 30))
    e("s_add_u32 s30, s30, 1")
    e("s_cmp_lt_u32 s30, 8")
    e(f"s_cbranch_scc1 {L}_qloop")
    e("s_waitcnt lgkmcnt(0)")
    stamp(p, 3, stamps)

    e(f"s_mov_b32 s48, {fbits(CSCALE):#x}\ns_mov_b32 s49, {fbits(CSCALE):#x}")
    T0 = 176
    k = 0
    for qt in range(5):
        for u in range(4 if qt < 4 else 2):
            t = T0 + (k % 8) * 4; k += 1
            for h in range(2):
                src = O_(2*u+h, qt) if qt < 4 else V_OT + (2*u+h)*4
                e(f"v_pk_mul_f32 {vq(src,2)}, {vq(src,2)}, s[48:49]")
                e(f"v_pk_mul_f32 {vq(src+2,2)}, {vq(src+2,2)}, s[48:49]")
                e(f"v_cvt_pk_bf16_f32 v{t+2*h}, v{src}, v{src+1}")
                e(f"v_cvt_pk_bf16_f32 v{t+2*h+1}, v{src+2}, v{src+3}")
            if qt < 4:
                for r in range(4): e(f"v_accvgpr_write_b32 a{Q_(qt,u)+r}, v{t+r}")
            else:
                for r in range(4): e(f"v_accvgpr_write_b32 a{Q_(4,u)+r}, v{t+r}")
                if u == 0:
                    e(f"s_lshl_b32 s52, s3, 11")
                    e(f"s_add_u32 s52, s52, {QX}")
                    e(f"v_lshlrev_b32 v27, 4, v0")
                    e(f"v_add_u32 v27, s52, v27")
                e(f"ds_write_b128 v27, {vq(t)} offset:{u*1024}")
    e("s_waitcnt lgkmcnt(0)")
    e("s_barrier")
    e("v_xor_b32 v27, 0x800, v27")
    e(f"ds_read_b128 {aq(Q_(4,2))}, v27")
    e(f"ds_read_b128 {aq(Q_(4,3))}, v27 offset:1024")
    for r in range(4): e(f"v_mov_b32 v{V_ONES+r}, 0x3f803f80")
    for r in range(20): e(f"v_mov_b32 v{V_NM+r}, 0")
    e("s_mov_b32 s50, 0")
    e(f"{L}_attn:")
    for r in range(V_O, V_O + 160): e(f"v_mov_b32 v{r}, 0")
    for r in range(20): e(f"v_mov_b32 v{V_P+r}, 0")
    for r in range(20): e(f"v_accvgpr_write_b32 a{A_L+r}, 0")
    for r in range(64): e(f"v_accvgpr_write_b32 a{A_V+r}, 0")
    for r in range(24): e(f"v_mov_b32 v{V_S+r}, 0xff800000")
    stamp(p, 4, stamps)

    def rdK(buf):
        q = []
        for kt in range(2):
            for u in range(4):
                q.append(f"ds_read_b128 {aq(K_(buf,kt,u))}, v{V_KA[u]} offset:{kt*4096}")
        return mk("\n".join(q))
    def rdV(buf):
        q = []
        for T in range(8):
            q.append(f"ds_read_b64_tr_b16 {aq(Vf(buf,T),2)}, v{V_VA[T]}")
            q.append(f"ds_read_b64_tr_b16 {aq(Vf(buf,T)+2,2)}, v{V_VA[T]} offset:4096")
        return mk("\n".join(q))
    e("s_waitcnt vmcnt(40)")
    e("s_waitcnt lgkmcnt(0)")
    e("s_barrier")
    e("s_cmp_eq_u32 s24, 0")
    e(f"s_cbranch_scc0 {L}_k0p1")
    p.extend(rdK(0))
    e(f"s_branch {L}_k0done")
    e(f"{L}_k0p1:")
    p.extend(rdK(1))
    e(f"{L}_k0done:")
    e("s_mov_b32 s30, 0")
    e("s_mov_b32 s35, 3")
    e("s_lshr_b32 s48, s3, 1\ns_lshl_b32 s48, s48, 12")
    e("s_lshl_b32 s49, s24, 11\ns_add_u32 s49, s49, s48")
    e(f"s_add_u32 s31, s49, {3*SLOT}")
    e(f"s_add_u32 s32, s48, {5*8192}")
    e(f"s_add_u32 s33, s48, {4*8192}")
    e("s_cmp_eq_u32 s24, 0")
    e(f"s_cbranch_scc0 {L}_bodyB")

    def top(tag):
        e("s_cmp_lt_u32 s30, 12")
        e(f"s_cbranch_scc1 {L}_{tag}_w24")
        e("s_cmp_eq_u32 s30, 12")
        e(f"s_cbranch_scc1 {L}_{tag}_w20")
        e("s_cmp_eq_u32 s30, 13")
        e(f"s_cbranch_scc1 {L}_{tag}_w12")
        e("s_cmp_eq_u32 s30, 14")
        e(f"s_cbranch_scc1 {L}_{tag}_w4")
        e("s_waitcnt vmcnt(0)")
        e(f"s_branch {L}_{tag}_wd")
        e(f"{L}_{tag}_w4:\ns_waitcnt vmcnt(4)\ns_branch {L}_{tag}_wd")
        e(f"{L}_{tag}_w12:\ns_waitcnt vmcnt(12)\ns_branch {L}_{tag}_wd")
        e(f"{L}_{tag}_w20:\ns_waitcnt vmcnt(20)\ns_branch {L}_{tag}_wd")
        e(f"{L}_{tag}_w24:\ns_waitcnt vmcnt(24)")
        e(f"{L}_{tag}_wd:")
        e("s_waitcnt lgkmcnt(0)")
        e("s_barrier")
        e("s_cmp_lt_u32 s30, 12")
        e(f"s_cbranch_scc0 {L}_{tag}_nodma")
        q = []
        dma_KV(2, "s31", "s33", 0, 0, q); dma_KV(3, "s31", "s33", 0, 0, q)
        e("\n".join(q))
        e("s_cmp_lt_u32 s30, 11")
        e(f"s_cbranch_scc0 {L}_{tag}_nok")
        q = []
        dma_KV(0, "s31", "s32", 0, 0, q); dma_KV(1, "s31", "s32", 0, 0, q)
        e("\n".join(q))
        e(f"{L}_{tag}_nok:")
        e("s_add_u32 s32, s32, 8192\ns_add_u32 s33, s33, 8192")
        e("s_add_u32 s31, s31, 32768")
        e(f"s_add_u32 s48, s49, {5*SLOT}\ns_cmp_eq_u32 s31, s48\ns_cselect_b32 s48, {5*SLOT}, 0\ns_sub_u32 s31, s31, s48")
        e(f"{L}_{tag}_nodma:")
    def adv_read():
        q = ["s_add_u32 s35, s35, 1", "s_cmp_eq_u32 s35, 5", f"s_mov_b32 s34, {SLOT}", f"s_cmov_b32 s34, {-4*SLOT}", "s_cselect_b32 s35, 0, s35"]
        for r in V_KA + V_VA:
            q.append(f"v_add_u32 v{r}, s34, v{r}")
        return mk("\n".join(q))
    def QK(ebuf, qt, sb):
        q = []
        for u in range(4):
            for kt in range(2):
                c = vq(NM_(qt)) if u == 0 else vq(S_(sb, kt))
                q.append(f"v_mfma_f32_16x16x32_bf16 {vq(S_(sb,kt))}, {aq(K_(ebuf,kt,u))}, {aq(Q_(qt,u))}, {c}")
        return mk("\n".join(q))
    def SM(qt, sb):
        q = []
        for kt in range(2):
            b = S_(sb, kt)
            for r in range(4): q.append(f"v_exp_f32 v{b+r}, v{b+r}")
        for kt in range(2):
            b = S_(sb, kt)
            q.append(f"v_cvt_pk_bf16_f32 v{P_(qt)+2*kt}, v{b}, v{b+1}")
            q.append(f"v_cvt_pk_bf16_f32 v{P_(qt)+2*kt+1}, v{b+2}, v{b+3}")
        return mk("\n".join(q))
    def PV(vbuf, qt):
        q = []
        for T in range(8):
            q.append(f"v_mfma_f32_16x16x32_bf16 {vq(O_(T,qt))}, {aq(Vf(vbuf,T))}, {vq(P_(qt))}, {vq(O_(T,qt))}")
        q.append(f"v_mfma_f32_16x16x32_bf16 {aq(L_(qt))}, {vq(V_ONES)}, {vq(P_(qt))}, {aq(L_(qt))}")
        return mk("\n".join(q))
    def body(typ, tag, do_qk=True):
        ebuf = 0 if typ == "A" else 1
        if typ == "A":
            qk = [0, 1, 2, 3, 4]; sb = [0, 1, 2, 0, 1]; pv = [0, 1, 2, 3]; carried = None
        else:
            qk = [0, 1, 2, 3]; sb = [2, 0, 1, 2]; pv = [0, 1, 2, 3, 4]; carried = (4, 1)
        reads = (rdK(ebuf ^ 1) + rdV(ebuf)) if do_qk else []
        nslots = 5
        per = (len(reads) + nslots - 1) // nslots
        for k in range(nslots):
            main = []
            if do_qk and k < len(qk): main += QK(ebuf, qk[k], sb[k])
            if k < len(pv): main += PV(ebuf ^ 1, pv[k])
            fill = []
            if k == 0:
                if carried: fill += SM(*carried)
                if do_qk: fill = adv_read() + fill
            elif do_qk:
                fill += SM(qk[k-1], sb[k-1])
            rd = reads[k*per:(k+1)*per]
            if k == 0:
                fill = fill + rd
            else:
                fill = interleave(fill, rd) if fill else rd
            if main:
                p.extend(interleave(main, fill))
            else:
                p.extend(fill)
    e(f"{L}_bodyA:")
    top("A"); body("A", "A")
    e("s_add_u32 s30, s30, 1\ns_cmp_eq_u32 s30, 16")
    e(f"s_cbranch_scc1 {L}_endB")
    e(f"{L}_bodyB:")
    top("B"); body("B", "B")
    e("s_add_u32 s30, s30, 1\ns_cmp_eq_u32 s30, 16")
    e(f"s_cbranch_scc0 {L}_bodyA")
    e("s_waitcnt lgkmcnt(0)")
    body("A", "fa", do_qk=False)
    e(f"s_branch {L}_epi")
    e(f"{L}_endB:")
    e("s_waitcnt lgkmcnt(0)")
    body("B", "fb", do_qk=False)
    e(f"{L}_epi:")
    stamp(p, 5, stamps)

    e("s_barrier")
    e("s_mul_i32 s52, s3, 5120")
    e("v_lshlrev_b32 v27, 4, v0")
    e("v_add_u32 v27, s52, v27")
    for i in range(4):
        e(f"ds_write_b128 v27, {vq(O_(4+i,4))} offset:{i*1024}")
    e(f"ds_write_b128 v27, {aq(L_(4))} offset:4096")
    for qt in range(5):
        e(f"v_accvgpr_read_b32 v{V_S+qt}, a{L_(qt)}")
    e(f"s_mov_b32 s52, {fbits(L_LO):#x}\ns_mov_b32 s53, {fbits(L_HI):#x}")
    e("s_mov_b64 s[56:57], exec")
    for qt in range(4):
        e(f"v_cmp_le_f32 vcc, s52, v{V_S+qt}")
        e("s_and_b64 s[56:57], s[56:57], vcc")
        e(f"v_cmp_ge_f32 vcc, s53, v{V_S+qt}")
        e("s_and_b64 s[56:57], s[56:57], vcc")
    e("s_waitcnt lgkmcnt(0)")
    e("s_barrier")
    e("s_xor_b32 s48, s3, 1\ns_mul_i32 s48, s48, 5120")
    e("v_lshlrev_b32 v27, 4, v0")
    e("v_add_u32 v27, s48, v27")
    for i in range(4):
        e(f"ds_read_b128 {vq(V_P+i*4)}, v27 offset:{i*1024}")
    e(f"ds_read_b128 {vq(V_S+8)}, v27 offset:4096")
    for i in range(4):
        for r in range(4):
            e(f"v_add_f32 v{O_(i,4)+r}, v{O_(i,4)+r}, v{V_P+i*4+r}")
    e(f"v_add_f32 v{V_S+4}, v{V_S+4}, v{V_S+8}")
    e(f"v_cmp_le_f32 vcc, s52, v{V_S+4}")
    e("s_and_b64 s[56:57], s[56:57], vcc")
    e(f"v_cmp_ge_f32 vcc, s53, v{V_S+4}")
    e("s_and_b64 s[56:57], s[56:57], vcc")
    e("s_cmp_eq_u64 s[56:57], exec")
    e("s_cselect_b32 s48, 0, 1")
    e("v_mov_b32 v27, s48")
    e("s_lshl_b32 s48, s3, 2\ns_add_u32 s48, s48, 32768")
    e("v_mov_b32 v28, s48")
    e("ds_write_b32 v28, v27")
    e("s_waitcnt lgkmcnt(0)")
    e("s_barrier")
    e("v_mov_b32 v28, 32768")
    e(f"ds_read_b128 {vq(V_S+12)}, v28")
    e(f"v_or_b32 v27, v{V_S+12}, v{V_S+13}")
    e(f"v_or_b32 v28, v{V_S+14}, v{V_S+15}")
    e("v_or_b32 v27, v27, v28")
    e("v_readfirstlane_b32 s48, v27")
    e("s_cmp_eq_u32 s50, 0")
    e("s_cselect_b32 s48, s48, 0")
    e("s_cmp_eq_u32 s48, 0")
    e(f"s_cbranch_scc0 {L}_fallback")
    for qt in range(5):
        e(f"v_rcp_f32 v{V_S+qt}, v{V_S+qt}")
    e("s_add_u32 s52, s29, s25")
    e("s_lshl_b32 s52, s52, 2")
    e("s_lshl_b32 s53, s24, 1")
    for u in range(4):
        e(f"s_xor_b32 s48, s53, {u}")
        e("s_add_u32 s48, s48, s52")
        e("s_mul_i32 s48, s48, 9216")
        e("s_lshl_b32 s49, s24, 12")
        e(f"s_add_u32 s{40+u}, s48, s49")
        if u < 2: e(f"s_add_u32 s{44+u}, s48, 8192")
    e("v_lshlrev_b32 v27, 4, v0")
    for qt in range(5):
        rc = V_S + qt
        e(f"v_mov_b32 v{V_S+9}, v{rc}\nv_mov_b32 v{V_S+8}, v{rc}")
        for u in range(4 if qt < 4 else 2):
            a, b = O_(2*u, qt), O_(2*u+1, qt)
            for x in (a, a+2, b, b+2):
                e(f"v_pk_mul_f32 {vq(x,2)}, {vq(x,2)}, {vq(V_S+8,2)}")
            e(f"v_cvt_pk_bf16_f32 v{a}, v{a}, v{a+1}")
            e(f"v_cvt_pk_bf16_f32 v{a+1}, v{a+2}, v{a+3}")
            e(f"v_cvt_pk_bf16_f32 v{a+2}, v{b}, v{b+1}")
            e(f"v_cvt_pk_bf16_f32 v{a+3}, v{b+2}, v{b+3}")
            if qt < 4:
                e(f"buffer_store_dwordx4 {vq(a)}, v27, {S_OW}, s{40+u} offen offset:{qt*1024} {oflags}")
            else:
                e(f"buffer_store_dwordx4 {vq(a)}, v27, {S_OW}, s{44+u} offen {oflags}")
    e("s_waitcnt vmcnt(0)")
    stamp(p, 6, stamps)
    stamp_flush(p, 7, stamps and f"{L}_stf", ws_sreg)
    e(f"s_branch {L}_done")

    e(f"{L}_fallback:")
    e("s_mov_b32 s50, 1")
    e("s_barrier")
    e(f"s_mul_i32 s48, s35, {SLOT}")
    for r in V_KA + V_VA:
        e(f"v_subrev_u32 v{r}, s48, v{r}")
    for qt in range(5):
        e(f"v_mov_b32 v{V_P+qt}, 0xff800000")
    e("s_mov_b32 s30, 0")
    e("s_lshr_b32 s48, s3, 1\ns_lshl_b32 s48, s48, 12")
    e("s_lshl_b32 s49, s24, 11\ns_add_u32 s49, s49, s48")
    e("s_mov_b32 s32, s48")
    e(f"{L}_mx:")
    q = []
    dma_KV(0, "s49", "s32", 0, 0, q); dma_KV(1, "s49", "s32", 0, 0, q)
    e("\n".join(q))
    e("s_waitcnt vmcnt(0)\ns_barrier")
    p.extend(rdK(0))
    for qt in range(5):
        for u in range(4):
            for kt in range(2):
                c = "0" if u == 0 else vq(S_(0, kt))
                e(f"v_mfma_f32_16x16x32_bf16 {vq(S_(0,kt))}, {aq(K_(0,kt,u))}, {aq(Q_(qt,u))}, {c}")
        for r in range(0, 8, 2):
            e(f"v_max3_f32 v{V_P+qt}, v{V_S+r}, v{V_S+r+1}, v{V_P+qt}")
    e("s_waitcnt lgkmcnt(0)\ns_barrier")
    e("s_add_u32 s32, s32, 8192\ns_add_u32 s30, s30, 1\ns_cmp_lt_u32 s30, 16")
    e(f"s_cbranch_scc1 {L}_mx")
    e("v_xor_b32 v27, 16, v0\nv_lshlrev_b32 v27, 2, v27")
    e("v_xor_b32 v28, 32, v0\nv_lshlrev_b32 v28, 2, v28")
    for qt in range(5):
        e(f"ds_bpermute_b32 v{V_S}, v27, v{V_P+qt}")
        e(f"v_max_f32 v{V_P+qt}, v{V_P+qt}, v{V_S}")
        e(f"ds_bpermute_b32 v{V_S}, v28, v{V_P+qt}")
        e(f"v_max_f32 v{V_P+qt}, v{V_P+qt}, v{V_S}")
        for r in range(4):
            e(f"v_sub_f32 v{NM_(qt)+r}, 0, v{V_P+qt}")
    for r in V_KA + V_VA:
        e(f"v_add_u32 v{r}, {3*SLOT}, v{r}")
    q = []
    q.append("s_lshr_b32 s48, s3, 1\ns_lshl_b32 s48, s48, 12")
    q.append("s_lshl_b32 s49, s24, 11\ns_add_u32 s49, s49, s48")
    for j in (-1, 0, 1, 2, 3):
        q.append(f"s_add_u32 s40, s49, {((j+4)%5)*SLOT}")
        q.append(f"s_add_u32 s41, s48, {(j+1)*8192}")
        dma_KV(0, "s40", "s41", 0, 0, q); dma_KV(1, "s40", "s41", 0, 0, q)
        if j >= 0:
            q.append(f"s_add_u32 s41, s48, {j*8192}")
            dma_KV(2, "s40", "s41", 0, 0, q); dma_KV(3, "s40", "s41", 0, 0, q)
    e("\n".join(q))
    e("s_waitcnt vmcnt(0)")
    e(f"s_branch {L}_attn")
    e(f"{L}_done:")
    e("s_endpgm")
    return p

if __name__ == "__main__":
    import sys
    st = len(sys.argv) > 1
    p = gen_k1("k1_kernel", stamps=st)
    txt, n = finalize(p, "k1_kernel")
    print("nops inserted", n, "instrs", len(p))
    open("k1_only.s", "w").write("; @launch kernel=k1_kernel grid=(256,1,1) block=(256,1,1) lds=163840\n.amdgcn_target \"amdgcn-amd-amdhsa--gfx950\"\n.text\n" + txt + kd("k1_kernel"))
```

```python
from asmlib import *

KA_X   = [0, 40]
KA_K   = [8, 48]
KA_V   = [16, 56]
KA_WQ  = [24, 64]
KA_WO  = [32, 72]
KA_OUT = 80
KA_DBG = 88
KA_WS  = 96

STAMP_OFF = 64*1024*1024
def stamp(p, k, on):
    if on:
        p.e(f"s_memrealtime s[58:59]\ns_waitcnt lgkmcnt(0)\ns_mov_b32 s{60+k}, s58")
def stamp_flush(p, n, on, wsreg="s[22:23]"):
    if on:
        p.e("v_mov_b32 v250, 0")
        for k in range(16):
            p.e(f"v_writelane_b32 v250, s{60+k}, {k}" if k < n else f"v_writelane_b32 v250, s60, {k}")
        p.e(f"s_lshl_b32 s58, s2, 6\ns_add_u32 s58, s58, {STAMP_OFF}")
        p.e("v_mbcnt_lo_u32_b32 v251, -1, 0\nv_mbcnt_hi_u32_b32 v251, -1, v251\nv_lshlrev_b32 v251, 2, v251\nv_add_u32 v251, s58, v251")
        p.e("s_cmp_eq_u32 s3, 0\ns_cbranch_scc0 %s" % on)
        p.e("s_mov_b64 s[56:57], exec\ns_mov_b64 exec, 0xffff\ns_nop 4")
        p.e(f"global_store_dword v251, v250, {wsreg}")
        p.e("s_waitcnt vmcnt(0)\ns_mov_b64 exec, s[56:57]")
        p.e(f"{on}:")

def gen_k2(name, D=8, ld_flags_o="", ld_flags_w="", rot=False, stamps=0):
    p = Prog()
    e = p.e
    L = name
    e(f"s_cmp_ge_u32 s2, 256")
    e(f"s_cbranch_scc1 {L}_done")
    stamp(p, 0, stamps)
    e("s_load_dwordx2 s[4:5], s[0:1], 32")
    e("s_load_dwordx2 s[6:7], s[0:1], 72")
    e("s_load_dwordx2 s[20:21], s[0:1], 80")
    e("s_load_dwordx2 s[22:23], s[0:1], 96")
    e("v_lshrrev_b32 v1, 6, v0")
    e("v_and_b32 v0, 63, v0")
    e("v_readfirstlane_b32 s3, v1")
    e("s_and_b32 s24, s2, 7")
    e("s_lshr_b32 s25, s24, 2")
    e("s_and_b32 s26, s24, 3")
    e("s_lshr_b32 s27, s2, 3")
    e("s_lshr_b32 s28, s27, 4")
    e("s_lshl_b32 s26, s26, 1")
    e("s_add_u32 s26, s26, s28")
    e("s_bfe_u32 s28, s27, 0x10003")
    e("s_and_b32 s29, s27, 7")
    e("s_waitcnt lgkmcnt(0)")
    e("s_cmp_eq_u32 s25, 0")
    e("s_cselect_b32 s12, s4, s6")
    e("s_cselect_b32 s13, s5, s7")
    e("s_mov_b32 s14, 0x400000")
    e("s_mov_b32 s15, 0x20000")
    e("s_lshl_b32 s30, s25, 3")
    e("s_add_u32 s30, s30, s26")
    e("s_mul_i32 s31, s30, 1179648")
    e("s_add_u32 s8, s22, s31")
    e("s_addc_u32 s9, s23, 0")
    e("s_mov_b32 s10, 1179648")
    e("s_mov_b32 s11, 0x20000")
    e("s_mov_b32 s16, s20")
    e("s_mov_b32 s17, s21")
    e("s_mov_b32 s18, 2359296")
    e("s_mov_b32 s19, 0x20000")
    e("s_lshl_b32 s32, s29, 2")
    e("s_lshl_b32 s33, s28, 1")
    e("s_add_u32 s32, s32, s33")
    e("s_and_b32 s33, s26, 1")
    e("s_add_u32 s32, s32, s33")
    if not rot: e("s_mov_b32 s32, 0")
    e("s_lshl_b32 s33, s3, 5")
    e(f"s_mul_i32 s34, s3, {D*4096}")
    e("v_lshrrev_b32 v3, 3, v0")
    e("v_and_b32 v4, 6, v3")
    e("v_and_b32 v5, 7, v0")
    e("v_xor_b32 v4, v4, v5")
    e("v_lshlrev_b32 v4, 4, v4")
    e("v_lshl_add_u32 v2, v3, 10, v4")
    e("s_lshl_b32 s35, s29, 7")
    e("v_add_u32 v2, s35, v2")
    e("v_lshlrev_b32 v6, 4, v0")
    e("s_mul_i32 s36, s28, 5")
    e("s_lshl_b32 s37, s36, 10")
    e("v_add_u32 v6, s37, v6")
    e("v_add_u32 v7, 0x1000, v6")
    e("v_lshrrev_b32 v12, 4, v0")
    e("v_bfe_u32 v13, v0, 2, 2")
    e("v_lshl_add_u32 v12, v12, 2, v13")
    e("v_and_b32 v13, 6, v12")
    e("v_bfe_u32 v14, v0, 1, 1")
    e("v_xor_b32 v13, v13, v14")
    e("v_and_b32 v14, 1, v0")
    e("v_lshlrev_b32 v14, 3, v14")
    e("v_lshl_add_u32 v14, v12, 7, v14")
    e("v_add_u32 v14, s34, v14")
    for T in range(4):
        e(f"v_xor_b32 v15, {2*T}, v13")
        e(f"v_lshl_add_u32 v{8+T}, v15, 4, v14")
    e("s_cmp_eq_u32 s28, 0")
    e(f"s_cbranch_scc0 {L}_q4")
    for ntile in (5, 4):
        if ntile == 4:
            e(f"{L}_q4:")
        body_k2(p, L, ntile, D, ld_flags_o, ld_flags_w, stamps)
        if ntile == 5:
            e(f"s_branch {L}_done")
    e(f"{L}_done:")
    e("s_endpgm")
    return p

def body_k2(p, L, NT, D, fo, fw, stamps):
    e = p.e
    OB = 32
    AB = OB + D * NT * 4
    assert AB + 32 <= 256
    def acc(T, t):
        b = (T * NT + t) * 4
        return f"a[{b}:{b+3}]"
    def ofr(slot, t):
        b = OB + (slot * NT + t) * 4
        return f"v[{b}:{b+3}]"
    def afr(buf, T, lo=0, n=4):
        b = AB + buf * 16 + T * 4 + lo
        return f"v[{b}:{b+n-1}]"
    for r in range(16 * NT):
        e(f"v_accvgpr_write_b32 a{r}, 0")
    NV = NT + 4
    def L_stage(i):
        slot = i % D
        q = []
        q.append(f"s_add_u32 s40, s32, {i}")
        q.append(f"s_and_b32 s40, s40, 31")
        q.append(f"s_add_u32 s40, s40, s33")
        q.append(f"s_mul_i32 s41, s40, 9216")
        q.append(f"s_lshl_b32 s42, s40, 15")
        for k in range(4):
            q.append(f"s_add_u32 m0, s34, {slot*4096 + k*1024}")
            if k: q.append(f"s_add_u32 s42, s42, 8192")
            else: q.append("s_nop 0")
            q.append(f"buffer_load_dwordx4 v2, s[12:15], s42 offen {fw} lds")
        for t in range(NT):
            if t < 4:
                q.append(f"buffer_load_dwordx4 {ofr(slot,t)}, v6, s[8:11], s41 offen offset:{t*1024} {fo}")
            else:
                q.append(f"buffer_load_dwordx4 {ofr(slot,t)}, v7, s[8:11], s41 offen {fo}")
        return mk("\n".join(q))
    def R_stage(i):
        slot = i % D; buf = i & 1
        q = []
        for T in range(4):
            q.append(f"ds_read_b64_tr_b16 {afr(buf,T,0,2)}, v{8+T} offset:{slot*4096}")
            q.append(f"ds_read_b64_tr_b16 {afr(buf,T,2,2)}, v{8+T} offset:{slot*4096 + 2048}")
        return mk("\n".join(q))
    def M_stage(i):
        slot = i % D; buf = i & 1
        q = []
        for T in range(4):
            for t in range(NT):
                q.append(f"v_mfma_f32_16x16x32_bf16 {acc(T,t)}, {afr(buf,T)}, {ofr(slot,t)}, {acc(T,t)}")
        return mk("\n".join(q))
    N = 32
    for i in range(min(D, N)):
        p.extend(L_stage(i))
    stamp(p, 1, stamps)
    e(f"s_waitcnt vmcnt({NV*(D-1)})")
    stamp(p, 2, stamps)
    p.extend(R_stage(0))
    for i in range(N):
        if i + 1 < N:
            outstanding_after = min(N - 1, i + D - 1) - (i + 1)
            e(f"s_waitcnt vmcnt({NV*outstanding_after})")
            R = R_stage(i + 1)
        else:
            R = []
        M = M_stage(i)
        body = interleave(M, R, 0, len(M) // 2)
        p.extend(body)
        if i + D < N:
            p.extend(L_stage(i + D))
    stamp(p, 3, stamps)
    e("v_lshlrev_b32 v12, 4, v0")
    e("v_add_u32 v13, s34, v12")
    for T in range(4):
        for t in range(NT):
            b = (T * NT + t) * 4
            tmp = 32 + ((T * NT + t) % 8) * 4
            for r in range(4):
                e(f"v_accvgpr_read_b32 v{tmp+r}, a{b+r}")
            e(f"ds_write_b128 v13, v[{tmp}:{tmp+3}] offset:{(T*NT+t)*1024}")
    e("s_waitcnt lgkmcnt(0)")
    e("s_barrier")
    e(f"s_mul_i32 s40, s3, {NT*1024}")
    e("v_add_u32 v12, s40, v12")
    for t in range(NT):
        for w in range(4):
            b = 64 + (t * 4 + w) * 4
            off = w * D * 4096 + t * 1024
            if off < 65536:
                e(f"ds_read_b128 v[{b}:{b+3}], v12 offset:{off}")
            else:
                e(f"v_add_u32 v14, {w*D*4096}, v12")
                e(f"ds_read_b128 v[{b}:{b+3}], v14 offset:{t*1024}")
    e("s_mul_i32 s40, s26, 144")
    e("s_lshl_b32 s41, s36, 4")
    e("s_add_u32 s40, s40, s41")
    e("s_lshl_b32 s40, s40, 11")
    e("s_lshl_b32 s41, s25, 10")
    e("s_add_u32 s40, s40, s41")
    e("s_lshl_b32 s41, s29, 7")
    e("s_add_u32 s40, s40, s41")
    e("s_lshl_b32 s41, s3, 5")
    e("s_add_u32 s40, s40, s41")
    e("v_and_b32 v15, 15, v0")
    e("v_lshlrev_b32 v15, 11, v15")
    e("v_lshrrev_b32 v16, 4, v0")
    e("v_lshl_add_u32 v15, v16, 3, v15")
    e("v_add_u32 v15, s40, v15")
    for t in range(NT):
        b = 64 + t * 16
        for r in range(4):
            e(f"v_add_f32 v{b+r}, v{b+r}, v{b+4+r}")
            e(f"v_add_f32 v{b+8+r}, v{b+8+r}, v{b+12+r}")
        for r in range(4):
            e(f"v_add_f32 v{b+r}, v{b+r}, v{b+8+r}")
        e(f"v_cvt_pk_bf16_f32 v{b}, v{b}, v{b+1}")
        e(f"v_cvt_pk_bf16_f32 v{b+1}, v{b+2}, v{b+3}")
        e(f"s_mov_b32 s41, {t*16*2048}")
        e(f"buffer_store_dwordx2 v[{b}:{b+1}], v15, s[16:19], s41 offen")
    e("s_waitcnt vmcnt(0)")
    stamp(p, 4, stamps)
    stamp_flush(p, 5, stamps and f"{L}_st{NT}")

def kd(name, vgpr=512, acc=256):
    return f""".section .rodata,"a"
.p2align 6
.amdhsa_kernel {name}
  .amdhsa_next_free_vgpr {vgpr}
  .amdhsa_next_free_sgpr 102
  .amdhsa_accum_offset {acc}
  .amdhsa_group_segment_fixed_size 0
  .amdhsa_kernarg_size 104
  .amdhsa_user_sgpr_count 2
  .amdhsa_user_sgpr_kernarg_segment_ptr 1
  .amdhsa_system_sgpr_workgroup_id_x 1
.end_amdhsa_kernel
.text
"""

def finalize(p, name):
    ins = insert_lgkm(p.ins, strict=False)
    ins, n = fix_hazards(ins)
    head = f".globl {name}\n.p2align 8\n.type {name},@function\n{name}:\n"
    return head + render(ins), n

if __name__ == "__main__":
    import sys
    p = gen_k2("k2_kernel", stamps=len(sys.argv) > 1)
    txt, n = finalize(p, "k2_kernel")
    print("nops inserted", n, "instrs", len(p))
    open("k2_only.s", "w").write("; @launch kernel=k2_kernel grid=(256,1,1) block=(256,1,1) lds=131072\n.amdgcn_target \"amdgcn-amd-amdhsa--gfx950\"\n.text\n" + txt + kd("k2_kernel"))
```

```python
import sys
from gen_k1 import gen_k1
from gen_k2 import gen_k2, kd, finalize
HEADER = open("concat_heads__gqa_block_cached__mha_block_cached__near_ridge.s.ref").read().split("; Override launch")[0]
def build(out, stamps=False, **kw):
    k1 = gen_k1("attn_kernel", stamps=stamps, **kw.get("k1", {}))
    k2 = gen_k2("oproj_kernel", stamps=False, **kw.get("k2", {}))
    t1, n1 = finalize(k1, "attn_kernel")
    t2, n2 = finalize(k2, "oproj_kernel")
    s = HEADER
    s += "; @launch kernel=attn_kernel grid=(256,1,1) block=(256,1,1) lds=163840\n"
    s += "; @launch kernel=oproj_kernel grid=(256,1,1) block=(256,1,1) lds=131072\n"
    s += '.amdgcn_target "amdgcn-amd-amdhsa--gfx950"\n.text\n'
    s += t1 + kd("attn_kernel") + t2 + kd("oproj_kernel")
    open(out, "w").write(s)
    print(out, "nops", n1, n2, "bytes", len(s))
if __name__ == "__main__":
    build("concat_heads__gqa_block_cached__mha_block_cached__near_ridge.s")
    build("v_nt_all.s", k1=dict(wflags="nt"), k2=dict(ld_flags_o="nt", ld_flags_w="nt"))
    build("v_nt_none.s", k1=dict(kvflags=""))
    build("v_nt_k2w.s", k2=dict(ld_flags_w="nt"))
```

```python
from asmlib import *

KA_X   = [0, 40]
KA_K   = [8, 48]
KA_V   = [16, 56]
KA_WQ  = [24, 64]
KA_WO  = [32, 72]
KA_OUT = 80
KA_DBG = 88
KA_WS  = 96

STAMP_OFF = 64*1024*1024
def stamp(p, k, on):
    if on:
        p.e(f"s_memrealtime s[58:59]\ns_waitcnt lgkmcnt(0)\ns_mov_b32 s{60+k}, s58")
        p.e(f"s_memtime s[58:59]\ns_waitcnt lgkmcnt(0)\ns_mov_b32 s{76+k}, s58")
DBG_MODE = [None]
def stamp_flush(p, n, on, wsreg="s[22:23]"):
    if on and DBG_MODE[0] is not None:
        adj, first = DBG_MODE[0]
        p.e("s_load_dwordx2 s[56:57], s[0:1], 88\ns_waitcnt lgkmcnt(0)")
        p.e(f"s_add_u32 s56, s56, {adj & 0xffffffff}\ns_addc_u32 s57, s57, {-1 if adj < 0 else 0}")
        p.e("v_mov_b32 v250, 0")
        for k in range(n):
            p.e(f"v_writelane_b32 v250, s{60+k}, {k}")
        p.e("s_not_b32 s58, s60")
        p.e(f"v_writelane_b32 v250, s58, {n}")
        p.e("v_mbcnt_lo_u32_b32 v251, -1, 0\nv_mbcnt_hi_u32_b32 v251, -1, v251\nv_lshlrev_b32 v251, 2, v251")
        p.e(f"v_add_u32 v251, {first*4}, v251")
        p.e("s_cmp_eq_u32 s3, 0\ns_cbranch_scc0 %s" % on)
        p.e(f"s_mov_b64 s[58:59], exec\ns_mov_b64 exec, {(1 << (n+1)) - 1}\ns_nop 4")
        p.e(f"global_atomic_umax v251, v250, s[56:57]")
        p.e("s_waitcnt vmcnt(0)\ns_mov_b64 exec, s[58:59]")
        p.e(f"{on}:")
        return
    if on:
        p.e("v_mov_b32 v250, 0")
        for k in range(16):
            if k < 8: p.e(f"v_writelane_b32 v250, s{60+k}, {k}" if k < n else f"v_writelane_b32 v250, s60, {k}")
            else: p.e(f"v_writelane_b32 v250, s{76+k-8}, {k}" if k - 8 < n else f"v_writelane_b32 v250, s76, {k}")
        p.e(f"s_lshl_b32 s58, s2, 6\ns_add_u32 s58, s58, {STAMP_OFF}")
        p.e("v_mbcnt_lo_u32_b32 v251, -1, 0\nv_mbcnt_hi_u32_b32 v251, -1, v251\nv_lshlrev_b32 v251, 2, v251\nv_add_u32 v251, s58, v251")
        p.e("s_cmp_eq_u32 s3, 0\ns_cbranch_scc0 %s" % on)
        p.e("s_mov_b64 s[56:57], exec\ns_mov_b64 exec, 0xffff\ns_nop 4")
        p.e(f"global_store_dword v251, v250, {wsreg}")
        p.e("s_waitcnt vmcnt(0)\ns_mov_b64 exec, s[56:57]")
        p.e(f"{on}:")

def gen_k2(name, D=8, ld_flags_o="", ld_flags_w="", rot=False, stamps=0):
    p = Prog()
    e = p.e
    L = name
    e(f"s_cmp_ge_u32 s2, 256")
    e(f"s_cbranch_scc1 {L}_done")
    stamp(p, 0, stamps)
    e("s_load_dwordx2 s[4:5], s[0:1], 32")
    e("s_load_dwordx2 s[6:7], s[0:1], 72")
    e("s_load_dwordx2 s[20:21], s[0:1], 80")
    e("s_load_dwordx2 s[22:23], s[0:1], 96")
    e("v_lshrrev_b32 v1, 6, v0")
    e("v_and_b32 v0, 63, v0")
    e("v_readfirstlane_b32 s3, v1")
    e("s_and_b32 s24, s2, 7")
    e("s_lshr_b32 s25, s24, 2")
    e("s_and_b32 s26, s24, 3")
    e("s_lshr_b32 s27, s2, 3")
    e("s_lshr_b32 s28, s27, 4")
    e("s_lshl_b32 s26, s26, 1")
    e("s_add_u32 s26, s26, s28")
    e("s_bfe_u32 s28, s27, 0x10003")
    e("s_and_b32 s29, s27, 7")
    e("s_waitcnt lgkmcnt(0)")
    e("s_cmp_eq_u32 s25, 0")
    e("s_cselect_b32 s12, s4, s6")
    e("s_cselect_b32 s13, s5, s7")
    e("s_mov_b32 s14, 0x400000")
    e("s_mov_b32 s15, 0x20000")
    e("s_lshl_b32 s30, s25, 3")
    e("s_add_u32 s30, s30, s26")
    e("s_mul_i32 s31, s30, 1179648")
    e("s_add_u32 s8, s22, s31")
    e("s_addc_u32 s9, s23, 0")
    e("s_mov_b32 s10, 1179648")
    e("s_mov_b32 s11, 0x20000")
    e("s_mov_b32 s16, s20")
    e("s_mov_b32 s17, s21")
    e("s_mov_b32 s18, 2359296")
    e("s_mov_b32 s19, 0x20000")
    e("s_lshl_b32 s32, s29, 2")
    e("s_lshl_b32 s33, s28, 1")
    e("s_add_u32 s32, s32, s33")
    e("s_and_b32 s33, s26, 1")
    e("s_add_u32 s32, s32, s33")
    if not rot: e("s_mov_b32 s32, 0")
    e("s_lshl_b32 s33, s3, 5")
    e(f"s_mul_i32 s34, s3, {D*4096}")
    e("v_lshrrev_b32 v3, 3, v0")
    e("v_and_b32 v4, 6, v3")
    e("v_and_b32 v5, 7, v0")
    e("v_xor_b32 v4, v4, v5")
    e("v_lshlrev_b32 v4, 4, v4")
    e("v_lshl_add_u32 v2, v3, 10, v4")
    e("s_lshl_b32 s35, s29, 7")
    e("v_add_u32 v2, s35, v2")
    e("v_lshlrev_b32 v6, 4, v0")
    e("s_mul_i32 s36, s28, 5")
    e("s_lshl_b32 s37, s36, 10")
    e("v_add_u32 v6, s37, v6")
    e("v_add_u32 v7, 0x1000, v6")
    e("v_lshrrev_b32 v12, 4, v0")
    e("v_bfe_u32 v13, v0, 2, 2")
    e("v_lshl_add_u32 v12, v12, 2, v13")
    e("v_and_b32 v13, 6, v12")
    e("v_bfe_u32 v14, v0, 1, 1")
    e("v_xor_b32 v13, v13, v14")
    e("v_and_b32 v14, 1, v0")
    e("v_lshlrev_b32 v14, 3, v14")
    e("v_lshl_add_u32 v14, v12, 7, v14")
    e("v_add_u32 v14, s34, v14")
    for T in range(4):
        e(f"v_xor_b32 v15, {2*T}, v13")
        e(f"v_lshl_add_u32 v{8+T}, v15, 4, v14")
    e("s_cmp_eq_u32 s28, 0")
    e(f"s_cbranch_scc0 {L}_q4")
    for ntile in (5, 4):
        if ntile == 4:
            e(f"{L}_q4:")
        body_k2(p, L, ntile, D, ld_flags_o, ld_flags_w, stamps)
        if ntile == 5:
            e(f"s_branch {L}_done")
    e(f"{L}_done:")
    e("s_endpgm")
    return p

def body_k2(p, L, NT, D, fo, fw, stamps):
    e = p.e
    OB = 32
    AB = OB + D * NT * 4
    assert AB + 32 <= 256
    def acc(T, t):
        b = (T * NT + t) * 4
        return f"a[{b}:{b+3}]"
    def ofr(slot, t):
        b = OB + (slot * NT + t) * 4
        return f"v[{b}:{b+3}]"
    def afr(buf, T, lo=0, n=4):
        b = AB + buf * 16 + T * 4 + lo
        return f"v[{b}:{b+n-1}]"
    for r in range(16 * NT):
        e(f"v_accvgpr_write_b32 a{r}, 0")
    NV = NT + 4
    def L_stage(i):
        slot = i % D
        q = []
        q.append(f"s_add_u32 s40, s32, {i}")
        q.append(f"s_and_b32 s40, s40, 31")
        q.append(f"s_add_u32 s40, s40, s33")
        q.append(f"s_mul_i32 s41, s40, 9216")
        q.append(f"s_lshl_b32 s42, s40, 15")
        for k in range(4):
            q.append(f"s_add_u32 m0, s34, {slot*4096 + k*1024}")
            if k: q.append(f"s_add_u32 s42, s42, 8192")
            else: q.append("s_nop 0")
            q.append(f"buffer_load_dwordx4 v2, s[12:15], s42 offen {fw} lds")
        for t in range(NT):
            if t < 4:
                q.append(f"buffer_load_dwordx4 {ofr(slot,t)}, v6, s[8:11], s41 offen offset:{t*1024} {fo}")
            else:
                q.append(f"buffer_load_dwordx4 {ofr(slot,t)}, v7, s[8:11], s41 offen {fo}")
        return mk("\n".join(q))
    def R_stage(i):
        slot = i % D; buf = i & 1
        q = []
        for T in range(4):
            q.append(f"ds_read_b64_tr_b16 {afr(buf,T,0,2)}, v{8+T} offset:{slot*4096}")
            q.append(f"ds_read_b64_tr_b16 {afr(buf,T,2,2)}, v{8+T} offset:{slot*4096 + 2048}")
        return mk("\n".join(q))
    def M_stage(i):
        slot = i % D; buf = i & 1
        q = []
        for T in range(4):
            for t in range(NT):
                q.append(f"v_mfma_f32_16x16x32_bf16 {acc(T,t)}, {afr(buf,T)}, {ofr(slot,t)}, {acc(T,t)}")
        return mk("\n".join(q))
    N = 32
    for i in range(min(D, N)):
        p.extend(L_stage(i))
    stamp(p, 1, stamps)
    e(f"s_waitcnt vmcnt({NV*(D-1)})")
    stamp(p, 2, stamps)
    p.extend(R_stage(0))
    for i in range(N):
        if i + 1 < N:
            outstanding_after = min(N - 1, i + D - 1) - (i + 1)
            e(f"s_waitcnt vmcnt({NV*outstanding_after})")
            R = R_stage(i + 1)
        else:
            R = []
        M = M_stage(i)
        body = interleave(M, R, 0, len(M) // 2)
        p.extend(body)
        if i + D < N:
            p.extend(L_stage(i + D))
    stamp(p, 3, stamps)
    e("v_lshlrev_b32 v12, 4, v0")
    e("v_add_u32 v13, s34, v12")
    for T in range(4):
        for t in range(NT):
            b = (T * NT + t) * 4
            tmp = 32 + ((T * NT + t) % 8) * 4
            for r in range(4):
                e(f"v_accvgpr_read_b32 v{tmp+r}, a{b+r}")
            e(f"ds_write_b128 v13, v[{tmp}:{tmp+3}] offset:{(T*NT+t)*1024}")
    e("s_waitcnt lgkmcnt(0)")
    e("s_barrier")
    e(f"s_mul_i32 s40, s3, {NT*1024}")
    e("v_add_u32 v12, s40, v12")
    for t in range(NT):
        for w in range(4):
            b = 64 + (t * 4 + w) * 4
            off = w * D * 4096 + t * 1024
            if off < 65536:
                e(f"ds_read_b128 v[{b}:{b+3}], v12 offset:{off}")
            else:
                e(f"v_add_u32 v14, {w*D*4096}, v12")
                e(f"ds_read_b128 v[{b}:{b+3}], v14 offset:{t*1024}")
    e("s_mul_i32 s40, s26, 144")
    e("s_lshl_b32 s41, s36, 4")
    e("s_add_u32 s40, s40, s41")
    e("s_lshl_b32 s40, s40, 11")
    e("s_lshl_b32 s41, s25, 10")
    e("s_add_u32 s40, s40, s41")
    e("s_lshl_b32 s41, s29, 7")
    e("s_add_u32 s40, s40, s41")
    e("s_lshl_b32 s41, s3, 5")
    e("s_add_u32 s40, s40, s41")
    e("v_and_b32 v15, 15, v0")
    e("v_lshlrev_b32 v15, 11, v15")
    e("v_lshrrev_b32 v16, 4, v0")
    e("v_lshl_add_u32 v15, v16, 3, v15")
    e("v_add_u32 v15, s40, v15")
    for t in range(NT):
        b = 64 + t * 16
        for r in range(4):
            e(f"v_add_f32 v{b+r}, v{b+r}, v{b+4+r}")
            e(f"v_add_f32 v{b+8+r}, v{b+8+r}, v{b+12+r}")
        for r in range(4):
            e(f"v_add_f32 v{b+r}, v{b+r}, v{b+8+r}")
        e(f"v_cvt_pk_bf16_f32 v{b}, v{b}, v{b+1}")
        e(f"v_cvt_pk_bf16_f32 v{b+1}, v{b+2}, v{b+3}")
        e(f"s_mov_b32 s41, {t*16*2048}")
        e(f"buffer_store_dwordx2 v[{b}:{b+1}], v15, s[16:19], s41 offen")
    e("s_waitcnt vmcnt(0)")
    stamp(p, 4, stamps)
    stamp_flush(p, 5, stamps and f"{L}_st{NT}")

def kd(name, vgpr=512, acc=256):
    return f""".section .rodata,"a"
.p2align 6
.amdhsa_kernel {name}
  .amdhsa_next_free_vgpr {vgpr}
  .amdhsa_next_free_sgpr 102
  .amdhsa_accum_offset {acc}
  .amdhsa_group_segment_fixed_size 0
  .amdhsa_kernarg_size 104
  .amdhsa_user_sgpr_count 2
  .amdhsa_user_sgpr_kernarg_segment_ptr 1
  .amdhsa_system_sgpr_workgroup_id_x 1
.end_amdhsa_kernel
.text
"""

def finalize(p, name):
    ins = insert_lgkm(p.ins, strict=False)
    ins, n = fix_hazards(ins)
    head = f".globl {name}\n.p2align 8\n.type {name},@function\n{name}:\n"
    return head + render(ins), n

if __name__ == "__main__":
    import sys
    p = gen_k2("k2_kernel", stamps=len(sys.argv) > 1)
    txt, n = finalize(p, "k2_kernel")
    print("nops inserted", n, "instrs", len(p))
    open("k2_only.s", "w").write("; @launch kernel=k2_kernel grid=(256,1,1) block=(256,1,1) lds=131072\n.amdgcn_target \"amdgcn-amd-amdhsa--gfx950\"\n.text\n" + txt + kd("k2_kernel"))
```

```python
import sys
from gen_k1 import gen_k1
from gen_k2 import gen_k2, kd, finalize
HEADER = open("concat_heads__gqa_block_cached__mha_block_cached__near_ridge.s.ref").read().split("; Override launch")[0]
import gen_k2 as G2
def build(out, stamps=False, dbg=False, **kw):
    if dbg: G2.DBG_MODE[0] = (512, 0)
    k1 = gen_k1("attn_kernel", stamps=stamps or dbg, **kw.get("k1", {}))
    if dbg: G2.DBG_MODE[0] = (0, 8)
    k2 = gen_k2("oproj_kernel", stamps=dbg, **kw.get("k2", {}))
    G2.DBG_MODE[0] = None
    t1, n1 = finalize(k1, "attn_kernel")
    t2, n2 = finalize(k2, "oproj_kernel")
    s = HEADER
    s += "; @launch kernel=attn_kernel grid=(256,1,1) block=(256,1,1) lds=163840\n"
    s += "; @launch kernel=oproj_kernel grid=(256,1,1) block=(256,1,1) lds=131072\n"
    s += '.amdgcn_target "amdgcn-amd-amdhsa--gfx950"\n.text\n'
    s += t1 + kd("attn_kernel") + t2 + kd("oproj_kernel")
    open(out, "w").write(s)
    print(out, "nops", n1, n2, "bytes", len(s))
if __name__ == "__main__":
    build("concat_heads__gqa_block_cached__mha_block_cached__near_ridge.s")
    build("v_dbg.s", dbg=True)
    build("v_osc1.s", k1=dict(oflags="sc1"))
    build("v_ont.s", k1=dict(oflags="nt"))
    build("v_kvdef.s", k1=dict(kvflags=""))
```

```python
import re

TRANS = ("v_exp_f32", "v_log_f32", "v_rcp_f32", "v_rsq_f32", "v_sqrt_f32", "v_sin_f32", "v_cos_f32", "v_rcp_iflag_f32")

def parse_reg(tok):
    t = tok.strip()
    t = t.lstrip("-")
    if t.startswith("|") and t.endswith("|"):
        t = t[1:-1]
    if t.startswith("abs(") and t.endswith(")"):
        t = t[4:-1]
    m = re.fullmatch(r"([vas])(\d+)", t)
    if m:
        return [(m.group(1), int(m.group(2)))]
    m = re.fullmatch(r"([vas])\[(\d+):(\d+)\]", t)
    if m:
        return [(m.group(1), i) for i in range(int(m.group(2)), int(m.group(3)) + 1)]
    if t == "vcc":
        return [("s", 106), ("s", 107)]
    if t == "vcc_lo":
        return [("s", 106)]
    if t == "vcc_hi":
        return [("s", 107)]
    if t == "m0":
        return [("m", 0)]
    if t == "exec":
        return [("e", 0)]
    return []

class I:
    __slots__ = ("text", "op", "kind", "dst", "src", "ops", "label", "target", "passes", "srcC", "nopn", "tag")
    def __init__(self, text, tag=None):
        self.text = text
        self.tag = tag
        self.label = None
        self.target = None
        self.dst = []
        self.src = []
        self.srcC = []
        self.passes = 0
        self.nopn = 0
        s = text.split(";")[0].strip()
        if not s:
            self.kind = "empty"; self.op = ""; self.ops = []; return
        if s.endswith(":"):
            self.kind = "label"; self.label = s[:-1]; self.op = ""; self.ops = []; return
        if s.startswith("."):
            self.kind = "directive"; self.op = s.split()[0]; self.ops = []; return
        parts = s.split(None, 1)
        self.op = op = parts[0]
        rest = parts[1] if len(parts) > 1 else ""
        ops = [o.strip() for o in re.split(r",(?![^\[]*\])", rest)] if rest else []
        mods = []
        if ops:
            last = ops[-1].split()
            if len(last) > 1:
                ops[-1] = last[0]
                mods = last[1:]
        self.ops = ops
        R = [parse_reg(o) for o in ops]
        if op.startswith("v_mfma"):
            self.kind = "mfma"
            self.dst = R[0]; self.src = R[1] + R[2] + R[3]; self.srcC = R[3]
            if "16x16x32" in op or "16x16x16" in op: self.passes = 4
            elif "32x32x16" in op or "32x32x8" in op: self.passes = 8
            elif "4x4x4" in op: self.passes = 2
            else: raise ValueError("unknown mfma " + op)
        elif op.startswith("v_"):
            self.kind = "valu"
            base = op.replace("_e32", "").replace("_e64", "")
            if base in TRANS: self.kind = "trans"
            if op.startswith("v_cmp"):
                self.dst = R[0]; self.src = sum(R[1:], [])
                if op.startswith("v_cmpx"): self.dst = self.dst + [("e", 0)]
            elif op.startswith("v_permlane") and "swap" in op:
                self.dst = R[0] + R[1]; self.src = R[0] + R[1]
            elif op.startswith(("v_add_co", "v_sub_co", "v_addc_co", "v_subb_co")):
                self.dst = R[0] + R[1]; self.src = sum(R[2:], [])
            elif op.startswith(("v_fmac", "v_pk_fmac", "v_dot2c")):
                self.dst = R[0]; self.src = sum(R, [])
            elif op.startswith("v_writelane"):
                self.dst = R[0]; self.src = sum(R, [])
            else:
                self.dst = R[0]; self.src = sum(R[1:], [])
                if op.startswith("v_cndmask") and len(ops) == 3:
                    self.src = self.src + [("s", 106), ("s", 107)]
        elif op.startswith("ds_read") or op.startswith("ds_bpermute") or op.startswith("ds_swizzle") or op.startswith("ds_permute"):
            self.kind = "ds_read"; self.dst = R[0]; self.src = sum(R[1:], [])
        elif op.startswith("ds_write") or op.startswith("ds_add") or op.startswith("ds_or") or op.startswith("ds_max"):
            self.kind = "ds_write"; self.src = sum(R, [])
        elif op.startswith("buffer_load") or op.startswith("global_load"):
            if "lds" in mods or "_lds_" in op:
                self.kind = "dma"; self.src = sum(R, []) + [("m", 0)]
            else:
                self.kind = "vload"; self.dst = R[0]; self.src = sum(R[1:], [])
        elif op.startswith("buffer_store") or op.startswith("global_store"):
            self.kind = "vstore"; self.src = sum(R, [])
            if op.startswith("buffer_store"): self.tag = self.tag
        elif op.startswith("buffer_atomic") or op.startswith("global_atomic"):
            self.kind = "vatomic"; self.src = sum(R, [])
            if "sc0" in mods: self.dst = R[0]
        elif op in ("buffer_wbl2", "buffer_inv"):
            self.kind = "vcache"
        elif op == "s_nop":
            self.kind = "nop"; self.nopn = int(ops[0], 0) + 1
        elif op == "s_waitcnt":
            self.kind = "waitcnt"
        elif op == "s_barrier":
            self.kind = "barrier"
        elif op in ("s_branch",) or op.startswith("s_cbranch"):
            self.kind = "branch"; self.target = ops[0]
        elif op == "s_endpgm":
            self.kind = "end"
        elif op.startswith("s_load") or op.startswith("s_memtime") or op.startswith("s_memrealtime"):
            self.kind = "smem"; self.dst = R[0]; self.src = sum(R[1:], [])
        elif op.startswith("s_"):
            self.kind = "salu"
            if op in ("s_getpc_b64", "s_getreg_b32"):
                self.dst = R[0]
            elif op.startswith("s_cmp") or op.startswith("s_bitcmp") or op in ("s_setprio", "s_sleep", "s_setreg_b32", "s_setreg_imm32_b32"):
                self.src = sum(R, [])
            elif "saveexec" in op:
                self.dst = R[0] + [("e", 0)]; self.src = sum(R[1:], []) + [("e", 0)]
            else:
                self.dst = R[0] if R else []; self.src = sum(R[1:], [])
                if op in ("s_addk_i32", "s_mulk_i32", "s_cmov_b32"):
                    self.src = self.src + R[0]
        else:
            raise ValueError("unknown instr: " + text)
    def states(self):
        if self.kind in ("label", "empty", "directive"): return 0
        if self.kind == "nop": return self.nopn
        return 1
    def store_data(self):
        if self.kind == "vstore" and ("x4" in self.op or "x3" in self.op):
            if self.op.startswith("buffer_store"): return parse_reg(self.ops[0])
            return parse_reg(self.ops[1])
        return []

def vgprs(l):
    return set(r for r in l if r[0] in "va")

def required_wait(prod, cons):
    need = 0
    pd = set(prod.dst); cs = set(cons.src); cd = set(cons.dst)
    is_valu_c = cons.kind in ("valu", "trans")
    is_valu_p = prod.kind in ("valu", "trans")
    if is_valu_p and cons.kind == "mfma" and (vgprs(pd) & cs):
        need = max(need, 2)
    if prod.kind == "mfma":
        P = prod.passes
        rd = {2: 5, 4: 8, 8: 12, 16: 20}[P]
        if cons.kind == "mfma":
            c = set(cons.srcC)
            ab = cs - c if False else set(parse_reg(cons.ops[1]) + parse_reg(cons.ops[2]))
            if pd & ab: need = max(need, rd)
            if pd & c:
                if set(prod.dst) == c and prod.passes == cons.passes:
                    need = max(need, 2 if P == 2 else 0)
                else:
                    need = max(need, {2: 4, 4: 6, 8: 10, 16: 18}[P])
            if (pd & cd) and not (pd & c):
                need = max(need, {2: 4, 4: 6, 8: 10, 16: 18}[P])
        elif is_valu_c:
            if pd & (cs | cd): need = max(need, rd)
            if set(prod.srcC) & cd: need = max(need, {2: 1, 4: 3, 8: 7, 16: 15}[P])
        elif cons.kind in ("ds_read", "ds_write", "vload", "vstore", "dma", "vatomic"):
            if pd & (cs | cd): need = max(need, rd)
            if set(prod.srcC) & cd: need = max(need, {2: 1, 4: 3, 8: 7, 16: 15}[P])
    if prod.kind == "trans" and cons.kind == "valu" and (pd & cs):
        need = max(need, 1)
    if prod.kind == "trans" and cons.kind == "trans" and (pd & cs):
        need = max(need, 1)
    if is_valu_p:
        sd = set(r for r in pd if r[0] == "s")
        if sd:
            if cons.kind in ("vload", "vstore", "dma", "vatomic") and (sd & cs): need = max(need, 5)
            if is_valu_c and (sd & cs):
                need = max(need, 4 if cons.op.startswith(("v_readlane", "v_writelane")) else 2)
            if cons.kind in ("salu", "branch", "smem") and (sd & cs): need = max(need, 4)
            if cons.kind == "branch" and cons.op in ("s_cbranch_vccz", "s_cbranch_vccnz") and (("s", 106) in sd): need = max(need, 5)
        if (vgprs(pd) & cs):
            if cons.op.startswith(("v_readfirstlane", "v_readlane")): need = max(need, 1)
            if cons.op.startswith("v_permlane"): need = max(need, 2)
            if "dpp" in cons.text or "row_" in cons.text or "quad_perm" in cons.text: need = max(need, 2)
        if ("e", 0) in pd and (is_valu_c or cons.kind == "mfma"): need = max(need, 5)
    if prod.kind == "salu":
        if ("m", 0) in pd and cons.kind == "dma": need = max(need, 1)
        if ("e", 0) in pd and ("dpp" in cons.text or "row_" in cons.text): need = max(need, 5)
    sdat = prod.store_data()
    if sdat and (set(sdat) & cd):
        need = max(need, 2 if is_valu_c else 1)
    return need

class Prog:
    def __init__(self):
        self.ins = []
    def e(self, text, tag=None):
        for line in text.split("\n"):
            if line.strip():
                self.ins.append(I(line.strip(), tag))
    def extend(self, other):
        self.ins.extend(other.ins if isinstance(other, Prog) else other)
    def __len__(self):
        return len(self.ins)

def mk(text):
    p = Prog(); p.e(text); return p.ins

def insert_lgkm(ins, strict=True):
    out = []
    pend = []
    smem_pending = False
    for i in ins:
        if i.kind == "waitcnt":
            m = re.search(r"lgkmcnt\((\d+)\)", i.text)
            if m:
                n = int(m.group(1))
                if n == 0:
                    pend = []; smem_pending = False
                elif not smem_pending:
                    pend = pend[len(pend) - n:] if n < len(pend) else pend
            out.append(i); continue
        if i.kind in ("label", "branch", "end"):
            live = [p for p in pend if p]
            if (live or smem_pending) and strict and i.tag != "ok_pending":
                raise RuntimeError("pending LDS reads at control-flow point: " + i.text + " pend=" + str(live))
            out.append(i); continue
        touched = set(i.src) | set(i.dst)
        if smem_pending and (touched & smem_regs):
            out.append(I("s_waitcnt lgkmcnt(0)")); pend = []; smem_pending = False
        k = -1
        for j, d in enumerate(pend):
            if d & touched: k = j
        if k >= 0:
            n = len(pend) - 1 - k
            if smem_pending: n = 0
            out.append(I(f"s_waitcnt lgkmcnt({min(n, 15)})"))
            if n > 15: raise RuntimeError("lgkm >15")
            pend = pend[k + 1:]
            if n == 0: smem_pending = False
        if i.kind in ("ds_read", "ds_write") and len(pend) >= 15 and not smem_pending:
            out.append(I("s_waitcnt lgkmcnt(7)")); pend = pend[len(pend) - 7:]
        if i.kind == "ds_read":
            pend.append(set(i.dst))
        elif i.kind == "ds_write":
            pend.append(set())
        elif i.kind == "smem":
            if not smem_pending: smem_regs = set()
            smem_pending = True
            smem_regs |= set(i.dst)
        if len(pend) > 15:
            pass
        out.append(i)
    return out

def fix_hazards(ins, maxlook=24, verbose=False):
    ins = list(ins)
    total = 0
    def maps():
        labels = {i.label: n for n, i in enumerate(ins) if i.kind == "label"}
        jumpers = {}
        for n, i in enumerate(ins):
            if i.kind == "branch":
                jumpers.setdefault(labels[i.target], []).append(n)
        return jumpers
    for rnd in range(10):
        changed = False
        jumpers = maps()
        n = 0
        while n < len(ins):
            c = ins[n]
            if c.kind in ("label", "empty", "directive", "nop", "waitcnt", "barrier", "end"):
                n += 1; continue
            need_add = 0
            stack = [(n, 0)]
            seen = {}
            while stack:
                pos, dist = stack.pop()
                preds = []
                if pos > 0:
                    pv = ins[pos - 1]
                    if not (pv.kind == "end" or (pv.kind == "branch" and pv.op == "s_branch")):
                        preds.append(pos - 1)
                if ins[pos].kind == "label":
                    preds += jumpers.get(pos, [])
                for p in preds:
                    pi = ins[p]
                    if pi.kind not in ("label", "empty", "directive", "nop", "waitcnt", "barrier"):
                        w = required_wait(pi, c)
                        if w > dist:
                            need_add = max(need_add, w - dist)
                    d2 = dist + pi.states()
                    if d2 < maxlook and seen.get(p, 10**9) > d2:
                        seen[p] = d2
                        stack.append((p, d2))
            if need_add:
                k = need_add
                total += k
                if verbose: print("nop", k, "before", c.text)
                nops = []
                while k > 0:
                    t = min(k, 16); nops.append(I(f"s_nop {t - 1}", "hz")); k -= t
                ins[n:n] = nops
                n += len(nops)
                jumpers = maps()
                changed = True
            n += 1
        if not changed:
            break
    return ins, total

def _flat(x):
    out = []
    for i in x:
        if isinstance(i, list): out.extend(_flat(i))
        else: out.append(i)
    return out

def interleave(main, fill, start=0, end=None, keep_groups=False):
    if end is None: end = len(main)
    end = min(end, len(main))
    out = list(main[:start])
    n = end - start
    if n <= 0:
        r = out + list(fill) + list(main[end:])
        return r if keep_groups else _flat(r)
    k = 0
    for j in range(n):
        out.append(main[start + j])
        tgt = (j + 1) * len(fill) // n
        while k < tgt:
            out.append(fill[k]); k += 1
    out += fill[k:]
    out += main[end:]
    return out if keep_groups else _flat(out)

def merge_fills(*fills):
    fills = [f for f in fills if f]
    tot = sum(len(f) for f in fills)
    pos = [0] * len(fills)
    out = []
    for step in range(tot):
        best = min(range(len(fills)), key=lambda a: (pos[a] + 0.5) / len(fills[a]) if pos[a] < len(fills[a]) else 9)
        out.append(fills[best][pos[best]]); pos[best] += 1
    return out

def render(ins):
    lines = []
    for i in ins:
        if i.kind in ("label", "directive"): lines.append(i.text)
        else: lines.append("  " + i.text)
    return "\n".join(lines) + "\n"
```

```python
from asmlib import *
from gen_k2 import stamp, stamp_flush, kd, finalize
import struct

def fbits(x): return struct.unpack("<I", struct.pack("<f", x))[0]
CSCALE = 1.4426950408889634 / (128 ** 0.5)
L_LO = 2.0 ** -64
L_HI = 2.0 ** 16

XS = [0, 18432]
WS0 = 36864
SLOT = 32768
QX = 106496
KM1 = 16384

V_DK = [1, 2]; V_DV = [3, 4]
V_KA = [5, 6, 7, 8]
V_VA = list(range(9, 17))
V_DW = [205, 206, 207, 208]; V_DX = [200, 201, 202, 203, 204]
V_XA = [19, 20]; V_XT = [21, 22]
V_WA = [23, 24, 25, 26]
V_ONES = 28
V_O = 32
V_OT = 160
V_S = 192; V_P = 216; V_NM = 236
def vq(b, n=4): return f"v[{b}:{b+n-1}]"
def aq(b, n=4): return f"a[{b}:{b+n-1}]"
def O_(T, qt): return V_O + (T * 4 + qt) * 4 if qt < 4 else V_OT + T * 4
def S_(buf, kt): return V_S + buf * 8 + kt * 4
def P_(qt): return V_P + qt * 4
def NM_(qt): return V_NM + qt * 4
A_Q = 0
def Q_(qt, u): return A_Q + (qt * 4 + u) * 4 if qt < 4 else 64 + u * 4
A_L = 80
def L_(qt): return A_L + qt * 4
A_K = 100
def K_(buf, kt, u): return A_K + buf * 32 + (kt * 4 + u) * 4
A_V = 164
def Vf(buf, T): return A_V + buf * 32 + T * 4
A_FR = 128
def FA(buf, T): return A_FR + buf * 52 + T * 4
def FB(buf, qt): return A_FR + buf * 52 + 32 + qt * 4

S_X = "s[4:7]"; S_WQ = "s[8:11]"; S_K = "s[12:15]"; S_V = "s[16:19]"; S_OW = "s[20:23]"

class K1:
    def __init__(self, name, mapping="M1", kvflags="nt", wflags="", oflags="", stamps=False, rot=4, lead=2, bursts=(2, 4), exp=""):
        self.exp = exp
        self.name = name; self.mapping = mapping; self.kvflags = kvflags; self.wflags = wflags; self.oflags = oflags
        self.stamps = stamps; self.rot = rot; self.lead = lead; self.bursts = bursts
        self.p = Prog(); self.uid = 0
    def lab(self, t):
        self.uid += 1
        return f"{self.name}_{t}{self.uid}"
    def g_W(self, slot):
        gs = [mk(f"s_add_u32 m0, s38, {WS0 + slot*16384}")
              + mk(f"buffer_load_dwordx4 v{V_DW[0]}, {S_WQ}, s44 offen {self.wflags} lds")]
        gs[0].insert(1, mk("s_nop 0")[0])
        for k in range(1, 4):
            gs.append(mk(f"buffer_load_dwordx4 v{V_DW[k]}, {S_WQ}, s44 offen offset:{k*1024} {self.wflags} lds"))
        gs[-1] = gs[-1] + mk("s_add_u32 s44, s44, 0x40000\ns_and_b32 s44, s44, 0x3fffff")
        return gs
    def g_X(self, slot):
        gs = [mk(f"s_add_u32 m0, s45, {XS[slot]}\ns_nop 0\nbuffer_load_dwordx4 v{V_DX[0]}, {S_X}, s46 offen {self.wflags} lds")]
        for k in range(1, 4):
            gs.append(mk(f"buffer_load_dwordx4 v{V_DX[k]}, {S_X}, s46 offen offset:{k*1024} {self.wflags} lds"))
        l = self.lab("x5")
        gs.append(mk(f"s_cbranch_vccz {l}\ns_add_u32 m0, s45, {XS[slot] + 4096}\ns_nop 0\n"
                     f"buffer_load_dwordx4 v{V_DX[4]}, {S_X}, s46 offen {self.wflags} lds\n{l}:\n"
                     f"s_add_u32 s46, s46, 128\ns_and_b32 s46, s46, 1023"))
        return gs
    def g_KV(self, region, slot_expr, tile_expr):
        isK = region < 2
        srd = S_K if isK else S_V
        vo = V_DK if isK else V_DV
        return mk(f"s_add_u32 m0, {slot_expr[0]}, {slot_expr[1] + region*8192}\n"
                  f"s_add_u32 s37, {tile_expr[0]}, {tile_expr[1] + (region & 1)*131072}\n"
                  f"buffer_load_dwordx4 v{vo[0]}, {srd}, s37 offen {self.kvflags} lds\n"
                  f"buffer_load_dwordx4 v{vo[1]}, {srd}, s37 offen offset:1024 {self.kvflags} lds")
    def guard(self, group, cmp):
        l = self.lab("g")
        return mk(f"{cmp}\ns_cbranch_scc0 {l}") + group + mk(f"{l}:")
    def bundle_static(self, j, parts="KV"):
        gs = []
        slot = ((j + 4) % 5) * SLOT + (KM1 if j == -1 else 0)
        if "K" in parts and j + 1 <= 15:
            gs += [self.g_KV(r, ("s39", slot), ("s40", (j + 1) * 8192)) for r in (0, 1)]
        if "V" in parts and j >= 0:
            gs += [self.g_KV(r, ("s39", slot), ("s40", j * 8192)) for r in (2, 3)]
        return gs

    def gen(self):
        p = self.p; e = p.e; L = self.name; stamps = self.stamps; rot = self.rot; lead = self.lead
        e("s_cmp_ge_u32 s2, 256")
        e(f"s_cbranch_scc1 {L}_done")
        stamp(p, 0, stamps)
        e("s_load_dwordx8 s[36:43], s[0:1], 0")
        e("s_load_dwordx8 s[44:51], s[0:1], 40")
        e("s_load_dwordx2 s[54:55], s[0:1], 96")
        e("v_lshrrev_b32 v27, 6, v0")
        e("v_and_b32 v0, 63, v0")
        e("v_readfirstlane_b32 s3, v27")
        e("s_and_b32 s52, s2, 7")
        e("s_lshr_b32 s27, s52, 2")
        if self.mapping == "M1":
            e("s_lshr_b32 s28, s2, 5")
            e("s_bfe_u32 s53, s2, 0x20003")
            e("s_and_b32 s52, s52, 3")
            e("s_lshl_b32 s29, s52, 3")
            e("s_lshl_b32 s56, s53, 1")
            e("s_add_u32 s29, s29, s56")
            e("s_mov_b32 s56, s28")
        elif self.mapping == "M4":
            e("s_lshr_b32 s56, s2, 3")
            e("s_and_b32 s53, s56, 7")
            e("s_lshr_b32 s56, s56, 3")
            e("s_and_b32 s57, s52, 1")
            e("s_lshl_b32 s28, s57, 2")
            e("s_add_u32 s28, s28, s56")
            e("s_bfe_u32 s57, s52, 0x10001")
            e("s_lshl_b32 s29, s57, 4")
            e("s_lshl_b32 s57, s53, 1")
            e("s_add_u32 s29, s29, s57")
        elif self.mapping == "M2":
            e("s_lshr_b32 s56, s2, 3")
            e("s_and_b32 s53, s56, 15")
            e("s_lshr_b32 s56, s56, 4")
            e("s_and_b32 s57, s52, 3")
            e("s_lshl_b32 s28, s57, 1")
            e("s_add_u32 s28, s28, s56")
            e("s_lshl_b32 s29, s53, 1")
        if rot == 8:
            e("s_lshl_b32 s26, s56, 1\ns_lshl_b32 s57, s53, 2\ns_add_u32 s26, s26, s57\ns_and_b32 s26, s26, 14")
        elif rot == 4:
            e("s_add_u32 s26, s56, s53\ns_and_b32 s26, s26, 3\ns_lshl_b32 s26, s26, 2")
        elif rot == 2:
            e("s_add_u32 s26, s56, s53\ns_and_b32 s26, s26, 1\ns_lshl_b32 s26, s26, 3")
        else:
            e("s_mov_b32 s26, 0")
        e("s_and_b32 s24, s3, 1")
        e("s_lshr_b32 s25, s3, 1")
        e("v_lshrrev_b32 v27, 5, v0")
        e("s_lshl_b32 s52, s3, 3")
        e("v_add_u32 v27, s52, v27")
        e("v_and_b32 v30, 31, v0")
        for k in range(4):
            e(f"v_add_u32 v28, {2*k}, v27")
            e("v_and_b32 v29, 3, v28")
            e("v_lshlrev_b32 v29, 2, v29")
            e("v_xor_b32 v29, v29, v30")
            e("v_lshlrev_b32 v29, 4, v29")
            e(f"v_lshl_add_u32 v{V_DW[k]}, v28, 13, v29")
            if k: e(f"v_subrev_u32 v{V_DW[k]}, {k*1024}, v{V_DW[k]}")
        e("s_mul_i32 s52, s3, 5\ns_cmp_eq_u32 s3, 3\ns_cselect_b32 s53, 1, 0\ns_sub_u32 s52, s52, s53")
        e("s_lshl_b32 s57, s52, 10")
        e("s_lshl_b32 s52, s52, 3")
        e("v_lshrrev_b32 v27, 3, v0")
        e("v_add_u32 v27, s52, v27")
        e("v_and_b32 v30, 7, v0")
        for k in range(5):
            e(f"v_add_u32 v28, {8*k}, v27")
            e("v_lshrrev_b32 v29, 1, v28")
            e("v_and_b32 v29, 7, v29")
            e("v_xor_b32 v29, v29, v30")
            e("v_lshlrev_b32 v29, 4, v29")
            e(f"v_lshl_add_u32 v{V_DX[k]}, v28, 10, v29")
            if 0 < k < 4: e(f"v_subrev_u32 v{V_DX[k]}, {k*1024}, v{V_DX[k]}")
        e("s_cmp_lt_u32 s3, 2")
        e("s_cselect_b64 vcc, -1, 0")
        e("s_waitcnt lgkmcnt(0)")
        e("s_cmp_eq_u32 s27, 0")
        e("s_cselect_b32 s4, s36, s44\ns_cselect_b32 s5, s37, s45")
        e("s_cselect_b32 s12, s38, s46\ns_cselect_b32 s13, s39, s47")
        e("s_cselect_b32 s16, s40, s48\ns_cselect_b32 s17, s41, s49")
        e("s_cselect_b32 s8, s42, s50\ns_cselect_b32 s9, s43, s51")
        e("s_lshl_b32 s39, s3, 11\ns_lshl_b32 s40, s25, 12")
        e("s_mul_i32 s52, s28, 147456")
        e("s_add_u32 s4, s4, s52\ns_addc_u32 s5, s5, 0\ns_mov_b32 s6, 147456\ns_mov_b32 s7, 0x20000")
        e("s_lshl_b32 s52, s29, 8")
        e("s_add_u32 s8, s8, s52\ns_addc_u32 s9, s9, 0\ns_sub_u32 s10, 0x400000, s52\ns_mov_b32 s11, 0x20000")
        e("s_lshl_b32 s38, s3, 12")
        e("s_mov_b32 s45, s57")
        e("s_lshl_b32 s46, s26, 6")
        e("s_lshl_b32 s44, s26, 18")
        for g in self.g_X(0): p.extend(g)
        for g in self.g_W(0): p.extend(g)
        stamp(p, 1, stamps)
        e("s_lshl_b32 s52, s28, 5\ns_add_u32 s52, s52, s29")
        e("s_lshr_b32 s53, s52, 15\ns_lshl_b32 s52, s52, 17")
        e("s_add_u32 s12, s12, s52\ns_addc_u32 s13, s13, s53\ns_mov_b32 s14, 262144\ns_mov_b32 s15, 0x20000")
        e("s_add_u32 s16, s16, s52\ns_addc_u32 s17, s17, s53\ns_mov_b32 s18, 262144\ns_mov_b32 s19, 0x20000")
        e("s_lshl_b32 s52, s27, 3\ns_add_u32 s52, s52, s28\ns_mul_i32 s52, s52, 1179648")
        e("s_add_u32 s20, s54, s52\ns_addc_u32 s21, s55, 0\ns_mov_b32 s22, 1179648\ns_mov_b32 s23, 0x20000")
        e("v_lshrrev_b32 v27, 4, v0")
        e("s_lshl_b32 s52, s24, 3")
        e("v_add_u32 v27, s52, v27")
        e("v_and_b32 v30, 15, v0")
        for ii in range(2):
            e(f"v_add_u32 v29, {4*ii}, v27")
            e(f"v_xor_b32 v31, v29, v30")
            e(f"v_lshlrev_b32 v31, 4, v31")
            e(f"v_lshl_add_u32 v{V_DK[ii]}, v27, 8, v31")
            e(f"v_and_b32 v29, 7, v29")
            e(f"v_lshlrev_b32 v29, 1, v29")
            e(f"v_xor_b32 v31, v29, v30")
            e(f"v_lshlrev_b32 v31, 4, v31")
            e(f"v_lshl_add_u32 v{V_DV[ii]}, v27, 8, v31")
        e("v_and_b32 v27, 15, v0")
        e("v_lshrrev_b32 v28, 4, v0")
        e("v_lshrrev_b32 v29, 1, v27")
        e("v_xor_b32 v29, v29, v28")
        e("s_lshl_b32 s52, s24, 13")
        e("v_lshlrev_b32 v30, 7, v27")
        e("v_add_u32 v30, s52, v30")
        for sp in range(2):
            e(f"v_xor_b32 v31, {4*sp}, v29")
            e(f"v_lshl_add_u32 v{V_XA[sp]}, v31, 4, v30")
        e("s_sub_u32 s52, 16384, s52")
        for sp in range(2):
            e(f"v_add_u32 v{V_XT[sp]}, s52, v{V_XA[sp]}")
        e("v_bfe_u32 v29, v0, 2, 2")
        e("v_lshl_add_u32 v30, v28, 3, v29")
        e("v_lshlrev_b32 v30, 9, v30")
        e(f"v_add_u32 v30, {WS0}, v30")
        e("v_lshlrev_b32 v29, 2, v29")
        e("v_and_b32 v31, 3, v0")
        e("v_xor_b32 v29, v29, v31")
        e("s_lshl_b32 s52, s25, 4\ns_lshl_b32 s53, s24, 3\ns_or_b32 s52, s52, s53")
        e("v_xor_b32 v29, s52, v29")
        for u in range(4):
            e(f"v_xor_b32 v31, {4*u}, v29")
            e(f"v_lshl_add_u32 v{V_WA[u]}, v31, 4, v30")
        e("v_xor_b32 v29, v27, v28")
        e("s_lshl_b32 s53, s24, 3")
        e("v_xor_b32 v29, s53, v29")
        e("s_lshl_b32 s52, s25, 13")
        e(f"s_add_u32 s52, s52, {3*SLOT}")
        e("v_lshlrev_b32 v30, 8, v27")
        e("v_add_u32 v30, s52, v30")
        for u in range(4):
            e(f"v_xor_b32 v31, {4*u}, v29")
            e(f"v_lshl_add_u32 v{V_KA[u]}, v31, 4, v30")
        e("v_bfe_u32 v29, v0, 2, 2")
        e("v_lshl_add_u32 v29, v28, 2, v29")
        e("v_lshlrev_b32 v30, 8, v29")
        e("v_and_b32 v31, 1, v0")
        e("v_lshl_add_u32 v30, v31, 3, v30")
        e("s_lshl_b32 s52, s25, 13")
        e(f"s_add_u32 s52, s52, {3*SLOT + 16384}")
        e("v_add_u32 v30, s52, v30")
        e("v_and_b32 v29, 7, v29")
        e("v_lshlrev_b32 v29, 1, v29")
        e("v_bfe_u32 v31, v0, 1, 1")
        e("v_xor_b32 v29, v29, v31")
        e("s_lshl_b32 s53, s24, 3")
        e("v_xor_b32 v29, s53, v29")
        for T in range(8):
            e(f"v_xor_b32 v31, {2*T}, v29")
            e(f"v_lshl_add_u32 v{V_VA[T]}, v31, 4, v30")
        for r in range(V_O, V_O + 144):
            e(f"v_mov_b32 v{r}, 0")
        for g in self.g_W(1): p.extend(g)

        def rdQ(buf, ks):
            q = []
            wo = (ks % 4) * 16384
            xo = XS[(ks // 2) % 2]
            sp = ks & 1
            for T in range(8):
                u = T >> 1
                q.append(f"ds_read_b64_tr_b16 {aq(FA(buf,T),2)}, v{V_WA[u]} offset:{wo + 8*(T&1)}")
                q.append(f"ds_read_b64_tr_b16 {aq(FA(buf,T)+2,2)}, v{V_WA[u]} offset:{wo + 8*(T&1)+2048}")
            for qt in range(4):
                q.append(f"ds_read_b128 {aq(FB(buf,qt))}, v{V_XA[sp]} offset:{xo + qt*2048}")
            q.append(f"ds_read_b128 {aq(FB(buf,4))}, v{V_XT[sp]} offset:{xo}")
            return mk("\n".join(q))
        def mmQ(buf):
            q = []
            for T in range(8):
                for qt in range(4):
                    q.append(f"v_mfma_f32_16x16x32_bf16 {vq(O_(T,qt))}, {aq(FA(buf,T))}, {aq(FB(buf,qt))}, {vq(O_(T,qt))}")
                if T < 4:
                    q.append(f"v_mfma_f32_16x16x32_bf16 {vq(V_OT+T*4)}, {aq(FA(buf,T))}, {aq(FB(buf,4))}, {vq(V_OT+T*4)}")
            return mk("\n".join(q))
        X = self.exp
        def qbody(s_, wait, dmas):
            if "trQ" in X: e("s_memtime s[92:93]")
            if wait is not None: e(f"s_waitcnt vmcnt({wait}) lgkmcnt(0)")
            else: e("s_waitcnt lgkmcnt(0)")
            if "trQ" in X:
                e("s_memtime s[94:95]")
            e("s_barrier")
            if "trQ" in X:
                e("s_waitcnt lgkmcnt(0)")
                e("s_mov_b32 m0, s96\ns_nop 3\nv_writelane_b32 v17, s92, m0\ns_add_u32 m0, s96, 1\ns_nop 3\nv_writelane_b32 v17, s94, m0\ns_add_u32 s96, s96, 2")
            rd = rdQ((s_ + 1) & 1, (s_ + 1) % 4 + (4 if (s_ + 1) % 4 < 0 else 0)) if (s_ < 15 and "noread" not in X) else []
            if "nodma" in X: dmas = []
            fill = merge_fills(rd, dmas)
            p.extend(interleave(mmQ(s_ & 1) if "nomfma" not in X else mk("s_nop 0"), fill, 0, 27))
        e("s_waitcnt vmcnt(4)")
        e("s_barrier")
        p.extend(rdQ(0, 0))
        for g in self.g_X(1) + self.g_W(2) + self.g_W(3): p.extend(g)
        stamp(p, 2, stamps)
        e("s_mov_b32 s30, 0")
        if "trQ" in X: e("s_mov_b32 s96, 0\nv_mov_b32 v17, 0")
        e(f"{L}_qloop:")
        waits = [12, 4, 12, 4]
        for k in range(4):
            d = self.g_W(k)
            if k & 1: d = d + self.g_X(((k - 1) // 2) % 2)
            qbody(k, waits[k] if "nodma" not in X else None, d)
        e("s_add_u32 s30, s30, 1")
        e("s_cmp_lt_u32 s30, 3")
        e(f"s_cbranch_scc1 {L}_qloop")
        qbody(12, 16, self.bundle_static(-1))
        qbody(13, 4, self.bundle_static(0))
        qbody(14, 16, [])
        qbody(15, None, self.bundle_static(1))
        e("s_waitcnt lgkmcnt(0)")
        stamp(p, 3, stamps)

        e(f"s_mov_b32 s48, {fbits(CSCALE):#x}\ns_mov_b32 s49, {fbits(CSCALE):#x}")
        T0 = 176
        k = 0
        for qt in (4, 0, 1, 2, 3):
            for u in range(4 if qt < 4 else 2):
                t = T0 + (k % 4) * 4; k += 1
                for h in range(2):
                    src = O_(2*u+h, qt) if qt < 4 else V_OT + (2*u+h)*4
                    e(f"v_pk_mul_f32 {vq(src,2)}, {vq(src,2)}, s[48:49]")
                    e(f"v_pk_mul_f32 {vq(src+2,2)}, {vq(src+2,2)}, s[48:49]")
                    e(f"v_cvt_pk_bf16_f32 v{t+2*h}, v{src}, v{src+1}")
                    e(f"v_cvt_pk_bf16_f32 v{t+2*h+1}, v{src+2}, v{src+3}")
                for r in range(4): e(f"v_accvgpr_write_b32 a{Q_(qt,u)+r}, v{t+r}")
                if qt == 4:
                    if u == 0:
                        e(f"s_add_u32 s52, s39, {QX}")
                        e(f"v_lshlrev_b32 v27, 4, v0")
                        e(f"v_add_u32 v27, s52, v27")
                    e(f"ds_write_b128 v27, {vq(t)} offset:{u*1024}")
            if lead >= 3 and qt == 1:
                for g in self.bundle_static(2): p.extend(g)
            if lead >= 4 and qt == 3:
                for g in self.bundle_static(3): p.extend(g)
        e("s_waitcnt lgkmcnt(0)")
        e("s_barrier")
        e("v_xor_b32 v27, 0x800, v27")
        e(f"ds_read_b128 {aq(Q_(4,2))}, v27")
        e(f"ds_read_b128 {aq(Q_(4,3))}, v27 offset:1024")
        for r in range(4): e(f"v_mov_b32 v{V_ONES+r}, 0x3f803f80")
        for r in range(20): e(f"v_mov_b32 v{V_NM+r}, 0")
        e("s_mov_b32 s51, 0")
        e(f"{L}_attn:")
        for r in range(V_O, V_O + 160): e(f"v_mov_b32 v{r}, 0")
        for r in range(20): e(f"v_mov_b32 v{V_P+r}, 0")
        for r in range(20): e(f"v_accvgpr_write_b32 a{A_L+r}, 0")
        for r in range(64): e(f"v_accvgpr_write_b32 a{A_V+r}, 0")
        for r in range(24): e(f"v_mov_b32 v{V_S+r}, 0xff800000")
        stamp(p, 4, stamps)

        def rdK(buf, extra=0):
            return mk("\n".join(f"ds_read_b128 {aq(K_(buf,kt,u))}, v{V_KA[u]} offset:{kt*4096 + extra}" for kt in range(2) for u in range(4)))
        def rdV(buf):
            q = []
            for T in range(8):
                q.append(f"ds_read_b64_tr_b16 {aq(Vf(buf,T),2)}, v{V_VA[T]}")
                q.append(f"ds_read_b64_tr_b16 {aq(Vf(buf,T)+2,2)}, v{V_VA[T]} offset:4096")
            return mk("\n".join(q))
        e("s_waitcnt lgkmcnt(0)")
        e("s_barrier")
        e("s_cmp_eq_u32 s24, 0")
        e(f"s_cbranch_scc0 {L}_k0p1")
        p.extend(rdK(0, KM1))
        e(f"s_branch {L}_k0done")
        e(f"{L}_k0p1:")
        p.extend(rdK(1, KM1))
        e(f"{L}_k0done:")
        e("s_mov_b32 s30, 0")
        if "trA" in self.exp: e("s_mov_b32 s96, 0")
        e("s_mov_b32 s35, 3")
        e(f"s_add_u32 s31, s39, {((lead+4)%5)*SLOT}")
        e(f"s_add_u32 s32, s40, {(lead+1)*8192}")
        e(f"s_add_u32 s33, s40, {lead*8192}")
        e("s_cmp_eq_u32 s24, 0")
        e(f"s_cbranch_scc0 {L}_bodyB")

        def ladder(cases, default, tag):
            done = self.lab(tag + "d")
            labs = []
            for mv, n in cases:
                l = self.lab(tag); labs.append((l, n))
                e(f"s_cmp_eq_u32 s30, {mv}\ns_cbranch_scc1 {l}")
            e(f"s_waitcnt vmcnt({default})")
            if labs: e(f"s_branch {done}")
            for k, (l, n) in enumerate(labs):
                e(f"{l}:\ns_waitcnt vmcnt({n})")
                if k + 1 < len(labs): e(f"s_branch {done}")
            e(f"{done}:")
        def nwait(j):
            return sum((4 if i == 15 else 8) for i in range(j + 1, min(j + lead - 1, 15) + 1))
        def top(tag):
            default = nwait(0)
            cases = [(j, nwait(j)) for j in range(16) if nwait(j) != default]
            if "trA" in self.exp: e("s_memtime s[92:93]")
            ladder(cases, default, tag)
            e("s_waitcnt lgkmcnt(0)")
            if "trA" in self.exp: e("s_memtime s[94:95]")
            e("s_barrier")
            if "trA" in self.exp:
                e("s_waitcnt lgkmcnt(0)")
                e("s_mov_b32 m0, s96\ns_nop 3\nv_writelane_b32 v18, s92, m0\ns_add_u32 m0, s96, 1\ns_nop 3\nv_writelane_b32 v18, s94, m0\ns_add_u32 s96, s96, 2")
        def dma_groups():
            limV = 16 - lead
            limK = 15 - lead
            gs = [self.guard(self.g_KV(r, ("s31", 0), ("s33", 0)), f"s_cmp_lt_u32 s30, {limV}") for r in (2, 3)]
            gs += [self.guard(self.g_KV(r, ("s31", 0), ("s32", 0)), f"s_cmp_lt_u32 s30, {limK}") for r in (0, 1)]
            post = mk(f"s_add_u32 s32, s32, 8192\ns_add_u32 s33, s33, 8192\ns_add_u32 s31, s31, 32768\n"
                      f"s_add_u32 s48, s39, {5*SLOT}\ns_cmp_ge_u32 s31, s48\ns_cselect_b32 s48, {5*SLOT}, 0\ns_sub_u32 s31, s31, s48")
            gs[-1] = gs[-1] + post
            return gs
        def adv_read():
            q = ["s_add_u32 s35, s35, 1", "s_cmp_eq_u32 s35, 5", f"s_mov_b32 s34, {SLOT}", f"s_cmov_b32 s34, {-4*SLOT}", "s_cselect_b32 s35, 0, s35"]
            g = [mk("\n".join(q))]
            for r in V_KA + V_VA:
                g.append(mk(f"v_add_u32 v{r}, s34, v{r}")[0])
            return g
        def QK(ebuf, qt, sb):
            q = []
            for u in range(4):
                for kt in range(2):
                    c = vq(NM_(qt)) if u == 0 else vq(S_(sb, kt))
                    q.append(f"v_mfma_f32_16x16x32_bf16 {vq(S_(sb,kt))}, {aq(K_(ebuf,kt,u))}, {aq(Q_(qt,u))}, {c}")
            return mk("\n".join(q))
        def SM(qt, sb):
            q = []
            for kt in range(2):
                b = S_(sb, kt)
                for r in range(4): q.append(f"v_exp_f32 v{b+r}, v{b+r}")
            for kt in range(2):
                b = S_(sb, kt)
                q.append(f"v_cvt_pk_bf16_f32 v{P_(qt)+2*kt}, v{b}, v{b+1}")
                q.append(f"v_cvt_pk_bf16_f32 v{P_(qt)+2*kt+1}, v{b+2}, v{b+3}")
            return mk("\n".join(q))
        def PV(vbuf, qt):
            q = []
            for T in range(8):
                q.append(f"v_mfma_f32_16x16x32_bf16 {vq(O_(T,qt))}, {aq(Vf(vbuf,T))}, {vq(P_(qt))}, {vq(O_(T,qt))}")
            q.append(f"v_mfma_f32_16x16x32_bf16 {aq(L_(qt))}, {vq(V_ONES)}, {vq(P_(qt))}, {aq(L_(qt))}")
            return mk("\n".join(q))
        def body(typ, do_qk=True):
            ebuf = 0 if typ == "A" else 1
            if typ == "A":
                qk = [0, 1, 2, 3, 4]; sb = [0, 1, 2, 0, 1]; pv = [0, 1, 2, 3]; carried = None
            else:
                qk = [0, 1, 2, 3]; sb = [2, 0, 1, 2]; pv = [0, 1, 2, 3, 4]; carried = (4, 1)
            reads = (rdK(ebuf ^ 1) + rdV(ebuf)) if do_qk else []
            dmas = dma_groups() if do_qk else []
            nslots = 5
            per = (len(reads) + nslots - 1) // nslots
            for k in range(nslots):
                main = []
                if do_qk and k < len(qk): main += QK(ebuf, qk[k], sb[k])
                if k < len(pv): main += PV(ebuf ^ 1, pv[k])
                fill = []
                if k == 0:
                    if carried: fill += SM(*carried)
                    if do_qk: fill = adv_read() + fill
                elif do_qk:
                    fill += SM(qk[k-1], sb[k-1])
                rd = reads[k*per:(k+1)*per]
                dm = [dmas[k]] if k < len(dmas) else []
                if k == 0:
                    fill = dm + fill + rd
                else:
                    fill = merge_fills(fill, rd, dm)
                p.extend(interleave(main, fill) if main else _flat(fill))
        from asmlib import _flat
        e(f"{L}_bodyA:")
        top("A"); body("A")
        e("s_add_u32 s30, s30, 1\ns_cmp_eq_u32 s30, 16")
        e(f"s_cbranch_scc1 {L}_endB")
        e(f"{L}_bodyB:")
        top("B"); body("B")
        e("s_add_u32 s30, s30, 1\ns_cmp_eq_u32 s30, 16")
        e(f"s_cbranch_scc0 {L}_bodyA")
        e("s_waitcnt lgkmcnt(0)")
        body("A", do_qk=False)
        e(f"s_branch {L}_epi")
        e(f"{L}_endB:")
        e("s_waitcnt lgkmcnt(0)")
        body("B", do_qk=False)
        e(f"{L}_epi:")
        stamp(p, 5, stamps)

        e("s_barrier")
        e("s_mul_i32 s52, s3, 5120")
        e("v_lshlrev_b32 v27, 4, v0")
        e("v_add_u32 v27, s52, v27")
        for i in range(4):
            e(f"ds_write_b128 v27, {vq(O_(4+i,4))} offset:{i*1024}")
        e(f"ds_write_b128 v27, {aq(L_(4))} offset:4096")
        for qt in range(5):
            e(f"v_accvgpr_read_b32 v{V_S+qt}, a{L_(qt)}")
        e(f"s_mov_b32 s52, {fbits(L_LO):#x}\ns_mov_b32 s53, {fbits(L_HI):#x}")
        e("s_mov_b64 s[56:57], exec")
        for qt in range(4):
            e(f"v_cmp_le_f32 vcc, s52, v{V_S+qt}")
            e("s_and_b64 s[56:57], s[56:57], vcc")
            e(f"v_cmp_ge_f32 vcc, s53, v{V_S+qt}")
            e("s_and_b64 s[56:57], s[56:57], vcc")
        e("s_waitcnt lgkmcnt(0)")
        e("s_barrier")
        e("s_xor_b32 s48, s3, 1\ns_mul_i32 s48, s48, 5120")
        e("v_lshlrev_b32 v27, 4, v0")
        e("v_add_u32 v27, s48, v27")
        for i in range(4):
            e(f"ds_read_b128 {vq(V_P+i*4)}, v27 offset:{i*1024}")
        e(f"ds_read_b128 {vq(V_S+8)}, v27 offset:4096")
        for i in range(4):
            for r in range(4):
                e(f"v_add_f32 v{O_(i,4)+r}, v{O_(i,4)+r}, v{V_P+i*4+r}")
        e(f"v_add_f32 v{V_S+4}, v{V_S+4}, v{V_S+8}")
        e(f"v_cmp_le_f32 vcc, s52, v{V_S+4}")
        e("s_and_b64 s[56:57], s[56:57], vcc")
        e(f"v_cmp_ge_f32 vcc, s53, v{V_S+4}")
        e("s_and_b64 s[56:57], s[56:57], vcc")
        e("s_cmp_eq_u64 s[56:57], exec")
        e("s_cselect_b32 s48, 0, 1")
        e("v_mov_b32 v27, s48")
        e("s_lshl_b32 s48, s3, 2\ns_add_u32 s48, s48, 32768")
        e("v_mov_b32 v28, s48")
        e("ds_write_b32 v28, v27")
        e("s_waitcnt lgkmcnt(0)")
        e("s_barrier")
        e("v_mov_b32 v28, 32768")
        e(f"ds_read_b128 {vq(V_S+12)}, v28")
        e(f"v_or_b32 v27, v{V_S+12}, v{V_S+13}")
        e(f"v_or_b32 v28, v{V_S+14}, v{V_S+15}")
        e("v_or_b32 v27, v27, v28")
        e("v_readfirstlane_b32 s48, v27")
        e("s_cmp_eq_u32 s51, 0")
        e("s_cselect_b32 s48, s48, 0")
        e("s_cmp_eq_u32 s48, 0")
        e(f"s_cbranch_scc0 {L}_fallback")
        self.store_O()
        stamp(p, 6, stamps)
        stamp_flush(p, 7, stamps and f"{L}_stf", "s[54:55]")
        if "tr" in self.exp:
            tv = 18 if "trA" in self.exp else 17
            l = self.lab("tr")
            e(f"s_cmp_eq_u32 s3, 0\ns_cbranch_scc0 {l}")
            e(f"s_lshl_b32 s58, s2, 8\ns_add_u32 s58, s58, {65*1024*1024}")
            e("v_lshlrev_b32 v251, 2, v0\nv_add_u32 v251, s58, v251")
            e(f"global_store_dword v251, v{tv}, s[54:55]\ns_waitcnt vmcnt(0)")
            e(f"{l}:")
        e(f"s_branch {L}_done")

        e(f"{L}_fallback:")
        e("s_mov_b32 s51, 1")
        e("s_barrier")
        e(f"s_mul_i32 s48, s35, {SLOT}")
        for r in V_KA + V_VA:
            e(f"v_subrev_u32 v{r}, s48, v{r}")
        for qt in range(5):
            e(f"v_mov_b32 v{V_P+qt}, 0xff800000")
        e("s_mov_b32 s30, 0")
        e("s_mov_b32 s32, s40")
        e(f"{L}_mx:")
        for r in (0, 1): p.extend(self.g_KV(r, ("s39", 0), ("s32", 0)))
        e("s_waitcnt vmcnt(0)\ns_barrier")
        p.extend(rdK(0))
        for qt in range(5):
            for u in range(4):
                for kt in range(2):
                    c = "0" if u == 0 else vq(S_(0, kt))
                    e(f"v_mfma_f32_16x16x32_bf16 {vq(S_(0,kt))}, {aq(K_(0,kt,u))}, {aq(Q_(qt,u))}, {c}")
            for r in range(0, 8, 2):
                e(f"v_max3_f32 v{V_P+qt}, v{V_S+r}, v{V_S+r+1}, v{V_P+qt}")
        e("s_waitcnt lgkmcnt(0)\ns_barrier")
        e("s_add_u32 s32, s32, 8192\ns_add_u32 s30, s30, 1\ns_cmp_lt_u32 s30, 16")
        e(f"s_cbranch_scc1 {L}_mx")
        e("v_xor_b32 v27, 16, v0\nv_lshlrev_b32 v27, 2, v27")
        e("v_xor_b32 v28, 32, v0\nv_lshlrev_b32 v28, 2, v28")
        for qt in range(5):
            e(f"ds_bpermute_b32 v{V_S}, v27, v{V_P+qt}")
            e(f"v_max_f32 v{V_P+qt}, v{V_P+qt}, v{V_S}")
            e(f"ds_bpermute_b32 v{V_S}, v28, v{V_P+qt}")
            e(f"v_max_f32 v{V_P+qt}, v{V_P+qt}, v{V_S}")
            for r in range(4):
                e(f"v_sub_f32 v{NM_(qt)+r}, 0, v{V_P+qt}")
        for r in V_KA + V_VA:
            e(f"v_add_u32 v{r}, {3*SLOT}, v{r}")
        for j in range(-1, lead):
            for g in self.bundle_static(j): p.extend(g)
        e("s_waitcnt vmcnt(0)")
        e(f"s_branch {L}_attn")
        e(f"{L}_done:")
        e("s_endpgm")
        return p

    def store_O(self):
        e = self.p.e
        for qt in range(5):
            e(f"v_rcp_f32 v{V_S+qt}, v{V_S+qt}")
        e("s_add_u32 s52, s29, s25")
        e("s_lshl_b32 s52, s52, 2")
        e("s_lshl_b32 s53, s24, 1")
        for u in range(4):
            e(f"s_xor_b32 s48, s53, {u}")
            e("s_add_u32 s48, s48, s52")
            e("s_mul_i32 s48, s48, 9216")
            e("s_lshl_b32 s49, s24, 12")
            e(f"s_add_u32 s{42+u}, s48, s49")
            if u < 2: e(f"s_add_u32 s{46+u}, s48, 8192")
        e("v_lshlrev_b32 v27, 4, v0")
        for qt in range(5):
            rc = V_S + qt
            e(f"v_mov_b32 v{V_S+9}, v{rc}\nv_mov_b32 v{V_S+8}, v{rc}")
            for u in range(4 if qt < 4 else 2):
                a, b = O_(2*u, qt), O_(2*u+1, qt)
                for x in (a, a+2, b, b+2):
                    e(f"v_pk_mul_f32 {vq(x,2)}, {vq(x,2)}, {vq(V_S+8,2)}")
                e(f"v_cvt_pk_bf16_f32 v{a}, v{a}, v{a+1}")
                e(f"v_cvt_pk_bf16_f32 v{a+1}, v{a+2}, v{a+3}")
                e(f"v_cvt_pk_bf16_f32 v{a+2}, v{b}, v{b+1}")
                e(f"v_cvt_pk_bf16_f32 v{a+3}, v{b+2}, v{b+3}")
                if qt < 4:
                    e(f"buffer_store_dwordx4 {vq(a)}, v27, {S_OW}, s{42+u} offen offset:{qt*1024} {self.oflags}")
                else:
                    e(f"buffer_store_dwordx4 {vq(a)}, v27, {S_OW}, s{46+u} offen {self.oflags}")
        e("s_waitcnt vmcnt(0)")

def gen_k1(name, **kw):
    return K1(name, **kw).gen()

if __name__ == "__main__":
    import sys
    st = len(sys.argv) > 1
    def out(fn, **kw):
        p = gen_k1("k1_kernel", stamps=st, **kw)
        txt, n = finalize(p, "k1_kernel")
        print(fn, "nops inserted", n, "instrs", len(p))
        open(fn, "w").write("; @launch kernel=k1_kernel grid=(256,1,1) block=(256,1,1) lds=163840\n.amdgcn_target \"amdgcn-amd-amdhsa--gfx950\"\n.text\n" + txt + kd("k1_kernel"))
    out("k1_only.s")
    for x in sys.argv[2:]:
        if x.startswith("rot"): out(f"k1_{x}.s", rot=int(x[3:]))
        elif x.startswith("lead"): out(f"k1_{x}.s", lead=int(x[4:]))
        elif x.startswith("M"): out(f"k1_{x}.s", mapping=x)
        elif x.startswith("o_"): out(f"k1_{x}.s", oflags=x[2:].replace("_", " "))
        elif x == "wnt": out(f"k1_{x}.s", wflags="nt")
        elif x == "kvdef": out(f"k1_{x}.s", kvflags="")
        else: out(f"k1_{x}.s", exp=x)
```

```python
from asmlib import *
from gen_k2 import stamp, stamp_flush, kd, finalize
import struct

def fbits(x): return struct.unpack("<I", struct.pack("<f", x))[0]
CSCALE = 1.4426950408889634 / (128 ** 0.5)
L_LO = 2.0 ** -64
L_HI = 2.0 ** 16

XS = [0, 18432]
WS0 = 36864
SLOT = 32768
QX = 106496
KM1 = 16384

OS0 = 98304
FLAG1 = 0x1400000
FLAG2 = FLAG1 + 8192
PART0 = 0x1600000
V_DO = 19; V_DOO = 20; V_AO = 21; V_BO = 22
OWN = [[0, 1, 2], [3, 4], [5, 6], [7, 8]]
V_DK = [1, 2]; V_DV = [3, 4]
V_KA = [5, 6, 7, 8]
V_VA = list(range(9, 17))
V_DW = [205, 206, 207, 208]; V_DX = [200, 201, 202, 203, 204]
V_XA = [19, 20]; V_XT = [21, 22]
V_WA = [23, 24, 25, 26]
V_ONES = 28
V_O = 32
V_OT = 160
V_S = 192; V_P = 216; V_NM = 236
def vq(b, n=4): return f"v[{b}:{b+n-1}]"
def aq(b, n=4): return f"a[{b}:{b+n-1}]"
def O_(T, qt): return V_O + (T * 4 + qt) * 4 if qt < 4 else V_OT + T * 4
def S_(buf, kt): return V_S + buf * 8 + kt * 4
def P_(qt): return V_P + qt * 4
def NM_(qt): return V_NM + qt * 4
A_Q = 0
def Q_(qt, u): return A_Q + (qt * 4 + u) * 4 if qt < 4 else 64 + u * 4
A_L = 80
def L_(qt): return A_L + qt * 4
A_K = 100
def K_(buf, kt, u): return A_K + buf * 32 + (kt * 4 + u) * 4
A_V = 164
def Vf(buf, T): return A_V + buf * 32 + T * 4
A_FR = 128
def FA(buf, T): return A_FR + buf * 52 + T * 4
def FB(buf, qt): return A_FR + buf * 52 + 32 + qt * 4

S_X = "s[4:7]"; S_WQ = "s[8:11]"; S_K = "s[12:15]"; S_V = "s[16:19]"; S_OW = "s[20:23]"

class K1:
    def __init__(self, name, mapping="M1", kvflags="nt", wflags="", oflags="", stamps=False, rot=4, lead=2, bursts=(2, 4), exp="", fused=False, inv=True, oloadflags="", woflags=""):
        self.exp = exp; self.fused = fused; self.inv = inv; self.oloadflags = oloadflags; self.woflags = woflags
        self.name = name; self.mapping = mapping; self.kvflags = kvflags; self.wflags = wflags; self.oflags = oflags
        self.stamps = stamps; self.rot = rot; self.lead = lead; self.bursts = bursts
        self.p = Prog(); self.uid = 0
    def lab(self, t):
        self.uid += 1
        return f"{self.name}_{t}{self.uid}"
    def g_W(self, slot):
        gs = [mk(f"s_add_u32 m0, s38, {WS0 + slot*16384}")
              + mk(f"buffer_load_dwordx4 v{V_DW[0]}, {S_WQ}, s44 offen {self.wflags} lds")]
        gs[0].insert(1, mk("s_nop 0")[0])
        for k in range(1, 4):
            gs.append(mk(f"buffer_load_dwordx4 v{V_DW[k]}, {S_WQ}, s44 offen offset:{k*1024} {self.wflags} lds"))
        gs[-1] = gs[-1] + mk("s_add_u32 s44, s44, 0x40000\ns_and_b32 s44, s44, 0x3fffff")
        return gs
    def g_X(self, slot):
        gs = [mk(f"s_add_u32 m0, s45, {XS[slot]}\ns_nop 0\nbuffer_load_dwordx4 v{V_DX[0]}, {S_X}, s46 offen {self.wflags} lds")]
        for k in range(1, 4):
            gs.append(mk(f"buffer_load_dwordx4 v{V_DX[k]}, {S_X}, s46 offen offset:{k*1024} {self.wflags} lds"))
        l = self.lab("x5")
        gs.append(mk(f"s_cbranch_vccz {l}\ns_add_u32 m0, s45, {XS[slot] + 4096}\ns_nop 0\n"
                     f"buffer_load_dwordx4 v{V_DX[4]}, {S_X}, s46 offen {self.wflags} lds\n{l}:\n"
                     f"s_add_u32 s46, s46, 128\ns_and_b32 s46, s46, 1023"))
        return gs
    def g_KV(self, region, slot_expr, tile_expr):
        isK = region < 2
        srd = S_K if isK else S_V
        vo = V_DK if isK else V_DV
        return mk(f"s_add_u32 m0, {slot_expr[0]}, {slot_expr[1] + region*8192}\n"
                  f"s_add_u32 s37, {tile_expr[0]}, {tile_expr[1] + (region & 1)*131072}\n"
                  f"buffer_load_dwordx4 v{vo[0]}, {srd}, s37 offen {self.kvflags} lds\n"
                  f"buffer_load_dwordx4 v{vo[1]}, {srd}, s37 offen offset:1024 {self.kvflags} lds")
    def guard(self, group, cmp):
        l = self.lab("g")
        return mk(f"{cmp}\ns_cbranch_scc0 {l}") + group + mk(f"{l}:")
    def bundle_static(self, j, parts="KV"):
        gs = []
        slot = ((j + 4) % 5) * SLOT + (KM1 if j == -1 else 0)
        if "K" in parts and j + 1 <= 15:
            gs += [self.g_KV(r, ("s39", slot), ("s40", (j + 1) * 8192)) for r in (0, 1)]
        if "V" in parts and j >= 0:
            gs += [self.g_KV(r, ("s39", slot), ("s40", j * 8192)) for r in (2, 3)]
        return gs

    def gen(self):
        p = self.p; e = p.e; L = self.name; stamps = self.stamps; rot = self.rot; lead = self.lead
        e("s_cmp_ge_u32 s2, 256")
        e(f"s_cbranch_scc1 {L}_done")
        stamp(p, 0, stamps)
        e("s_load_dwordx8 s[36:43], s[0:1], 0")
        e("s_load_dwordx8 s[44:51], s[0:1], 40")
        e("s_load_dwordx2 s[54:55], s[0:1], 96")
        if self.fused:
            e("s_load_dwordx2 s[98:99], s[0:1], 32")
            e("s_load_dwordx2 s[100:101], s[0:1], 72")
            e("s_load_dwordx4 s[84:87], s[0:1], 80")
        e("v_lshrrev_b32 v27, 6, v0")
        e("v_and_b32 v0, 63, v0")
        e("v_readfirstlane_b32 s3, v27")
        e("s_and_b32 s52, s2, 7")
        e("s_lshr_b32 s27, s52, 2")
        if self.mapping == "M1":
            e("s_lshr_b32 s28, s2, 5")
            e("s_bfe_u32 s53, s2, 0x20003")
            e("s_and_b32 s52, s52, 3")
            e("s_lshl_b32 s29, s52, 3")
            e("s_lshl_b32 s56, s53, 1")
            e("s_add_u32 s29, s29, s56")
            e("s_mov_b32 s56, s28")
        elif self.mapping == "M4":
            e("s_lshr_b32 s56, s2, 3")
            e("s_and_b32 s53, s56, 7")
            e("s_lshr_b32 s56, s56, 3")
            e("s_and_b32 s57, s52, 1")
            e("s_lshl_b32 s28, s57, 2")
            e("s_add_u32 s28, s28, s56")
            e("s_bfe_u32 s57, s52, 0x10001")
            e("s_lshl_b32 s29, s57, 4")
            e("s_lshl_b32 s57, s53, 1")
            e("s_add_u32 s29, s29, s57")
        elif self.mapping == "M2":
            e("s_lshr_b32 s56, s2, 3")
            e("s_and_b32 s53, s56, 15")
            e("s_lshr_b32 s56, s56, 4")
            e("s_and_b32 s57, s52, 3")
            e("s_lshl_b32 s28, s57, 1")
            e("s_add_u32 s28, s28, s56")
            e("s_lshl_b32 s29, s53, 1")
        if rot == 8:
            e("s_lshl_b32 s26, s56, 1\ns_lshl_b32 s57, s53, 2\ns_add_u32 s26, s26, s57\ns_and_b32 s26, s26, 14")
        elif rot == 4:
            e("s_add_u32 s26, s56, s53\ns_and_b32 s26, s26, 3\ns_lshl_b32 s26, s26, 2")
        elif rot == 2:
            e("s_add_u32 s26, s56, s53\ns_and_b32 s26, s26, 1\ns_lshl_b32 s26, s26, 3")
        else:
            e("s_mov_b32 s26, 0")
        e("s_and_b32 s24, s3, 1")
        e("s_lshr_b32 s25, s3, 1")
        e("v_lshrrev_b32 v27, 5, v0")
        e("s_lshl_b32 s52, s3, 3")
        e("v_add_u32 v27, s52, v27")
        e("v_and_b32 v30, 31, v0")
        for k in range(4):
            e(f"v_add_u32 v28, {2*k}, v27")
            e("v_and_b32 v29, 3, v28")
            e("v_lshlrev_b32 v29, 2, v29")
            e("v_xor_b32 v29, v29, v30")
            e("v_lshlrev_b32 v29, 4, v29")
            e(f"v_lshl_add_u32 v{V_DW[k]}, v28, 13, v29")
            if k: e(f"v_subrev_u32 v{V_DW[k]}, {k*1024}, v{V_DW[k]}")
        e("s_mul_i32 s52, s3, 5\ns_cmp_eq_u32 s3, 3\ns_cselect_b32 s53, 1, 0\ns_sub_u32 s52, s52, s53")
        e("s_lshl_b32 s57, s52, 10")
        e("s_lshl_b32 s52, s52, 3")
        e("v_lshrrev_b32 v27, 3, v0")
        e("v_add_u32 v27, s52, v27")
        e("v_and_b32 v30, 7, v0")
        for k in range(5):
            e(f"v_add_u32 v28, {8*k}, v27")
            e("v_lshrrev_b32 v29, 1, v28")
            e("v_and_b32 v29, 7, v29")
            e("v_xor_b32 v29, v29, v30")
            e("v_lshlrev_b32 v29, 4, v29")
            e(f"v_lshl_add_u32 v{V_DX[k]}, v28, 10, v29")
            if 0 < k < 4: e(f"v_subrev_u32 v{V_DX[k]}, {k*1024}, v{V_DX[k]}")
        e("s_cmp_lt_u32 s3, 2")
        e("s_cselect_b64 vcc, -1, 0")
        e("s_waitcnt lgkmcnt(0)")
        e("s_cmp_eq_u32 s27, 0")
        e("s_cselect_b32 s4, s36, s44\ns_cselect_b32 s5, s37, s45")
        e("s_cselect_b32 s12, s38, s46\ns_cselect_b32 s13, s39, s47")
        e("s_cselect_b32 s16, s40, s48\ns_cselect_b32 s17, s41, s49")
        e("s_cselect_b32 s8, s42, s50\ns_cselect_b32 s9, s43, s51")
        if self.fused: e("s_cselect_b32 s98, s98, s100\ns_cselect_b32 s99, s99, s101")
        e("s_lshl_b32 s39, s3, 11\ns_lshl_b32 s40, s25, 12")
        e("s_mul_i32 s52, s28, 147456")
        e("s_add_u32 s4, s4, s52\ns_addc_u32 s5, s5, 0\ns_mov_b32 s6, 147456\ns_mov_b32 s7, 0x20000")
        e("s_lshl_b32 s52, s29, 8")
        e("s_add_u32 s8, s8, s52\ns_addc_u32 s9, s9, 0\ns_sub_u32 s10, 0x400000, s52\ns_mov_b32 s11, 0x20000")
        e("s_lshl_b32 s38, s3, 12")
        e("s_mov_b32 s45, s57")
        e("s_lshl_b32 s46, s26, 6")
        e("s_lshl_b32 s44, s26, 18")
        for g in self.g_X(0): p.extend(g)
        for g in self.g_W(0): p.extend(g)
        stamp(p, 1, stamps)
        e("s_lshl_b32 s52, s28, 5\ns_add_u32 s52, s52, s29")
        e("s_lshr_b32 s53, s52, 15\ns_lshl_b32 s52, s52, 17")
        e("s_add_u32 s12, s12, s52\ns_addc_u32 s13, s13, s53\ns_mov_b32 s14, 262144\ns_mov_b32 s15, 0x20000")
        e("s_add_u32 s16, s16, s52\ns_addc_u32 s17, s17, s53\ns_mov_b32 s18, 262144\ns_mov_b32 s19, 0x20000")
        e("s_lshl_b32 s52, s27, 3\ns_add_u32 s52, s52, s28\ns_mul_i32 s52, s52, 1179648")
        e("s_add_u32 s20, s54, s52\ns_addc_u32 s21, s55, 0\ns_mov_b32 s22, 1179648\ns_mov_b32 s23, 0x20000")
        e("v_lshrrev_b32 v27, 4, v0")
        e("s_lshl_b32 s52, s24, 3")
        e("v_add_u32 v27, s52, v27")
        e("v_and_b32 v30, 15, v0")
        for ii in range(2):
            e(f"v_add_u32 v29, {4*ii}, v27")
            e(f"v_xor_b32 v31, v29, v30")
            e(f"v_lshlrev_b32 v31, 4, v31")
            e(f"v_lshl_add_u32 v{V_DK[ii]}, v27, 8, v31")
            e(f"v_and_b32 v29, 7, v29")
            e(f"v_lshlrev_b32 v29, 1, v29")
            e(f"v_xor_b32 v31, v29, v30")
            e(f"v_lshlrev_b32 v31, 4, v31")
            e(f"v_lshl_add_u32 v{V_DV[ii]}, v27, 8, v31")
        e("v_and_b32 v27, 15, v0")
        e("v_lshrrev_b32 v28, 4, v0")
        e("v_lshrrev_b32 v29, 1, v27")
        e("v_xor_b32 v29, v29, v28")
        e("s_lshl_b32 s52, s24, 13")
        e("v_lshlrev_b32 v30, 7, v27")
        e("v_add_u32 v30, s52, v30")
        for sp in range(2):
            e(f"v_xor_b32 v31, {4*sp}, v29")
            e(f"v_lshl_add_u32 v{V_XA[sp]}, v31, 4, v30")
        e("s_sub_u32 s52, 16384, s52")
        for sp in range(2):
            e(f"v_add_u32 v{V_XT[sp]}, s52, v{V_XA[sp]}")
        e("v_bfe_u32 v29, v0, 2, 2")
        e("v_lshl_add_u32 v30, v28, 3, v29")
        e("v_lshlrev_b32 v30, 9, v30")
        e(f"v_add_u32 v30, {WS0}, v30")
        e("v_lshlrev_b32 v29, 2, v29")
        e("v_and_b32 v31, 3, v0")
        e("v_xor_b32 v29, v29, v31")
        e("s_lshl_b32 s52, s25, 4\ns_lshl_b32 s53, s24, 3\ns_or_b32 s52, s52, s53")
        e("v_xor_b32 v29, s52, v29")
        for u in range(4):
            e(f"v_xor_b32 v31, {4*u}, v29")
            e(f"v_lshl_add_u32 v{V_WA[u]}, v31, 4, v30")
        e("v_xor_b32 v29, v27, v28")
        e("s_lshl_b32 s53, s24, 3")
        e("v_xor_b32 v29, s53, v29")
        e("s_lshl_b32 s52, s25, 13")
        e(f"s_add_u32 s52, s52, {3*SLOT}")
        e("v_lshlrev_b32 v30, 8, v27")
        e("v_add_u32 v30, s52, v30")
        for u in range(4):
            e(f"v_xor_b32 v31, {4*u}, v29")
            e(f"v_lshl_add_u32 v{V_KA[u]}, v31, 4, v30")
        e("v_bfe_u32 v29, v0, 2, 2")
        e("v_lshl_add_u32 v29, v28, 2, v29")
        e("v_lshlrev_b32 v30, 8, v29")
        e("v_and_b32 v31, 1, v0")
        e("v_lshl_add_u32 v30, v31, 3, v30")
        e("s_lshl_b32 s52, s25, 13")
        e(f"s_add_u32 s52, s52, {3*SLOT + 16384}")
        e("v_add_u32 v30, s52, v30")
        e("v_and_b32 v29, 7, v29")
        e("v_lshlrev_b32 v29, 1, v29")
        e("v_bfe_u32 v31, v0, 1, 1")
        e("v_xor_b32 v29, v29, v31")
        e("s_lshl_b32 s53, s24, 3")
        e("v_xor_b32 v29, s53, v29")
        for T in range(8):
            e(f"v_xor_b32 v31, {2*T}, v29")
            e(f"v_lshl_add_u32 v{V_VA[T]}, v31, 4, v30")
        for r in range(V_O, V_O + 144):
            e(f"v_mov_b32 v{r}, 0")
        for g in self.g_W(1): p.extend(g)

        def rdQ(buf, ks):
            q = []
            wo = (ks % 4) * 16384
            xo = XS[(ks // 2) % 2]
            sp = ks & 1
            for T in range(8):
                u = T >> 1
                q.append(f"ds_read_b64_tr_b16 {aq(FA(buf,T),2)}, v{V_WA[u]} offset:{wo + 8*(T&1)}")
                q.append(f"ds_read_b64_tr_b16 {aq(FA(buf,T)+2,2)}, v{V_WA[u]} offset:{wo + 8*(T&1)+2048}")
            for qt in range(4):
                q.append(f"ds_read_b128 {aq(FB(buf,qt))}, v{V_XA[sp]} offset:{xo + qt*2048}")
            q.append(f"ds_read_b128 {aq(FB(buf,4))}, v{V_XT[sp]} offset:{xo}")
            return mk("\n".join(q))
        def mmQ(buf):
            q = []
            for T in range(8):
                for qt in range(4):
                    q.append(f"v_mfma_f32_16x16x32_bf16 {vq(O_(T,qt))}, {aq(FA(buf,T))}, {aq(FB(buf,qt))}, {vq(O_(T,qt))}")
                if T < 4:
                    q.append(f"v_mfma_f32_16x16x32_bf16 {vq(V_OT+T*4)}, {aq(FA(buf,T))}, {aq(FB(buf,4))}, {vq(V_OT+T*4)}")
            return mk("\n".join(q))
        X = self.exp
        def qbody(s_, wait, dmas):
            if "trQ" in X: e("s_memtime s[92:93]")
            if wait is not None: e(f"s_waitcnt vmcnt({wait}) lgkmcnt(0)")
            else: e("s_waitcnt lgkmcnt(0)")
            if "trQ" in X:
                e("s_memtime s[94:95]")
            e("s_barrier")
            if "trQ" in X:
                e("s_waitcnt lgkmcnt(0)")
                e("s_mov_b32 m0, s96\ns_nop 3\nv_writelane_b32 v17, s92, m0\ns_add_u32 m0, s96, 1\ns_nop 3\nv_writelane_b32 v17, s94, m0\ns_add_u32 s96, s96, 2")
            rd = rdQ((s_ + 1) & 1, (s_ + 1) % 4 + (4 if (s_ + 1) % 4 < 0 else 0)) if (s_ < 15 and "noread" not in X) else []
            if "nodma" in X: dmas = []
            fill = merge_fills(rd, dmas)
            p.extend(interleave(mmQ(s_ & 1) if "nomfma" not in X else mk("s_nop 0"), fill, 0, 27))
        e("s_waitcnt vmcnt(4)")
        e("s_barrier")
        p.extend(rdQ(0, 0))
        for g in self.g_X(1) + self.g_W(2) + self.g_W(3): p.extend(g)
        stamp(p, 2, stamps)
        e("s_mov_b32 s30, 0")
        if "trQ" in X: e("s_mov_b32 s96, 0\nv_mov_b32 v17, 0")
        e(f"{L}_qloop:")
        waits = [12, 4, 12, 4]
        for k in range(4):
            d = self.g_W(k)
            if k & 1: d = d + self.g_X(((k - 1) // 2) % 2)
            qbody(k, waits[k] if "nodma" not in X else None, d)
        e("s_add_u32 s30, s30, 1")
        e("s_cmp_lt_u32 s30, 3")
        e(f"s_cbranch_scc1 {L}_qloop")
        qbody(12, 16, self.bundle_static(-1))
        qbody(13, 4, self.bundle_static(0))
        qbody(14, 16, [])
        qbody(15, None, self.bundle_static(1))
        e("s_waitcnt lgkmcnt(0)")
        stamp(p, 3, stamps)

        e(f"s_mov_b32 s48, {fbits(CSCALE):#x}\ns_mov_b32 s49, {fbits(CSCALE):#x}")
        T0 = 176
        k = 0
        for qt in (4, 0, 1, 2, 3):
            for u in range(4 if qt < 4 else 2):
                t = T0 + (k % 4) * 4; k += 1
                for h in range(2):
                    src = O_(2*u+h, qt) if qt < 4 else V_OT + (2*u+h)*4
                    e(f"v_pk_mul_f32 {vq(src,2)}, {vq(src,2)}, s[48:49]")
                    e(f"v_pk_mul_f32 {vq(src+2,2)}, {vq(src+2,2)}, s[48:49]")
                    e(f"v_cvt_pk_bf16_f32 v{t+2*h}, v{src}, v{src+1}")
                    e(f"v_cvt_pk_bf16_f32 v{t+2*h+1}, v{src+2}, v{src+3}")
                for r in range(4): e(f"v_accvgpr_write_b32 a{Q_(qt,u)+r}, v{t+r}")
                if qt == 4:
                    if u == 0:
                        e(f"s_add_u32 s52, s39, {QX}")
                        e(f"v_lshlrev_b32 v27, 4, v0")
                        e(f"v_add_u32 v27, s52, v27")
                    e(f"ds_write_b128 v27, {vq(t)} offset:{u*1024}")
            if lead >= 3 and qt == 1:
                for g in self.bundle_static(2): p.extend(g)
            if lead >= 4 and qt == 3:
                for g in self.bundle_static(3): p.extend(g)
        e("s_waitcnt lgkmcnt(0)")
        e("s_barrier")
        e("v_xor_b32 v27, 0x800, v27")
        e(f"ds_read_b128 {aq(Q_(4,2))}, v27")
        e(f"ds_read_b128 {aq(Q_(4,3))}, v27 offset:1024")
        for r in range(20): e(f"v_mov_b32 v{V_NM+r}, 0")
        if self.fused: self.fused_setup()
        e("s_mov_b32 s51, 0")
        e(f"{L}_attn:")
        for r in range(4): e(f"v_mov_b32 v{V_ONES+r}, 0x3f803f80")
        for r in range(V_O, V_O + 160): e(f"v_mov_b32 v{r}, 0")
        for r in range(20): e(f"v_mov_b32 v{V_P+r}, 0")
        for r in range(20): e(f"v_accvgpr_write_b32 a{A_L+r}, 0")
        for r in range(64): e(f"v_accvgpr_write_b32 a{A_V+r}, 0")
        for r in range(24): e(f"v_mov_b32 v{V_S+r}, 0xff800000")
        stamp(p, 4, stamps)

        def rdK(buf, extra=0):
            return mk("\n".join(f"ds_read_b128 {aq(K_(buf,kt,u))}, v{V_KA[u]} offset:{kt*4096 + extra}" for kt in range(2) for u in range(4)))
        def rdV(buf):
            q = []
            for T in range(8):
                q.append(f"ds_read_b64_tr_b16 {aq(Vf(buf,T),2)}, v{V_VA[T]}")
                q.append(f"ds_read_b64_tr_b16 {aq(Vf(buf,T)+2,2)}, v{V_VA[T]} offset:4096")
            return mk("\n".join(q))
        e("s_waitcnt lgkmcnt(0)")
        e("s_barrier")
        e("s_cmp_eq_u32 s24, 0")
        e(f"s_cbranch_scc0 {L}_k0p1")
        p.extend(rdK(0, KM1))
        e(f"s_branch {L}_k0done")
        e(f"{L}_k0p1:")
        p.extend(rdK(1, KM1))
        e(f"{L}_k0done:")
        e("s_mov_b32 s30, 0")
        if "trA" in self.exp: e("s_mov_b32 s96, 0")
        e("s_mov_b32 s35, 3")
        if self.fused: e("s_mov_b32 s41, 0\ns_lshl_b32 s42, s3, 12")
        e(f"s_add_u32 s31, s39, {((lead+4)%5)*SLOT}")
        e(f"s_add_u32 s32, s40, {(lead+1)*8192}")
        e(f"s_add_u32 s33, s40, {lead*8192}")
        e("s_cmp_eq_u32 s24, 0")
        e(f"s_cbranch_scc0 {L}_bodyB")

        def ladder(cases, default, tag):
            done = self.lab(tag + "d")
            labs = []
            for mv, n in cases:
                l = self.lab(tag); labs.append((l, n))
                e(f"s_cmp_eq_u32 s30, {mv}\ns_cbranch_scc1 {l}")
            e(f"s_waitcnt vmcnt({default})")
            if labs: e(f"s_branch {done}")
            for k, (l, n) in enumerate(labs):
                e(f"{l}:\ns_waitcnt vmcnt({n})")
                if k + 1 < len(labs): e(f"s_branch {done}")
            e(f"{done}:")
        def nwait(j):
            if self.fused and j == 15: return 8
            return sum((4 if i == 15 else 8) for i in range(j + 1, min(j + lead - 1, 15) + 1))
        def top(tag):
            default = nwait(0)
            cases = [(j, nwait(j)) for j in range(16) if nwait(j) != default]
            if "trA" in self.exp: e("s_memtime s[92:93]")
            ladder(cases, default, tag)
            e("s_waitcnt lgkmcnt(0)")
            if "trA" in self.exp: e("s_memtime s[94:95]")
            e("s_barrier")
            if "trA" in self.exp:
                e("s_waitcnt lgkmcnt(0)")
                e("s_mov_b32 m0, s96\ns_nop 3\nv_writelane_b32 v18, s92, m0\ns_add_u32 m0, s96, 1\ns_nop 3\nv_writelane_b32 v18, s94, m0\ns_add_u32 s96, s96, 2")
        def dma_groups():
            limV = 16 - lead
            limK = 15 - lead
            gs = [self.guard(self.g_KV(r, ("s31", 0), ("s33", 0)), f"s_cmp_lt_u32 s30, {limV}") for r in (2, 3)]
            gs += [self.guard(self.g_KV(r, ("s31", 0), ("s32", 0)), f"s_cmp_lt_u32 s30, {limK}") for r in (0, 1)]
            post = mk(f"s_add_u32 s32, s32, 8192\ns_add_u32 s33, s33, 8192\ns_add_u32 s31, s31, 32768\n"
                      f"s_add_u32 s48, s39, {5*SLOT}\ns_cmp_ge_u32 s31, s48\ns_cselect_b32 s48, {5*SLOT}, 0\ns_sub_u32 s31, s31, s48")
            gs[-1] = gs[-1] + post
            return gs
        def adv_read():
            q = ["s_add_u32 s35, s35, 1", "s_cmp_eq_u32 s35, 5", f"s_mov_b32 s34, {SLOT}", f"s_cmov_b32 s34, {-4*SLOT}", "s_cselect_b32 s35, 0, s35"]
            g = [mk("\n".join(q))]
            for r in V_KA + V_VA:
                g.append(mk(f"v_add_u32 v{r}, s34, v{r}")[0])
            return g
        def QK(ebuf, qt, sb):
            q = []
            for u in range(4):
                for kt in range(2):
                    c = vq(NM_(qt)) if u == 0 else vq(S_(sb, kt))
                    q.append(f"v_mfma_f32_16x16x32_bf16 {vq(S_(sb,kt))}, {aq(K_(ebuf,kt,u))}, {aq(Q_(qt,u))}, {c}")
            return mk("\n".join(q))
        def SM(qt, sb):
            q = []
            for kt in range(2):
                b = S_(sb, kt)
                for r in range(4): q.append(f"v_exp_f32 v{b+r}, v{b+r}")
            for kt in range(2):
                b = S_(sb, kt)
                q.append(f"v_cvt_pk_bf16_f32 v{P_(qt)+2*kt}, v{b}, v{b+1}")
                q.append(f"v_cvt_pk_bf16_f32 v{P_(qt)+2*kt+1}, v{b+2}, v{b+3}")
            return mk("\n".join(q))
        def PV(vbuf, qt):
            q = []
            for T in range(8):
                q.append(f"v_mfma_f32_16x16x32_bf16 {vq(O_(T,qt))}, {aq(Vf(vbuf,T))}, {vq(P_(qt))}, {vq(O_(T,qt))}")
            q.append(f"v_mfma_f32_16x16x32_bf16 {aq(L_(qt))}, {vq(V_ONES)}, {vq(P_(qt))}, {aq(L_(qt))}")
            return mk("\n".join(q))
        def body(typ, do_qk=True):
            ebuf = 0 if typ == "A" else 1
            if typ == "A":
                qk = [0, 1, 2, 3, 4]; sb = [0, 1, 2, 0, 1]; pv = [0, 1, 2, 3]; carried = None
            else:
                qk = [0, 1, 2, 3]; sb = [2, 0, 1, 2]; pv = [0, 1, 2, 3, 4]; carried = (4, 1)
            reads = (rdK(ebuf ^ 1) + rdV(ebuf)) if do_qk else []
            dmas = dma_groups() if do_qk else []
            if self.fused:
                wo = [self.g_Wo_run(), self.g_Wo_run()]
                if do_qk: wo = [self.guard(g, "s_cmp_ge_u32 s30, 14") for g in wo]
                dmas = dmas + [wo[0] + wo[1]] if do_qk else [wo[0], wo[1]]
            nslots = 5
            per = (len(reads) + nslots - 1) // nslots
            for k in range(nslots):
                main = []
                if do_qk and k < len(qk): main += QK(ebuf, qk[k], sb[k])
                if k < len(pv): main += PV(ebuf ^ 1, pv[k])
                fill = []
                if k == 0:
                    if carried: fill += SM(*carried)
                    if do_qk: fill = adv_read() + fill
                elif do_qk:
                    fill += SM(qk[k-1], sb[k-1])
                rd = reads[k*per:(k+1)*per]
                dm = [dmas[k]] if k < len(dmas) else []
                if k == 0:
                    fill = dm + fill + rd
                else:
                    fill = merge_fills(fill, rd, dm)
                p.extend(interleave(main, fill) if main else _flat(fill))
        from asmlib import _flat
        e(f"{L}_bodyA:")
        top("A"); body("A")
        e("s_add_u32 s30, s30, 1\ns_cmp_eq_u32 s30, 16")
        e(f"s_cbranch_scc1 {L}_endB")
        e(f"{L}_bodyB:")
        top("B"); body("B")
        e("s_add_u32 s30, s30, 1\ns_cmp_eq_u32 s30, 16")
        e(f"s_cbranch_scc0 {L}_bodyA")
        e("s_waitcnt lgkmcnt(0)")
        body("A", do_qk=False)
        e(f"s_branch {L}_epi")
        e(f"{L}_endB:")
        e("s_waitcnt lgkmcnt(0)")
        body("B", do_qk=False)
        e(f"{L}_epi:")
        stamp(p, 5, stamps)

        e("s_barrier")
        if self.fused: self.fused_early()
        e(f"s_mul_i32 s52, s3, 5120\ns_add_u32 s52, s52, {OS0}")
        e("v_lshlrev_b32 v27, 4, v0")
        e("v_add_u32 v27, s52, v27")
        for i in range(4):
            e(f"ds_write_b128 v27, {vq(O_(4+i,4))} offset:{i*1024}")
        e(f"ds_write_b128 v27, {aq(L_(4))} offset:4096")
        for qt in range(5):
            e(f"v_accvgpr_read_b32 v{V_S+qt}, a{L_(qt)}")
        e(f"s_mov_b32 s52, {fbits(L_LO):#x}\ns_mov_b32 s53, {fbits(L_HI):#x}")
        e("s_mov_b64 s[56:57], exec")
        for qt in range(4):
            e(f"v_cmp_le_f32 vcc, s52, v{V_S+qt}")
            e("s_and_b64 s[56:57], s[56:57], vcc")
            e(f"v_cmp_ge_f32 vcc, s53, v{V_S+qt}")
            e("s_and_b64 s[56:57], s[56:57], vcc")
        e("s_waitcnt lgkmcnt(0)")
        e("s_barrier")
        e(f"s_xor_b32 s48, s3, 1\ns_mul_i32 s48, s48, 5120\ns_add_u32 s48, s48, {OS0}")
        e("v_lshlrev_b32 v27, 4, v0")
        e("v_add_u32 v27, s48, v27")
        for i in range(4):
            e(f"ds_read_b128 {vq(V_P+i*4)}, v27 offset:{i*1024}")
        e(f"ds_read_b128 {vq(V_S+8)}, v27 offset:4096")
        for i in range(4):
            for r in range(4):
                e(f"v_add_f32 v{O_(i,4)+r}, v{O_(i,4)+r}, v{V_P+i*4+r}")
        e(f"v_add_f32 v{V_S+4}, v{V_S+4}, v{V_S+8}")
        e(f"v_cmp_le_f32 vcc, s52, v{V_S+4}")
        e("s_and_b64 s[56:57], s[56:57], vcc")
        e(f"v_cmp_ge_f32 vcc, s53, v{V_S+4}")
        e("s_and_b64 s[56:57], s[56:57], vcc")
        e("s_cmp_eq_u64 s[56:57], exec")
        e("s_cselect_b32 s48, 0, 1")
        e("v_mov_b32 v27, s48")
        e(f"s_lshl_b32 s48, s3, 2\ns_add_u32 s48, s48, {OS0 + 20480}")
        e("v_mov_b32 v28, s48")
        e("ds_write_b32 v28, v27")
        e("s_waitcnt lgkmcnt(0)")
        e("s_barrier")
        e(f"v_mov_b32 v28, {OS0 + 20480}")
        e(f"ds_read_b128 {vq(V_S+12)}, v28")
        e(f"v_or_b32 v27, v{V_S+12}, v{V_S+13}")
        e(f"v_or_b32 v28, v{V_S+14}, v{V_S+15}")
        e("v_or_b32 v27, v27, v28")
        e("v_readfirstlane_b32 s48, v27")
        e("s_cmp_eq_u32 s51, 0")
        e("s_cselect_b32 s48, s48, 0")
        e("s_cmp_eq_u32 s48, 0")
        e(f"s_cbranch_scc0 {L}_fallback")
        self.store_O()
        if self.fused:
            self.fused_tail()
        else:
            stamp(p, 6, stamps)
            stamp_flush(p, 7, stamps and f"{L}_stf", "s[54:55]")
        if "tr" in self.exp:
            tv = 18 if "trA" in self.exp else 17
            l = self.lab("tr")
            e(f"s_cmp_eq_u32 s3, 0\ns_cbranch_scc0 {l}")
            e(f"s_lshl_b32 s58, s2, 8\ns_add_u32 s58, s58, {65*1024*1024}")
            e("v_lshlrev_b32 v251, 2, v0\nv_add_u32 v251, s58, v251")
            e(f"global_store_dword v251, v{tv}, s[54:55]\ns_waitcnt vmcnt(0)")
            e(f"{l}:")
        e(f"s_branch {L}_done")

        e(f"{L}_fallback:")
        e("s_mov_b32 s51, 1")
        e("s_waitcnt vmcnt(0)")
        e("s_barrier")
        e(f"s_mul_i32 s48, s35, {SLOT}")
        for r in V_KA + V_VA:
            e(f"v_subrev_u32 v{r}, s48, v{r}")
        for qt in range(5):
            e(f"v_mov_b32 v{V_P+qt}, 0xff800000")
        e("s_mov_b32 s30, 0")
        e("s_mov_b32 s32, s40")
        e(f"{L}_mx:")
        for r in (0, 1): p.extend(self.g_KV(r, ("s39", 0), ("s32", 0)))
        e("s_waitcnt vmcnt(0)\ns_barrier")
        p.extend(rdK(0))
        for qt in range(5):
            for u in range(4):
                for kt in range(2):
                    c = "0" if u == 0 else vq(S_(0, kt))
                    e(f"v_mfma_f32_16x16x32_bf16 {vq(S_(0,kt))}, {aq(K_(0,kt,u))}, {aq(Q_(qt,u))}, {c}")
            for r in range(0, 8, 2):
                e(f"v_max3_f32 v{V_P+qt}, v{V_S+r}, v{V_S+r+1}, v{V_P+qt}")
        e("s_waitcnt lgkmcnt(0)\ns_barrier")
        e("s_add_u32 s32, s32, 8192\ns_add_u32 s30, s30, 1\ns_cmp_lt_u32 s30, 16")
        e(f"s_cbranch_scc1 {L}_mx")
        e("v_xor_b32 v27, 16, v0\nv_lshlrev_b32 v27, 2, v27")
        e("v_xor_b32 v28, 32, v0\nv_lshlrev_b32 v28, 2, v28")
        for qt in range(5):
            e(f"ds_bpermute_b32 v{V_S}, v27, v{V_P+qt}")
            e(f"v_max_f32 v{V_P+qt}, v{V_P+qt}, v{V_S}")
            e(f"ds_bpermute_b32 v{V_S}, v28, v{V_P+qt}")
            e(f"v_max_f32 v{V_P+qt}, v{V_P+qt}, v{V_S}")
            for r in range(4):
                e(f"v_sub_f32 v{NM_(qt)+r}, 0, v{V_P+qt}")
        for r in V_KA + V_VA:
            e(f"v_add_u32 v{r}, {3*SLOT}, v{r}")
        for j in range(-1, lead):
            for g in self.bundle_static(j): p.extend(g)
        e("s_waitcnt vmcnt(0)")
        e(f"s_branch {L}_attn")
        e(f"{L}_done:")
        e("s_endpgm")
        return p

    def g_Wo_run(self):
        q = ["s_mov_b32 m0, s42", "s_mov_b32 s37, s41", f"buffer_load_dwordx4 v{V_DO}, {S_WQ}, s37 offen {self.woflags} lds"]
        for k in range(1, 4):
            q += [f"s_add_u32 s37, s41, {3072*k}", f"buffer_load_dwordx4 v{V_DO}, {S_WQ}, s37 offen offset:{1024*k} {self.woflags} lds"]
        q += ["s_add_u32 s41, s41, 65536", "s_add_u32 s42, s42, 16384"]
        return mk("\n".join(q))
    def fused_setup(self):
        e = self.p.e
        e("s_and_b32 s46, s2, 3\ns_bfe_u32 s47, s2, 0x20003")
        e("s_lshl_b32 s52, s46, 20\ns_lshl_b32 s53, s47, 8\ns_add_u32 s52, s52, s53")
        e("s_add_u32 s8, s98, s52\ns_addc_u32 s9, s99, 0\ns_sub_u32 s10, 0x400000, s52\ns_mov_b32 s11, 0x20000")
        e("v_lshrrev_b32 v27, 4, v0")
        e("v_lshlrev_b32 v28, 2, v27")
        e("v_and_b32 v29, 15, v0")
        e("v_xor_b32 v28, v28, v29")
        e("v_lshlrev_b32 v28, 4, v28")
        e("s_lshl_b32 s52, s3, 4")
        e("v_add_u32 v27, s52, v27")
        e(f"v_lshl_add_u32 v{V_DO}, v27, 10, v28")
        e("v_lshlrev_b32 v27, 4, v0")
        e(f"v_add_u32 v{V_DOO}, s45, v27")
        e(f"v_add_u32 v{V_BO}, {OS0}, v27")
        e("v_lshrrev_b32 v27, 4, v0")
        e("v_bfe_u32 v28, v0, 2, 2")
        e("v_lshl_add_u32 v27, v27, 2, v28")
        e("v_lshlrev_b32 v28, 2, v28")
        e("v_and_b32 v29, 3, v0")
        e("s_lshl_b32 s52, s3, 2")
        e("v_add_u32 v29, s52, v29")
        e("v_xor_b32 v28, v28, v29")
        e("v_lshlrev_b32 v28, 4, v28")
        e(f"v_lshl_add_u32 v{V_AO}, v27, 8, v28")
        l = self.lab("nonce")
        e(f"s_cmp_eq_u32 s2, 0\ns_cbranch_scc0 {l}\ns_cmp_eq_u32 s3, 0\ns_cbranch_scc0 {l}")
        e("s_memrealtime s[88:89]\ns_waitcnt lgkmcnt(0)\ns_or_b32 s88, s88, 1")
        e("v_mov_b32 v30, s88\nv_mov_b32 v31, s89\nv_mov_b32 v29, 0")
        e("s_mov_b64 exec, 1\ns_nop 4")
        e("global_store_dwordx2 v29, v[30:31], s[86:87] sc1")
        e("s_mov_b64 exec, -1")
        e(f"{l}:")
    def fused_early(self):
        e = self.p.e
        if self.inv:
            l = self.lab("inv")
            e(f"s_cmp_eq_u32 s3, 0\ns_cbranch_scc0 {l}\nbuffer_inv sc1\n{l}:")
    def poll(self, base_sreg, tag):
        e = self.p.e
        lp = self.lab(tag + "p"); dn = self.lab(tag + "d")
        e("s_mov_b64 exec, 15\ns_nop 4")
        e(f"v_lshlrev_b32 v27, 3, v0\nv_add_u32 v27, {base_sreg}, v27")
        e("s_mov_b32 s97, 0")
        e(f"{lp}:")
        e("global_load_dwordx2 v[30:31], v27, s[54:55] sc1")
        e("s_waitcnt vmcnt(0)")
        e("v_cmp_eq_u32 vcc, s88, v30\nv_cmp_eq_u32 s[56:57], s89, v31")
        e("s_nop 3\ns_and_b64 s[56:57], s[56:57], vcc\ns_cmp_eq_u64 s[56:57], exec")
        e(f"s_cbranch_scc1 {dn}")
        e(f"s_sleep 1\ns_add_u32 s97, s97, 1\ns_cmp_lt_u32 s97, 0x40000\ns_cbranch_scc1 {lp}")
        e(f"{dn}:")
        e("s_mov_b64 exec, -1")
    def signal(self, base_sreg, member_sreg):
        e = self.p.e
        e(f"s_lshl_b32 s48, {member_sreg}, 3\ns_add_u32 s48, s48, {base_sreg}")
        e("v_mov_b32 v27, s48\nv_mov_b32 v30, s88\nv_mov_b32 v31, s89")
        e("s_mov_b64 exec, 1\ns_nop 4")
        e("global_store_dwordx2 v27, v[30:31], s[54:55] sc1")
        e("s_mov_b64 exec, -1")
    def fused_tail(self):
        p = self.p; e = p.e; L = self.name; stamps = self.stamps
        e("s_barrier")
        stamp(p, 6, stamps)
        e("s_and_b32 s46, s2, 3\ns_bfe_u32 s47, s2, 0x20003")
        e("s_lshl_b32 s52, s27, 2\ns_add_u32 s52, s52, s46\ns_lshl_b32 s52, s52, 3\ns_add_u32 s52, s52, s28")
        e(f"s_lshl_b32 s52, s52, 7\ns_add_u32 s43, s52, {FLAG1}")
        e("s_lshl_b32 s52, s27, 3\ns_add_u32 s52, s52, s28\ns_lshl_b32 s52, s52, 2\ns_add_u32 s52, s52, s47")
        e(f"s_mul_i32 s53, s52, 294912\ns_add_u32 s53, s53, {PART0}")
        e(f"s_lshl_b32 s52, s52, 7\ns_add_u32 s44, s52, {FLAG2}")
        e("s_add_u32 s4, s54, s53\ns_addc_u32 s5, s55, 0\ns_mov_b32 s6, 294912\ns_mov_b32 s7, 0x20000")
        e("s_mov_b32 s12, s84\ns_mov_b32 s13, s85\ns_mov_b32 s14, 2359296\ns_mov_b32 s15, 0x20000")
        e("s_mul_i32 s45, s3, 5\ns_cmp_eq_u32 s3, 3\ns_cselect_b32 s53, 1, 0\ns_sub_u32 s45, s45, s53\ns_lshl_b32 s45, s45, 10")
        for r in range(32, 104): e(f"v_mov_b32 v{r}, 0")
        lw = self.lab("w0")
        e(f"s_cmp_eq_u32 s3, 0\ns_cbranch_scc0 {lw}")
        lp = self.lab("np"); dn = self.lab("nd")
        e("s_mov_b32 s97, 0\nv_mov_b32 v27, 0")
        e(f"{lp}:")
        e("global_load_dwordx2 v[30:31], v27, s[86:87] sc1\ns_waitcnt vmcnt(0)")
        e("v_readfirstlane_b32 s88, v30\nv_readfirstlane_b32 s89, v31")
        e(f"s_nop 3\ns_cmp_lg_u32 s88, 0\ns_cbranch_scc1 {dn}")
        e(f"s_sleep 1\ns_add_u32 s97, s97, 1\ns_cmp_lt_u32 s97, 0x40000\ns_cbranch_scc1 {lp}")
        e(f"{dn}:")
        self.signal("s43", "s47")
        self.poll("s43", "f1")
        e(f"{lw}:")
        e("s_barrier")
        stamp(p, 7, stamps)
        def FAo(buf, ks, ee): return buf * 88 + ks * 8 + ee * 4
        def FBo(buf, ks, qt): return buf * 88 + 16 + (ks * 9 + qt) * 4
        def acc(ee, qt): return 32 + (ee * 9 + qt) * 4
        def rdO(buf):
            q = []
            for ks in range(2):
                for ee in range(2):
                    for hf in range(2):
                        q.append(f"ds_read_b64_tr_b16 {aq(FAo(buf,ks,ee)+2*hf,2)}, v{V_AO} offset:{ks*8192 + hf*4096 + 8*ee}")
                for qt in range(9):
                    q.append(f"ds_read_b128 {aq(FBo(buf,ks,qt))}, v{V_BO} offset:{(ks*9+qt)*1024}")
            return mk("\n".join(q))
        def mmO(buf):
            q = []
            for ks in range(2):
                for ee in range(2):
                    for qt in range(9):
                        q.append(f"v_mfma_f32_16x16x32_bf16 {vq(acc(ee,qt))}, {aq(FAo(buf,ks,ee))}, {aq(FBo(buf,ks,qt))}, {vq(acc(ee,qt))}")
            return mk("\n".join(q))
        def g_O(lim=None):
            fl = self.oloadflags
            gs = [mk(f"s_mov_b32 m0, s49\ns_nop 0\nbuffer_load_dwordx4 v{V_DOO}, {S_OW}, s50 offen {fl} lds")]
            for k in range(1, 4):
                gs.append(mk(f"buffer_load_dwordx4 v{V_DOO}, {S_OW}, s50 offen offset:{k*1024} {fl} lds"))
            l = self.lab("o5")
            gs.append(mk(f"s_cbranch_vccz {l}\ns_add_u32 m0, s49, 4096\ns_add_u32 s37, s50, 4096\n"
                         f"buffer_load_dwordx4 v{V_DOO}, {S_OW}, s37 offen {fl} lds\n{l}:"))
            adv = mk(f"s_add_u32 s50, s50, 18432\ns_add_u32 s49, s49, 18432\ns_add_u32 s48, s45, {OS0 + 3*18432}\n"
                     f"s_cmp_eq_u32 s49, s48\ns_cselect_b32 s48, {3*18432}, 0\ns_sub_u32 s49, s49, s48")
            if lim is None:
                return gs[:-1] + [gs[-1] + adv]
            l2 = self.lab("og")
            return [mk(f"s_cmp_lt_u32 s30, {lim}\ns_cbranch_scc0 {l2}") + sum(gs, []) + adv + mk(f"{l2}:")]
        e("s_cmp_lt_u32 s3, 2\ns_cselect_b64 vcc, -1, 0")
        e(f"s_mul_i32 s50, s46, 294912")
        e(f"s_add_u32 s49, s45, {OS0}")
        for g in g_O() + g_O(): p.extend(g)
        e("s_waitcnt vmcnt(4)")
        e("s_barrier")
        p.extend(rdO(0))
        for g in g_O(): p.extend(g)
        e(f"s_mov_b32 s41, {6*65536}\ns_lshl_b32 s42, s3, 12")
        e("s_mov_b32 s30, 0\ns_mov_b32 s34, 0\ns_mov_b32 s35, 0")
        def otop(tag):
            lc = self.lab(tag + "c"); ld = self.lab(tag + "d")
            e(f"s_sub_u32 s48, s30, 2\ns_cmp_lt_u32 s48, 9\ns_cbranch_scc1 {lc}")
            l8 = self.lab(tag + "8"); l4 = self.lab(tag + "4")
            e(f"s_cmp_eq_u32 s30, 1\ns_cbranch_scc1 {l8}\ns_cmp_eq_u32 s30, 11\ns_cbranch_scc1 {l8}")
            e(f"s_cmp_lt_u32 s30, 14\ns_cbranch_scc1 {l4}")
            e(f"s_waitcnt vmcnt(0)\ns_branch {ld}")
            e(f"{l8}:\ns_waitcnt vmcnt(8)\ns_branch {ld}")
            e(f"{l4}:\ns_waitcnt vmcnt(4)\ns_branch {ld}")
            e(f"{lc}:\ns_waitcnt vmcnt(12)")
            e(f"{ld}:")
            e("s_waitcnt lgkmcnt(0)\ns_barrier")
        def oadv():
            q = mk("s_add_u32 s34, s34, 1\ns_cmp_eq_u32 s34, 6\ns_mov_b32 s48, 16384\ns_cmov_b32 s48, -81920\ns_cselect_b32 s34, 0, s34\n"
                   f"v_add_u32 v{V_AO}, s48, v{V_AO}\n"
                   "s_add_u32 s35, s35, 1\ns_cmp_eq_u32 s35, 3\ns_mov_b32 s48, 18432\ns_cmov_b32 s48, -36864\ns_cselect_b32 s35, 0, s35\n"
                   f"v_add_u32 v{V_BO}, s48, v{V_BO}")
            return [q]
        def wo_group():
            g = self.g_Wo_run()
            wrap = mk(f"s_lshl_b32 s48, s3, 12\ns_add_u32 s48, s48, {6*16384}\ns_cmp_eq_u32 s42, s48\ns_cselect_b32 s48, {6*16384}, 0\ns_sub_u32 s42, s42, s48")
            return [self.guard(g + wrap, "s_cmp_lt_u32 s30, 10")]
        e(f"{L}_oloop:")
        for bb in range(2):
            otop(f"o{bb}")
            fill = oadv() + merge_fills(rdO(bb ^ 1), g_O(13) + wo_group())
            p.extend(interleave(mmO(bb), fill, 0, 28))
            e("s_add_u32 s30, s30, 1")
        e("s_cmp_lt_u32 s30, 16")
        e(f"s_cbranch_scc1 {L}_oloop")
        e("s_waitcnt lgkmcnt(0)")
        stamp(p, 8, stamps)
        e("v_lshlrev_b32 v27, 4, v0\ns_lshl_b32 s52, s3, 11\nv_add_u32 v26, s52, v27")
        e("v_and_b32 v25, 15, v0\nv_lshlrev_b32 v25, 11, v25\nv_lshrrev_b32 v24, 4, v0\nv_lshl_add_u32 v25, v24, 4, v25")
        e("s_lshl_b32 s52, s3, 6\nv_add_u32 v25, s52, v25")
        e("s_mul_i32 s52, s28, 294912\ns_lshl_b32 s53, s27, 10\ns_add_u32 s52, s52, s53\ns_lshl_b32 s53, s47, 8\ns_add_u32 s45, s52, s53")
        e("s_mul_i32 s42, s46, 73728")
        labs = [self.lab(f"oc{o}") for o in range(4)]
        fin = self.lab("ofin")
        for o in range(1, 4):
            e(f"s_cmp_eq_u32 s46, {o}\ns_cbranch_scc1 {labs[o]}")
        for o in range(4):
            e(f"{labs[o]}:")
            for qt in range(9):
                if qt in OWN[o]: continue
                e(f"s_add_u32 s48, s42, {qt*8192}")
                for ee in range(2):
                    e(f"buffer_store_dwordx4 {vq(acc(ee,qt))}, v26, s[4:7], s48 offen offset:{ee*1024} sc1")
            e("s_waitcnt vmcnt(0)\ns_barrier")
            lw = self.lab("w1")
            e(f"s_cmp_eq_u32 s3, 0\ns_cbranch_scc0 {lw}")
            self.signal("s44", "s46")
            self.poll("s44", "f2")
            e(f"{lw}:")
            e("s_barrier")
            stamp(p, 9, stamps)
            T = 112
            k = 0
            for d in range(1, 4):
                src = (o + d) & 3
                for qt in OWN[o]:
                    e(f"s_mov_b32 s48, {src*73728 + qt*8192}")
                    for ee in range(2):
                        e(f"buffer_load_dwordx4 {vq(T + k*4)}, v26, s[4:7], s48 offen offset:{ee*1024} sc1"); k += 1
            e("s_waitcnt vmcnt(0)")
            k = 0
            for d in range(1, 4):
                for qt in OWN[o]:
                    for ee in range(2):
                        for r in range(4):
                            e(f"v_add_f32 v{acc(ee,qt)+r}, v{acc(ee,qt)+r}, v{T + k*4 + r}")
                        k += 1
            for qt in OWN[o]:
                a0, a1 = acc(0, qt), acc(1, qt)
                e(f"v_cvt_pk_bf16_f32 v{a0}, v{a0}, v{a0+1}\nv_cvt_pk_bf16_f32 v{a0+1}, v{a0+2}, v{a0+3}")
                e(f"v_cvt_pk_bf16_f32 v{a0+2}, v{a1}, v{a1+1}\nv_cvt_pk_bf16_f32 v{a0+3}, v{a1+2}, v{a1+3}")
                e(f"s_add_u32 s48, s45, {qt*32768}")
                e(f"buffer_store_dwordx4 {vq(a0)}, v25, s[12:15], s48 offen")
            if o < 3: e(f"s_branch {fin}")
        e(f"{fin}:")
        e("s_waitcnt vmcnt(0)")
        stamp(p, 10, stamps)
        stamp_flush(p, 11, stamps and f"{L}_stf", "s[54:55]")
    def store_O(self):
        e = self.p.e
        for qt in range(5):
            e(f"v_rcp_f32 v{V_S+qt}, v{V_S+qt}")
        e("s_add_u32 s52, s29, s25")
        e("s_lshl_b32 s52, s52, 2")
        e("s_lshl_b32 s53, s24, 1")
        for u in range(4):
            e(f"s_xor_b32 s48, s53, {u}")
            e("s_add_u32 s48, s48, s52")
            e("s_mul_i32 s48, s48, 9216")
            e("s_lshl_b32 s49, s24, 12")
            e(f"s_add_u32 s{42+u}, s48, s49")
            if u < 2: e(f"s_add_u32 s{46+u}, s48, 8192")
        e("v_lshlrev_b32 v27, 4, v0")
        for qt in range(5):
            rc = V_S + qt
            e(f"v_mov_b32 v{V_S+9}, v{rc}\nv_mov_b32 v{V_S+8}, v{rc}")
            for u in range(4 if qt < 4 else 2):
                a, b = O_(2*u, qt), O_(2*u+1, qt)
                for x in (a, a+2, b, b+2):
                    e(f"v_pk_mul_f32 {vq(x,2)}, {vq(x,2)}, {vq(V_S+8,2)}")
                e(f"v_cvt_pk_bf16_f32 v{a}, v{a}, v{a+1}")
                e(f"v_cvt_pk_bf16_f32 v{a+1}, v{a+2}, v{a+3}")
                e(f"v_cvt_pk_bf16_f32 v{a+2}, v{b}, v{b+1}")
                e(f"v_cvt_pk_bf16_f32 v{a+3}, v{b+2}, v{b+3}")
                if qt < 4:
                    e(f"buffer_store_dwordx4 {vq(a)}, v27, {S_OW}, s{42+u} offen offset:{qt*1024} {self.oflags}")
                else:
                    e(f"buffer_store_dwordx4 {vq(a)}, v27, {S_OW}, s{46+u} offen {self.oflags}")
        e("s_waitcnt vmcnt(0)")

def gen_k1(name, **kw):
    return K1(name, **kw).gen()

if __name__ == "__main__":
    import sys
    st = len(sys.argv) > 1
    def out(fn, **kw):
        p = gen_k1("k1_kernel", stamps=st, **kw)
        txt, n = finalize(p, "k1_kernel")
        print(fn, "nops inserted", n, "instrs", len(p))
        open(fn, "w").write("; @launch kernel=k1_kernel grid=(256,1,1) block=(256,1,1) lds=163840\n.amdgcn_target \"amdgcn-amd-amdhsa--gfx950\"\n.text\n" + txt + kd("k1_kernel"))
    out("k1_only.s")
    for x in sys.argv[2:]:
        if x.startswith("rot"): out(f"k1_{x}.s", rot=int(x[3:]))
        elif x.startswith("lead"): out(f"k1_{x}.s", lead=int(x[4:]))
        elif x.startswith("M"): out(f"k1_{x}.s", mapping=x)
        elif x.startswith("fused"): out(f"k1_{x}.s", fused=True, oflags="sc1", inv=("noinv" not in x), oloadflags=("sc1" if "osc1" in x else ""))
        elif x.startswith("o_"): out(f"k1_{x}.s", oflags=x[2:].replace("_", " "))
        elif x == "wnt": out(f"k1_{x}.s", wflags="nt")
        elif x == "kvdef": out(f"k1_{x}.s", kvflags="")
        else: out(f"k1_{x}.s", exp=x)
```

```python
from asmlib import *

KA_X   = [0, 40]
KA_K   = [8, 48]
KA_V   = [16, 56]
KA_WQ  = [24, 64]
KA_WO  = [32, 72]
KA_OUT = 80
KA_DBG = 88
KA_WS  = 96

STAMP_OFF = 64*1024*1024
STAMP_CYC = [True]
STAMP_ONLYCYC = [False]
def stamp(p, k, on):
    if on:
        p.e(f"{'s_memtime' if STAMP_ONLYCYC[0] else 's_memrealtime'} s[58:59]\ns_waitcnt lgkmcnt(0)\ns_mov_b32 s{60+k}, s58")
        if STAMP_CYC[0]: p.e(f"s_memtime s[58:59]\ns_waitcnt lgkmcnt(0)\ns_mov_b32 s{76+k}, s58")
DBG_MODE = [None]
def stamp_flush(p, n, on, wsreg="s[22:23]"):
    if on and DBG_MODE[0] is not None:
        adj, first = DBG_MODE[0]
        p.e("s_load_dwordx2 s[56:57], s[0:1], 88\ns_waitcnt lgkmcnt(0)")
        p.e(f"s_add_u32 s56, s56, {adj & 0xffffffff}\ns_addc_u32 s57, s57, {-1 if adj < 0 else 0}")
        p.e("v_mov_b32 v250, 0")
        for k in range(n):
            p.e(f"v_writelane_b32 v250, s{60+k}, {k}")
        p.e("s_not_b32 s58, s60")
        p.e(f"v_writelane_b32 v250, s58, {n}")
        p.e("v_mbcnt_lo_u32_b32 v251, -1, 0\nv_mbcnt_hi_u32_b32 v251, -1, v251\nv_lshlrev_b32 v251, 2, v251")
        p.e(f"v_add_u32 v251, {first*4}, v251")
        p.e("s_cmp_eq_u32 s3, 0\ns_cbranch_scc0 %s" % on)
        p.e(f"s_mov_b64 s[58:59], exec\ns_mov_b64 exec, {(1 << (n+1)) - 1}\ns_nop 4")
        p.e(f"global_atomic_umax v251, v250, s[56:57]")
        p.e("s_waitcnt vmcnt(0)\ns_mov_b64 exec, s[58:59]")
        p.e(f"{on}:")
        return
    if on:
        p.e("v_mov_b32 v250, 0")
        for k in range(16):
            if not STAMP_CYC[0]: p.e(f"v_writelane_b32 v250, s{60+k}, {k}" if k < n else f"v_writelane_b32 v250, s60, {k}")
            elif k < 8: p.e(f"v_writelane_b32 v250, s{60+k}, {k}" if k < n else f"v_writelane_b32 v250, s60, {k}")
            else: p.e(f"v_writelane_b32 v250, s{76+k-8}, {k}" if k - 8 < n else f"v_writelane_b32 v250, s76, {k}")
        p.e(f"s_lshl_b32 s58, s2, 6\ns_add_u32 s58, s58, {STAMP_OFF}")
        p.e("v_mbcnt_lo_u32_b32 v251, -1, 0\nv_mbcnt_hi_u32_b32 v251, -1, v251\nv_lshlrev_b32 v251, 2, v251\nv_add_u32 v251, s58, v251")
        p.e("s_cmp_eq_u32 s3, 0\ns_cbranch_scc0 %s" % on)
        p.e("s_mov_b64 s[56:57], exec\ns_mov_b64 exec, 0xffff\ns_nop 4")
        p.e(f"global_store_dword v251, v250, {wsreg}")
        p.e("s_waitcnt vmcnt(0)\ns_mov_b64 exec, s[56:57]")
        p.e(f"{on}:")

def gen_k2(name, D=8, ld_flags_o="", ld_flags_w="", rot=False, stamps=0):
    p = Prog()
    e = p.e
    L = name
    e(f"s_cmp_ge_u32 s2, 256")
    e(f"s_cbranch_scc1 {L}_done")
    stamp(p, 0, stamps)
    e("s_load_dwordx2 s[4:5], s[0:1], 32")
    e("s_load_dwordx2 s[6:7], s[0:1], 72")
    e("s_load_dwordx2 s[20:21], s[0:1], 80")
    e("s_load_dwordx2 s[22:23], s[0:1], 96")
    e("v_lshrrev_b32 v1, 6, v0")
    e("v_and_b32 v0, 63, v0")
    e("v_readfirstlane_b32 s3, v1")
    e("s_and_b32 s24, s2, 7")
    e("s_lshr_b32 s25, s24, 2")
    e("s_and_b32 s26, s24, 3")
    e("s_lshr_b32 s27, s2, 3")
    e("s_lshr_b32 s28, s27, 4")
    e("s_lshl_b32 s26, s26, 1")
    e("s_add_u32 s26, s26, s28")
    e("s_bfe_u32 s28, s27, 0x10003")
    e("s_and_b32 s29, s27, 7")
    e("s_waitcnt lgkmcnt(0)")
    e("s_cmp_eq_u32 s25, 0")
    e("s_cselect_b32 s12, s4, s6")
    e("s_cselect_b32 s13, s5, s7")
    e("s_mov_b32 s14, 0x400000")
    e("s_mov_b32 s15, 0x20000")
    e("s_lshl_b32 s30, s25, 3")
    e("s_add_u32 s30, s30, s26")
    e("s_mul_i32 s31, s30, 1179648")
    e("s_add_u32 s8, s22, s31")
    e("s_addc_u32 s9, s23, 0")
    e("s_mov_b32 s10, 1179648")
    e("s_mov_b32 s11, 0x20000")
    e("s_mov_b32 s16, s20")
    e("s_mov_b32 s17, s21")
    e("s_mov_b32 s18, 2359296")
    e("s_mov_b32 s19, 0x20000")
    e("s_lshl_b32 s32, s29, 2")
    e("s_lshl_b32 s33, s28, 1")
    e("s_add_u32 s32, s32, s33")
    e("s_and_b32 s33, s26, 1")
    e("s_add_u32 s32, s32, s33")
    if not rot: e("s_mov_b32 s32, 0")
    e("s_lshl_b32 s33, s3, 5")
    e(f"s_mul_i32 s34, s3, {D*4096}")
    e("v_lshrrev_b32 v3, 3, v0")
    e("v_and_b32 v4, 6, v3")
    e("v_and_b32 v5, 7, v0")
    e("v_xor_b32 v4, v4, v5")
    e("v_lshlrev_b32 v4, 4, v4")
    e("v_lshl_add_u32 v2, v3, 10, v4")
    e("s_lshl_b32 s35, s29, 7")
    e("v_add_u32 v2, s35, v2")
    e("v_lshlrev_b32 v6, 4, v0")
    e("s_mul_i32 s36, s28, 5")
    e("s_lshl_b32 s37, s36, 10")
    e("v_add_u32 v6, s37, v6")
    e("v_add_u32 v7, 0x1000, v6")
    e("v_lshrrev_b32 v12, 4, v0")
    e("v_bfe_u32 v13, v0, 2, 2")
    e("v_lshl_add_u32 v12, v12, 2, v13")
    e("v_and_b32 v13, 6, v12")
    e("v_bfe_u32 v14, v0, 1, 1")
    e("v_xor_b32 v13, v13, v14")
    e("v_and_b32 v14, 1, v0")
    e("v_lshlrev_b32 v14, 3, v14")
    e("v_lshl_add_u32 v14, v12, 7, v14")
    e("v_add_u32 v14, s34, v14")
    for T in range(4):
        e(f"v_xor_b32 v15, {2*T}, v13")
        e(f"v_lshl_add_u32 v{8+T}, v15, 4, v14")
    e("s_cmp_eq_u32 s28, 0")
    e(f"s_cbranch_scc0 {L}_q4")
    for ntile in (5, 4):
        if ntile == 4:
            e(f"{L}_q4:")
        body_k2(p, L, ntile, D, ld_flags_o, ld_flags_w, stamps)
        if ntile == 5:
            e(f"s_branch {L}_done")
    e(f"{L}_done:")
    e("s_endpgm")
    return p

def body_k2(p, L, NT, D, fo, fw, stamps):
    e = p.e
    OB = 32
    AB = OB + D * NT * 4
    assert AB + 32 <= 256
    def acc(T, t):
        b = (T * NT + t) * 4
        return f"a[{b}:{b+3}]"
    def ofr(slot, t):
        b = OB + (slot * NT + t) * 4
        return f"v[{b}:{b+3}]"
    def afr(buf, T, lo=0, n=4):
        b = AB + buf * 16 + T * 4 + lo
        return f"v[{b}:{b+n-1}]"
    for r in range(16 * NT):
        e(f"v_accvgpr_write_b32 a{r}, 0")
    NV = NT + 4
    def L_stage(i):
        slot = i % D
        q = []
        q.append(f"s_add_u32 s40, s32, {i}")
        q.append(f"s_and_b32 s40, s40, 31")
        q.append(f"s_add_u32 s40, s40, s33")
        q.append(f"s_mul_i32 s41, s40, 9216")
        q.append(f"s_lshl_b32 s42, s40, 15")
        for k in range(4):
            q.append(f"s_add_u32 m0, s34, {slot*4096 + k*1024}")
            if k: q.append(f"s_add_u32 s42, s42, 8192")
            else: q.append("s_nop 0")
            q.append(f"buffer_load_dwordx4 v2, s[12:15], s42 offen {fw} lds")
        for t in range(NT):
            if t < 4:
                q.append(f"buffer_load_dwordx4 {ofr(slot,t)}, v6, s[8:11], s41 offen offset:{t*1024} {fo}")
            else:
                q.append(f"buffer_load_dwordx4 {ofr(slot,t)}, v7, s[8:11], s41 offen {fo}")
        return mk("\n".join(q))
    def R_stage(i):
        slot = i % D; buf = i & 1
        q = []
        for T in range(4):
            q.append(f"ds_read_b64_tr_b16 {afr(buf,T,0,2)}, v{8+T} offset:{slot*4096}")
            q.append(f"ds_read_b64_tr_b16 {afr(buf,T,2,2)}, v{8+T} offset:{slot*4096 + 2048}")
        return mk("\n".join(q))
    def M_stage(i):
        slot = i % D; buf = i & 1
        q = []
        for T in range(4):
            for t in range(NT):
                q.append(f"v_mfma_f32_16x16x32_bf16 {acc(T,t)}, {afr(buf,T)}, {ofr(slot,t)}, {acc(T,t)}")
        return mk("\n".join(q))
    N = 32
    for i in range(min(D, N)):
        p.extend(L_stage(i))
    stamp(p, 1, stamps)
    e(f"s_waitcnt vmcnt({NV*(D-1)})")
    stamp(p, 2, stamps)
    p.extend(R_stage(0))
    for i in range(N):
        if i + 1 < N:
            outstanding_after = min(N - 1, i + D - 1) - (i + 1)
            e(f"s_waitcnt vmcnt({NV*outstanding_after})")
            R = R_stage(i + 1)
        else:
            R = []
        M = M_stage(i)
        body = interleave(M, R, 0, len(M) // 2)
        p.extend(body)
        if i + D < N:
            p.extend(L_stage(i + D))
    stamp(p, 3, stamps)
    e("v_lshlrev_b32 v12, 4, v0")
    e("v_add_u32 v13, s34, v12")
    for T in range(4):
        for t in range(NT):
            b = (T * NT + t) * 4
            tmp = 32 + ((T * NT + t) % 8) * 4
            for r in range(4):
                e(f"v_accvgpr_read_b32 v{tmp+r}, a{b+r}")
            e(f"ds_write_b128 v13, v[{tmp}:{tmp+3}] offset:{(T*NT+t)*1024}")
    e("s_waitcnt lgkmcnt(0)")
    e("s_barrier")
    e(f"s_mul_i32 s40, s3, {NT*1024}")
    e("v_add_u32 v12, s40, v12")
    for t in range(NT):
        for w in range(4):
            b = 64 + (t * 4 + w) * 4
            off = w * D * 4096 + t * 1024
            if off < 65536:
                e(f"ds_read_b128 v[{b}:{b+3}], v12 offset:{off}")
            else:
                e(f"v_add_u32 v14, {w*D*4096}, v12")
                e(f"ds_read_b128 v[{b}:{b+3}], v14 offset:{t*1024}")
    e("s_mul_i32 s40, s26, 144")
    e("s_lshl_b32 s41, s36, 4")
    e("s_add_u32 s40, s40, s41")
    e("s_lshl_b32 s40, s40, 11")
    e("s_lshl_b32 s41, s25, 10")
    e("s_add_u32 s40, s40, s41")
    e("s_lshl_b32 s41, s29, 7")
    e("s_add_u32 s40, s40, s41")
    e("s_lshl_b32 s41, s3, 5")
    e("s_add_u32 s40, s40, s41")
    e("v_and_b32 v15, 15, v0")
    e("v_lshlrev_b32 v15, 11, v15")
    e("v_lshrrev_b32 v16, 4, v0")
    e("v_lshl_add_u32 v15, v16, 3, v15")
    e("v_add_u32 v15, s40, v15")
    for t in range(NT):
        b = 64 + t * 16
        for r in range(4):
            e(f"v_add_f32 v{b+r}, v{b+r}, v{b+4+r}")
            e(f"v_add_f32 v{b+8+r}, v{b+8+r}, v{b+12+r}")
        for r in range(4):
            e(f"v_add_f32 v{b+r}, v{b+r}, v{b+8+r}")
        e(f"v_cvt_pk_bf16_f32 v{b}, v{b}, v{b+1}")
        e(f"v_cvt_pk_bf16_f32 v{b+1}, v{b+2}, v{b+3}")
        e(f"s_mov_b32 s41, {t*16*2048}")
        e(f"buffer_store_dwordx2 v[{b}:{b+1}], v15, s[16:19], s41 offen")
    e("s_waitcnt vmcnt(0)")
    stamp(p, 4, stamps)
    stamp_flush(p, 5, stamps and f"{L}_st{NT}")

def kd(name, vgpr=512, acc=256):
    return f""".section .rodata,"a"
.p2align 6
.amdhsa_kernel {name}
  .amdhsa_next_free_vgpr {vgpr}
  .amdhsa_next_free_sgpr 102
  .amdhsa_accum_offset {acc}
  .amdhsa_group_segment_fixed_size 0
  .amdhsa_kernarg_size 104
  .amdhsa_user_sgpr_count 2
  .amdhsa_user_sgpr_kernarg_segment_ptr 1
  .amdhsa_system_sgpr_workgroup_id_x 1
.end_amdhsa_kernel
.text
"""

def finalize(p, name):
    ins = insert_lgkm(p.ins, strict=False)
    ins, n = fix_hazards(ins)
    head = f".globl {name}\n.p2align 8\n.type {name},@function\n{name}:\n"
    return head + render(ins), n

if __name__ == "__main__":
    import sys
    p = gen_k2("k2_kernel", stamps=len(sys.argv) > 1)
    txt, n = finalize(p, "k2_kernel")
    print("nops inserted", n, "instrs", len(p))
    open("k2_only.s", "w").write("; @launch kernel=k2_kernel grid=(256,1,1) block=(256,1,1) lds=131072\n.amdgcn_target \"amdgcn-amd-amdhsa--gfx950\"\n.text\n" + txt + kd("k2_kernel"))
```

```python
import sys
from gen_k1 import gen_k1
from gen_k2 import gen_k2, kd, finalize
HEADER = open("concat_heads__gqa_block_cached__mha_block_cached__near_ridge.s.ref").read().split("; Override launch")[0]
import gen_k2 as G2
def build(out, stamps=False, dbg=False, **kw):
    if dbg: G2.DBG_MODE[0] = (512, 0)
    k1 = gen_k1("attn_kernel", stamps=stamps or dbg, **kw.get("k1", {}))
    if dbg: G2.DBG_MODE[0] = (0, 8)
    k2 = gen_k2("oproj_kernel", stamps=dbg, **kw.get("k2", {}))
    G2.DBG_MODE[0] = None
    t1, n1 = finalize(k1, "attn_kernel")
    t2, n2 = finalize(k2, "oproj_kernel")
    s = HEADER
    s += "; @launch kernel=attn_kernel grid=(256,1,1) block=(256,1,1) lds=163840\n"
    s += "; @launch kernel=oproj_kernel grid=(256,1,1) block=(256,1,1) lds=131072\n"
    s += '.amdgcn_target "amdgcn-amd-amdhsa--gfx950"\n.text\n'
    s += t1 + kd("attn_kernel") + t2 + kd("oproj_kernel")
    open(out, "w").write(s)
    print(out, "nops", n1, n2, "bytes", len(s))
KNAME = "concat_heads__gqa_block_cached__mha_block_cached__near_ridge_kernel"
def build_fused(out, stamps=False, **kw):
    G2.STAMP_CYC[0] = False
    kw.setdefault("oflags", "sc1")
    k = gen_k1(KNAME, stamps=stamps, fused=True, **kw)
    t, n = finalize(k, KNAME)
    s = HEADER
    s += "; @launch grid=(256,1,1) block=(256,1,1) lds=163840\n"
    s += '.amdgcn_target "amdgcn-amd-amdhsa--gfx950"\n.text\n'
    s += t + kd(KNAME)
    open(out, "w").write(s)
    G2.STAMP_CYC[0] = True
    print(out, "nops", n, "bytes", len(s))
if __name__ == "__main__":
    build_fused("f_base.s")
    build_fused("f_st.s", stamps=True)
    build_fused("f_noinv_st.s", stamps=True, inv=False)
    import sys; sys.exit(0)
    build("concat_heads__gqa_block_cached__mha_block_cached__near_ridge.s")
    build("v_dbg.s", dbg=True)
    build("v_osc1.s", k1=dict(oflags="sc1"))
    build("v_ont.s", k1=dict(oflags="nt"))
    build("v_kvdef.s", k1=dict(kvflags=""))
```

```python
import sys
from gen_k1 import gen_k1
from gen_k2 import gen_k2, kd, finalize
HEADER = open("concat_heads__gqa_block_cached__mha_block_cached__near_ridge.s.ref").read().split("; Override launch")[0]
import gen_k2 as G2
def build(out, stamps=False, dbg=False, **kw):
    if dbg: G2.DBG_MODE[0] = (512, 0)
    k1 = gen_k1("attn_kernel", stamps=stamps or dbg, **kw.get("k1", {}))
    if dbg: G2.DBG_MODE[0] = (0, 8)
    k2 = gen_k2("oproj_kernel", stamps=dbg, **kw.get("k2", {}))
    G2.DBG_MODE[0] = None
    t1, n1 = finalize(k1, "attn_kernel")
    t2, n2 = finalize(k2, "oproj_kernel")
    s = HEADER
    s += "; @launch kernel=attn_kernel grid=(256,1,1) block=(256,1,1) lds=163840\n"
    s += "; @launch kernel=oproj_kernel grid=(256,1,1) block=(256,1,1) lds=131072\n"
    s += '.amdgcn_target "amdgcn-amd-amdhsa--gfx950"\n.text\n'
    s += t1 + kd("attn_kernel") + t2 + kd("oproj_kernel")
    open(out, "w").write(s)
    print(out, "nops", n1, n2, "bytes", len(s))
KNAME = "concat_heads__gqa_block_cached__mha_block_cached__near_ridge_kernel"
def build_fused(out, stamps=False, dbg=False, **kw):
    G2.STAMP_CYC[0] = False
    if dbg: G2.DBG_MODE[0] = (0, 2); stamps = True
    kw.setdefault("oflags", "sc1")
    k = gen_k1(KNAME, stamps=stamps, fused=True, **kw)
    t, n = finalize(k, KNAME)
    s = HEADER
    s += "; @launch grid=(256,1,1) block=(256,1,1) lds=163840\n"
    s += '.amdgcn_target "amdgcn-amd-amdhsa--gfx950"\n.text\n'
    s += t + kd(KNAME)
    open(out, "w").write(s)
    G2.STAMP_CYC[0] = True
    G2.DBG_MODE[0] = None
    print(out, "nops", n, "bytes", len(s))
if __name__ == "__main__":
    build_fused("f_base.s")
    build_fused("f_st.s", stamps=True)
    build_fused("f_noinv_st.s", stamps=True, inv=False)
    build_fused("f_dbg.s", dbg=True)
    build_fused("f_kvdef.s", kvflags="")
    build_fused("f_noinv.s", inv=False)
    import sys; sys.exit(0)
    build("concat_heads__gqa_block_cached__mha_block_cached__near_ridge.s")
    build("v_dbg.s", dbg=True)
    build("v_osc1.s", k1=dict(oflags="sc1"))
    build("v_ont.s", k1=dict(oflags="nt"))
    build("v_kvdef.s", k1=dict(kvflags=""))
```

```python
from asmlib import *
from gen_k2 import stamp, stamp_flush, kd, finalize
import struct

def fbits(x): return struct.unpack("<I", struct.pack("<f", x))[0]
CSCALE = 1.4426950408889634 / (128 ** 0.5)
L_LO = 2.0 ** -64
L_HI = 2.0 ** 16

XS = [0, 18432]
WS0 = 36864
SLOT = 32768
QX = 106496
KM1 = 16384

OS0 = 98304
OB0 = 65536
FLAG1 = 0x1400000
FLAG2 = FLAG1 + 8192
PART0 = 0x1600000
V_DO = [19, 23, 24, 25]; V_DOO = 20; V_AO = 21; V_BO = [22, 26]
OWN = [[0, 1, 2], [3, 4], [5, 6], [7, 8]]
STG = [f"a[{80+4*i}:{83+4*i}]" for i in range(12)] + [f"a[{232+4*i}:{235+4*i}]" for i in range(6)] + [f"v[{212+4*i}:{215+4*i}]" for i in range(6)]
V_DK = [1, 2]; V_DV = [3, 4]
V_KA = [5, 6, 7, 8]
V_VA = list(range(9, 17))
V_DW = [205, 206, 207, 208]; V_DX = [200, 201, 202, 203, 204]
V_XA = [19, 20]; V_XT = [21, 22]
V_WA = [23, 24, 25, 26]
V_ONES = 28
V_O = 32
V_OT = 160
V_S = 192; V_P = 216; V_NM = 236
def vq(b, n=4): return f"v[{b}:{b+n-1}]"
def aq(b, n=4): return f"a[{b}:{b+n-1}]"
def O_(T, qt): return V_O + (T * 4 + qt) * 4 if qt < 4 else V_OT + T * 4
def S_(buf, kt): return V_S + buf * 8 + kt * 4
def P_(qt): return V_P + qt * 4
def NM_(qt): return V_NM + qt * 4
A_Q = 0
def Q_(qt, u): return A_Q + (qt * 4 + u) * 4 if qt < 4 else 64 + u * 4
A_L = 80
def L_(qt): return A_L + qt * 4
A_K = 100
def K_(buf, kt, u): return A_K + buf * 32 + (kt * 4 + u) * 4
A_V = 164
def Vf(buf, T): return A_V + buf * 32 + T * 4
A_FR = 128
def FA(buf, T): return A_FR + buf * 52 + T * 4
def FB(buf, qt): return A_FR + buf * 52 + 32 + qt * 4

S_X = "s[4:7]"; S_WQ = "s[8:11]"; S_K = "s[12:15]"; S_V = "s[16:19]"; S_OW = "s[20:23]"

class K1:
    def __init__(self, name, mapping="M1", kvflags="nt", wflags="", oflags="", stamps=False, rot=4, lead=2, bursts=(2, 4), exp="", fused=False, inv=True, oloadflags="", woflags="", touch=False, regpf=False, skips=(5, 9)):
        self.touch = touch; self.regpf = regpf; self.skips = skips
        self.exp = exp; self.fused = fused; self.inv = inv; self.oloadflags = oloadflags; self.woflags = woflags
        self.name = name; self.mapping = mapping; self.kvflags = kvflags; self.wflags = wflags; self.oflags = oflags
        self.stamps = stamps; self.rot = rot; self.lead = lead; self.bursts = bursts
        self.p = Prog(); self.uid = 0
    def lab(self, t):
        self.uid += 1
        return f"{self.name}_{t}{self.uid}"
    def g_W(self, slot):
        gs = [mk(f"s_add_u32 m0, s38, {WS0 + slot*16384}")
              + mk(f"buffer_load_dwordx4 v{V_DW[0]}, {S_WQ}, s44 offen {self.wflags} lds")]
        gs[0].insert(1, mk("s_nop 0")[0])
        for k in range(1, 4):
            gs.append(mk(f"buffer_load_dwordx4 v{V_DW[k]}, {S_WQ}, s44 offen offset:{k*1024} {self.wflags} lds"))
        gs[-1] = gs[-1] + mk("s_add_u32 s44, s44, 0x40000\ns_and_b32 s44, s44, 0x3fffff")
        return gs
    def g_X(self, slot):
        gs = [mk(f"s_add_u32 m0, s45, {XS[slot]}\ns_nop 0\nbuffer_load_dwordx4 v{V_DX[0]}, {S_X}, s46 offen {self.wflags} lds")]
        for k in range(1, 4):
            gs.append(mk(f"buffer_load_dwordx4 v{V_DX[k]}, {S_X}, s46 offen offset:{k*1024} {self.wflags} lds"))
        l = self.lab("x5")
        gs.append(mk(f"s_cbranch_vccz {l}\ns_add_u32 m0, s45, {XS[slot] + 4096}\ns_nop 0\n"
                     f"buffer_load_dwordx4 v{V_DX[4]}, {S_X}, s46 offen {self.wflags} lds\n{l}:\n"
                     f"s_add_u32 s46, s46, 128\ns_and_b32 s46, s46, 1023"))
        return gs
    def g_KV(self, region, slot_expr, tile_expr):
        isK = region < 2
        srd = S_K if isK else S_V
        vo = V_DK if isK else V_DV
        return mk(f"s_add_u32 m0, {slot_expr[0]}, {slot_expr[1] + region*8192}\n"
                  f"s_add_u32 s37, {tile_expr[0]}, {tile_expr[1] + (region & 1)*131072}\n"
                  f"buffer_load_dwordx4 v{vo[0]}, {srd}, s37 offen {self.kvflags} lds\n"
                  f"buffer_load_dwordx4 v{vo[1]}, {srd}, s37 offen offset:1024 {self.kvflags} lds")
    def guard(self, group, cmp):
        l = self.lab("g")
        return mk(f"{cmp}\ns_cbranch_scc0 {l}") + group + mk(f"{l}:")
    def bundle_static(self, j, parts="KV"):
        gs = []
        slot = ((j + 4) % 5) * SLOT + (KM1 if j == -1 else 0)
        if "K" in parts and j + 1 <= 15:
            gs += [self.g_KV(r, ("s39", slot), ("s40", (j + 1) * 8192)) for r in (0, 1)]
        if "V" in parts and j >= 0:
            gs += [self.g_KV(r, ("s39", slot), ("s40", j * 8192)) for r in (2, 3)]
        return gs

    def stage_loads(self, jb):
        gs = []
        for r in range(4):
            isK = r < 2
            srd = S_K if isK else S_V
            vo = V_DK if isK else V_DV
            tile = jb + 1 if isK else jb
            q0 = STG[(jb - 1) * 8 + r * 2]; q1 = STG[(jb - 1) * 8 + r * 2 + 1]
            gs.append(mk(f"s_add_u32 s37, s40, {tile*8192 + (r & 1)*131072}\n"
                         f"buffer_load_dwordx4 {q0}, v{vo[0]}, {srd}, s37 offen {self.kvflags}"))
            gs.append(mk(f"buffer_load_dwordx4 {q1}, v{vo[1]}, {srd}, s37 offen offset:1024 {self.kvflags}"))
        return gs
    def stage_writes(self):
        gs = []
        for jb in (1, 2, 3):
            slot = (jb + 4) % 5
            for r in range(4):
                for ii in range(2):
                    off = slot * SLOT + r * 8192 + ii * 1024
                    base = 28 if off < 65536 else 29
                    gs.append(mk(f"ds_write_b128 v{base}, {STG[(jb-1)*8 + r*2 + ii]} offset:{off % 65536}")[0])
        return gs
    def gen(self):
        p = self.p; e = p.e; L = self.name; stamps = self.stamps; rot = self.rot; lead = self.lead
        e("s_cmp_ge_u32 s2, 256")
        e(f"s_cbranch_scc1 {L}_done")
        stamp(p, 0, stamps)
        e("s_load_dwordx8 s[36:43], s[0:1], 0")
        e("s_load_dwordx8 s[44:51], s[0:1], 40")
        e("s_load_dwordx2 s[54:55], s[0:1], 96")
        if self.fused:
            e("s_load_dwordx2 s[98:99], s[0:1], 32")
            e("s_load_dwordx2 s[100:101], s[0:1], 72")
            e("s_load_dwordx4 s[84:87], s[0:1], 80")
        e("v_lshrrev_b32 v27, 6, v0")
        e("v_and_b32 v0, 63, v0")
        e("v_readfirstlane_b32 s3, v27")
        e("s_and_b32 s52, s2, 7")
        e("s_lshr_b32 s27, s52, 2")
        if self.mapping == "M1":
            e("s_lshr_b32 s28, s2, 5")
            e("s_bfe_u32 s53, s2, 0x20003")
            e("s_and_b32 s52, s52, 3")
            if "swapoct" in self.exp:
                e("s_and_b32 s57, s52, 1\ns_lshl_b32 s57, s57, 1\ns_lshr_b32 s52, s52, 1\ns_or_b32 s52, s52, s57")
            e("s_lshl_b32 s29, s52, 3")
            e("s_lshl_b32 s56, s53, 1")
            e("s_add_u32 s29, s29, s56")
            e("s_mov_b32 s56, s28")
        elif self.mapping == "M4":
            e("s_lshr_b32 s56, s2, 3")
            e("s_and_b32 s53, s56, 7")
            e("s_lshr_b32 s56, s56, 3")
            e("s_and_b32 s57, s52, 1")
            e("s_lshl_b32 s28, s57, 2")
            e("s_add_u32 s28, s28, s56")
            e("s_bfe_u32 s57, s52, 0x10001")
            e("s_lshl_b32 s29, s57, 4")
            e("s_lshl_b32 s57, s53, 1")
            e("s_add_u32 s29, s29, s57")
        elif self.mapping == "M2":
            e("s_lshr_b32 s56, s2, 3")
            e("s_and_b32 s53, s56, 15")
            e("s_lshr_b32 s56, s56, 4")
            e("s_and_b32 s57, s52, 3")
            e("s_lshl_b32 s28, s57, 1")
            e("s_add_u32 s28, s28, s56")
            e("s_lshl_b32 s29, s53, 1")
        if rot == 8:
            e("s_lshl_b32 s26, s56, 1\ns_lshl_b32 s57, s53, 2\ns_add_u32 s26, s26, s57\ns_and_b32 s26, s26, 14")
        elif rot == 4:
            e("s_add_u32 s26, s56, s53\ns_and_b32 s26, s26, 3\ns_lshl_b32 s26, s26, 2")
        elif rot == 2:
            e("s_add_u32 s26, s56, s53\ns_and_b32 s26, s26, 1\ns_lshl_b32 s26, s26, 3")
        else:
            e("s_mov_b32 s26, 0")
        e("s_and_b32 s24, s3, 1")
        e("s_lshr_b32 s25, s3, 1")
        e("v_lshrrev_b32 v27, 5, v0")
        e("s_lshl_b32 s52, s3, 3")
        e("v_add_u32 v27, s52, v27")
        e("v_and_b32 v30, 31, v0")
        for k in range(4):
            e(f"v_add_u32 v28, {2*k}, v27")
            e("v_and_b32 v29, 3, v28")
            e("v_lshlrev_b32 v29, 2, v29")
            e("v_xor_b32 v29, v29, v30")
            e("v_lshlrev_b32 v29, 4, v29")
            e(f"v_lshl_add_u32 v{V_DW[k]}, v28, 13, v29")
            if k: e(f"v_subrev_u32 v{V_DW[k]}, {k*1024}, v{V_DW[k]}")
        e("s_mul_i32 s52, s3, 5\ns_cmp_eq_u32 s3, 3\ns_cselect_b32 s53, 1, 0\ns_sub_u32 s52, s52, s53")
        e("s_lshl_b32 s57, s52, 10")
        e("s_lshl_b32 s52, s52, 3")
        e("v_lshrrev_b32 v27, 3, v0")
        e("v_add_u32 v27, s52, v27")
        e("v_and_b32 v30, 7, v0")
        for k in range(5):
            e(f"v_add_u32 v28, {8*k}, v27")
            e("v_lshrrev_b32 v29, 1, v28")
            e("v_and_b32 v29, 7, v29")
            e("v_xor_b32 v29, v29, v30")
            e("v_lshlrev_b32 v29, 4, v29")
            e(f"v_lshl_add_u32 v{V_DX[k]}, v28, 10, v29")
            if 0 < k < 4: e(f"v_subrev_u32 v{V_DX[k]}, {k*1024}, v{V_DX[k]}")
        e("s_cmp_lt_u32 s3, 2")
        e("s_cselect_b64 vcc, -1, 0")
        e("s_waitcnt lgkmcnt(0)")
        e("s_cmp_eq_u32 s27, 0")
        e("s_cselect_b32 s4, s36, s44\ns_cselect_b32 s5, s37, s45")
        e("s_cselect_b32 s12, s38, s46\ns_cselect_b32 s13, s39, s47")
        e("s_cselect_b32 s16, s40, s48\ns_cselect_b32 s17, s41, s49")
        e("s_cselect_b32 s8, s42, s50\ns_cselect_b32 s9, s43, s51")
        if self.fused: e("s_cselect_b32 s98, s98, s100\ns_cselect_b32 s99, s99, s101")
        e("s_lshl_b32 s39, s3, 11\ns_lshl_b32 s40, s25, 12")
        e("s_mul_i32 s52, s28, 147456")
        e("s_add_u32 s4, s4, s52\ns_addc_u32 s5, s5, 0\ns_mov_b32 s6, 147456\ns_mov_b32 s7, 0x20000")
        e("s_lshl_b32 s52, s29, 8")
        e("s_add_u32 s8, s8, s52\ns_addc_u32 s9, s9, 0\ns_sub_u32 s10, 0x400000, s52\ns_mov_b32 s11, 0x20000")
        e("s_lshl_b32 s38, s3, 12")
        e("s_mov_b32 s45, s57")
        e("s_lshl_b32 s46, s26, 6")
        e("s_lshl_b32 s44, s26, 18")
        for g in self.g_X(0): p.extend(g)
        for g in self.g_W(0): p.extend(g)
        stamp(p, 1, stamps)
        e("s_lshl_b32 s52, s28, 5\ns_add_u32 s52, s52, s29")
        e("s_lshr_b32 s53, s52, 15\ns_lshl_b32 s52, s52, 17")
        e("s_add_u32 s12, s12, s52\ns_addc_u32 s13, s13, s53\ns_mov_b32 s14, 262144\ns_mov_b32 s15, 0x20000")
        e("s_add_u32 s16, s16, s52\ns_addc_u32 s17, s17, s53\ns_mov_b32 s18, 262144\ns_mov_b32 s19, 0x20000")
        e("s_lshl_b32 s52, s27, 3\ns_add_u32 s52, s52, s28\ns_mul_i32 s52, s52, 1179648")
        e("s_add_u32 s20, s54, s52\ns_addc_u32 s21, s55, 0\ns_mov_b32 s22, 1179648\ns_mov_b32 s23, 0x20000")
        e("v_lshrrev_b32 v27, 4, v0")
        e("s_lshl_b32 s52, s24, 3")
        e("v_add_u32 v27, s52, v27")
        e("v_and_b32 v30, 15, v0")
        for ii in range(2):
            e(f"v_add_u32 v29, {4*ii}, v27")
            e(f"v_xor_b32 v31, v29, v30")
            e(f"v_lshlrev_b32 v31, 4, v31")
            e(f"v_lshl_add_u32 v{V_DK[ii]}, v27, 8, v31")
            e(f"v_and_b32 v29, 7, v29")
            e(f"v_lshlrev_b32 v29, 1, v29")
            e(f"v_xor_b32 v31, v29, v30")
            e(f"v_lshlrev_b32 v31, 4, v31")
            e(f"v_lshl_add_u32 v{V_DV[ii]}, v27, 8, v31")
        e("v_and_b32 v27, 15, v0")
        e("v_lshrrev_b32 v28, 4, v0")
        e("v_lshrrev_b32 v29, 1, v27")
        e("v_xor_b32 v29, v29, v28")
        e("s_lshl_b32 s52, s24, 13")
        e("v_lshlrev_b32 v30, 7, v27")
        e("v_add_u32 v30, s52, v30")
        for sp in range(2):
            e(f"v_xor_b32 v31, {4*sp}, v29")
            e(f"v_lshl_add_u32 v{V_XA[sp]}, v31, 4, v30")
        e("s_sub_u32 s52, 16384, s52")
        for sp in range(2):
            e(f"v_add_u32 v{V_XT[sp]}, s52, v{V_XA[sp]}")
        e("v_bfe_u32 v29, v0, 2, 2")
        e("v_lshl_add_u32 v30, v28, 3, v29")
        e("v_lshlrev_b32 v30, 9, v30")
        e(f"v_add_u32 v30, {WS0}, v30")
        e("v_lshlrev_b32 v29, 2, v29")
        e("v_and_b32 v31, 3, v0")
        e("v_xor_b32 v29, v29, v31")
        e("s_lshl_b32 s52, s25, 4\ns_lshl_b32 s53, s24, 3\ns_or_b32 s52, s52, s53")
        e("v_xor_b32 v29, s52, v29")
        for u in range(4):
            e(f"v_xor_b32 v31, {4*u}, v29")
            e(f"v_lshl_add_u32 v{V_WA[u]}, v31, 4, v30")
        e("v_xor_b32 v29, v27, v28")
        e("s_lshl_b32 s53, s24, 3")
        e("v_xor_b32 v29, s53, v29")
        e("s_lshl_b32 s52, s25, 13")
        e(f"s_add_u32 s52, s52, {3*SLOT}")
        e("v_lshlrev_b32 v30, 8, v27")
        e("v_add_u32 v30, s52, v30")
        for u in range(4):
            e(f"v_xor_b32 v31, {4*u}, v29")
            e(f"v_lshl_add_u32 v{V_KA[u]}, v31, 4, v30")
        e("v_bfe_u32 v29, v0, 2, 2")
        e("v_lshl_add_u32 v29, v28, 2, v29")
        e("v_lshlrev_b32 v30, 8, v29")
        e("v_and_b32 v31, 1, v0")
        e("v_lshl_add_u32 v30, v31, 3, v30")
        e("s_lshl_b32 s52, s25, 13")
        e(f"s_add_u32 s52, s52, {3*SLOT + 16384}")
        e("v_add_u32 v30, s52, v30")
        e("v_and_b32 v29, 7, v29")
        e("v_lshlrev_b32 v29, 1, v29")
        e("v_bfe_u32 v31, v0, 1, 1")
        e("v_xor_b32 v29, v29, v31")
        e("s_lshl_b32 s53, s24, 3")
        e("v_xor_b32 v29, s53, v29")
        for T in range(8):
            e(f"v_xor_b32 v31, {2*T}, v29")
            e(f"v_lshl_add_u32 v{V_VA[T]}, v31, 4, v30")
        for r in range(V_O, V_O + 144):
            e(f"v_mov_b32 v{r}, 0")
        for g in self.g_W(1): p.extend(g)

        def rdQ(buf, ks):
            q = []
            wo = (ks % 4) * 16384
            xo = XS[(ks // 2) % 2]
            sp = ks & 1
            for T in range(8):
                u = T >> 1
                q.append(f"ds_read_b64_tr_b16 {aq(FA(buf,T),2)}, v{V_WA[u]} offset:{wo + 8*(T&1)}")
                q.append(f"ds_read_b64_tr_b16 {aq(FA(buf,T)+2,2)}, v{V_WA[u]} offset:{wo + 8*(T&1)+2048}")
            for qt in range(4):
                q.append(f"ds_read_b128 {aq(FB(buf,qt))}, v{V_XA[sp]} offset:{xo + qt*2048}")
            q.append(f"ds_read_b128 {aq(FB(buf,4))}, v{V_XT[sp]} offset:{xo}")
            return mk("\n".join(q))
        def mmQ(buf):
            q = []
            for T in range(8):
                for qt in range(4):
                    q.append(f"v_mfma_f32_16x16x32_bf16 {vq(O_(T,qt))}, {aq(FA(buf,T))}, {aq(FB(buf,qt))}, {vq(O_(T,qt))}")
                if T < 4:
                    q.append(f"v_mfma_f32_16x16x32_bf16 {vq(V_OT+T*4)}, {aq(FA(buf,T))}, {aq(FB(buf,4))}, {vq(V_OT+T*4)}")
            return mk("\n".join(q))
        X = self.exp
        def qbody(s_, wait, dmas):
            if "trQ" in X: e("s_memtime s[92:93]")
            if wait is not None: e(f"s_waitcnt vmcnt({wait}) lgkmcnt(0)")
            else: e("s_waitcnt lgkmcnt(0)")
            if "trQ" in X:
                e("s_memtime s[94:95]")
            e("s_barrier")
            if "trQ" in X:
                e("s_waitcnt lgkmcnt(0)")
                e("s_mov_b32 m0, s96\ns_nop 3\nv_writelane_b32 v17, s92, m0\ns_add_u32 m0, s96, 1\ns_nop 3\nv_writelane_b32 v17, s94, m0\ns_add_u32 s96, s96, 2")
            rd = rdQ((s_ + 1) & 1, (s_ + 1) % 4 + (4 if (s_ + 1) % 4 < 0 else 0)) if (s_ < 15 and "noread" not in X) else []
            if "nodma" in X: dmas = []
            fill = merge_fills(rd, dmas)
            p.extend(interleave(mmQ(s_ & 1) if "nomfma" not in X else mk("s_nop 0"), fill, 0, 27))
        e("s_waitcnt vmcnt(4)")
        e("s_barrier")
        p.extend(rdQ(0, 0))
        for g in self.g_X(1) + self.g_W(2) + self.g_W(3): p.extend(g)
        stamp(p, 2, stamps)
        e("s_mov_b32 s30, 0")
        if "trQ" in X: e("s_mov_b32 s96, 0\nv_mov_b32 v17, 0")
        e(f"{L}_qloop:")
        if not self.regpf:
            waits = [12, 4, 12, 4]
            for k in range(4):
                d = self.g_W(k)
                if k & 1: d = d + self.g_X(((k - 1) // 2) % 2)
                qbody(k, waits[k] if "nodma" not in X else None, d)
        else:
            l24 = self.lab("q24"); ld = self.lab("qd")
            e(f"s_cmp_eq_u32 s30, 0\ns_cbranch_scc0 {l24}\ns_waitcnt vmcnt(12)\ns_branch {ld}\n{l24}:\ns_waitcnt vmcnt(24)\n{ld}:")
            qbody(0, None, self.g_W(0))
            lv = [self.lab("qv") for _ in range(3)]; lj = self.lab("qj")
            e(f"s_cmp_eq_u32 s30, 1\ns_cbranch_scc1 {lv[1]}\ns_cmp_eq_u32 s30, 2\ns_cbranch_scc1 {lv[2]}")
            for it in range(3):
                e(f"{lv[it]}:")
                qbody(1, 4, self.g_W(1) + self.g_X(0) + self.stage_loads(it + 1))
                if it < 2: e(f"s_branch {lj}")
            e(f"{lj}:")
            qbody(2, 20, self.g_W(2))
            qbody(3, 12, self.g_W(3) + self.g_X(1))
        e("s_add_u32 s30, s30, 1")
        e("s_cmp_lt_u32 s30, 3")
        e(f"s_cbranch_scc1 {L}_qloop")
        if not self.regpf:
            qbody(12, 16, self.bundle_static(-1))
            qbody(13, 4, self.bundle_static(0))
            qbody(14, 16, self.pretouch() if (self.fused and self.touch) else [])
            qbody(15, None, self.bundle_static(1))
        else:
            qbody(12, 24, self.bundle_static(-1))
            qbody(13, 4, self.bundle_static(0))
            qbody(14, 16, [])
            e("v_lshlrev_b32 v28, 4, v0\nv_add_u32 v28, s39, v28\nv_add_u32 v29, 0x10000, v28")
            qbody(15, None, self.stage_writes())
        e("s_waitcnt lgkmcnt(0)")
        stamp(p, 3, stamps)

        e(f"s_mov_b32 s48, {fbits(CSCALE):#x}\ns_mov_b32 s49, {fbits(CSCALE):#x}")
        T0 = 176
        k = 0
        for qt in (4, 0, 1, 2, 3):
            for u in range(4 if qt < 4 else 2):
                t = T0 + (k % 4) * 4; k += 1
                for h in range(2):
                    src = O_(2*u+h, qt) if qt < 4 else V_OT + (2*u+h)*4
                    e(f"v_pk_mul_f32 {vq(src,2)}, {vq(src,2)}, s[48:49]")
                    e(f"v_pk_mul_f32 {vq(src+2,2)}, {vq(src+2,2)}, s[48:49]")
                    e(f"v_cvt_pk_bf16_f32 v{t+2*h}, v{src}, v{src+1}")
                    e(f"v_cvt_pk_bf16_f32 v{t+2*h+1}, v{src+2}, v{src+3}")
                for r in range(4): e(f"v_accvgpr_write_b32 a{Q_(qt,u)+r}, v{t+r}")
                if qt == 4:
                    if u == 0:
                        e(f"s_add_u32 s52, s39, {QX}")
                        e(f"v_lshlrev_b32 v27, 4, v0")
                        e(f"v_add_u32 v27, s52, v27")
                    e(f"ds_write_b128 v27, {vq(t)} offset:{u*1024}")
            if lead >= 3 and qt == 1 and not self.regpf:
                for g in self.bundle_static(2): p.extend(g)
            if lead >= 4 and qt == 3 and not self.regpf:
                for g in self.bundle_static(3): p.extend(g)
        e("s_waitcnt lgkmcnt(0)")
        e("s_barrier")
        e("v_xor_b32 v27, 0x800, v27")
        e(f"ds_read_b128 {aq(Q_(4,2))}, v27")
        e(f"ds_read_b128 {aq(Q_(4,3))}, v27 offset:1024")
        for r in range(20): e(f"v_mov_b32 v{V_NM+r}, 0")
        if self.fused: self.fused_setup()
        e("s_mov_b32 s51, 0")
        e(f"{L}_attn:")
        for r in range(4): e(f"v_mov_b32 v{V_ONES+r}, 0x3f803f80")
        for r in range(V_O, V_O + 160): e(f"v_mov_b32 v{r}, 0")
        for r in range(20): e(f"v_mov_b32 v{V_P+r}, 0")
        for r in range(20): e(f"v_accvgpr_write_b32 a{A_L+r}, 0")
        for r in range(64): e(f"v_accvgpr_write_b32 a{A_V+r}, 0")
        for r in range(24): e(f"v_mov_b32 v{V_S+r}, 0xff800000")
        stamp(p, 4, stamps)

        def rdK(buf, extra=0):
            return mk("\n".join(f"ds_read_b128 {aq(K_(buf,kt,u))}, v{V_KA[u]} offset:{kt*4096 + extra}" for kt in range(2) for u in range(4)))
        def rdV(buf):
            q = []
            for T in range(8):
                q.append(f"ds_read_b64_tr_b16 {aq(Vf(buf,T),2)}, v{V_VA[T]}")
                q.append(f"ds_read_b64_tr_b16 {aq(Vf(buf,T)+2,2)}, v{V_VA[T]} offset:4096")
            return mk("\n".join(q))
        e("s_waitcnt lgkmcnt(0)")
        e("s_barrier")
        e("s_cmp_eq_u32 s24, 0")
        e(f"s_cbranch_scc0 {L}_k0p1")
        p.extend(rdK(0, KM1))
        e(f"s_branch {L}_k0done")
        e(f"{L}_k0p1:")
        p.extend(rdK(1, KM1))
        e(f"{L}_k0done:")
        e("s_mov_b32 s30, 0")
        if "trA" in self.exp: e("s_mov_b32 s96, 0")
        e("s_mov_b32 s35, 3")
        if self.fused: e("s_lshl_b32 s41, s26, 16\ns_lshl_b32 s42, s3, 12")
        if self.regpf:
            issue = []; nb = 4
            for j in range(16):
                if j in self.skips or nb > 15: continue
                issue.append((j, nb)); nb += 1
            assert nb == 16, issue
            self.issue = issue
            mV = sum(1 << j for j, n in issue); mK = sum(1 << j for j, n in issue if n < 15)
            e(f"s_mov_b32 s43, {mV}\ns_mov_b32 s44, {mK}")
        e(f"s_add_u32 s31, s39, {((lead+4)%5)*SLOT}")
        e(f"s_add_u32 s32, s40, {(lead+1)*8192}")
        e(f"s_add_u32 s33, s40, {lead*8192}")
        e("s_cmp_eq_u32 s24, 0")
        e(f"s_cbranch_scc0 {L}_bodyB")

        def ladder(vals, tag):
            runs = []
            for j, v in enumerate(vals):
                if runs and runs[-1][2] == v: runs[-1][1] = j
                else: runs.append([j, j, v])
            done = self.lab(tag + "d")
            if len(runs) == 1:
                e(f"s_waitcnt vmcnt({vals[0]})"); return
            big = max(runs, key=lambda r: r[1] - r[0])
            labs = []
            lb = self.lab(tag)
            if big[0] == 0: e(f"s_cmp_le_u32 s30, {big[1]}\ns_cbranch_scc1 {lb}")
            else: e(f"s_sub_u32 s48, s30, {big[0]}\ns_cmp_le_u32 s48, {big[1]-big[0]}\ns_cbranch_scc1 {lb}")
            labs.append((lb, big[2]))
            rest = [r for r in runs if r is not big]
            for r in rest[:-1]:
                l = self.lab(tag); labs.append((l, r[2]))
                e(f"s_cmp_le_u32 s30, {r[1]}\ns_cbranch_scc1 {l}")
            e(f"s_waitcnt vmcnt({rest[-1][2]})")
            e(f"s_branch {done}")
            for k, (l, n) in enumerate(labs):
                e(f"{l}:\ns_waitcnt vmcnt({n})")
                if k + 1 < len(labs): e(f"s_branch {done}")
            e(f"{done}:")
        def nwait(j):
            if self.regpf:
                if j in (1, 2, 3): return 48
                if j == 0: return 0
                n = 0
                for (jj, nb) in self.issue:
                    if jj < j and nb > j: n += (4 if nb == 15 else 8)
                if self.fused and j == 15: n += 8
                return n
            if self.fused and j == 15: return 8
            return sum((4 if i == 15 else 8) for i in range(j + 1, min(j + lead - 1, 15) + 1))
        def top(tag):
            vals = [nwait(j) for j in range(16)]
            if "trA" in self.exp: e("s_memtime s[92:93]")
            ladder(vals, tag)
            e("s_waitcnt lgkmcnt(0)")
            if "trA" in self.exp: e("s_memtime s[94:95]")
            e("s_barrier")
            if "trA" in self.exp:
                e("s_waitcnt lgkmcnt(0)")
                e("s_mov_b32 m0, s96\ns_nop 3\nv_writelane_b32 v18, s92, m0\ns_add_u32 m0, s96, 1\ns_nop 3\nv_writelane_b32 v18, s94, m0\ns_add_u32 s96, s96, 2")
        def dma_groups():
            limV = 16 - lead
            limK = 15 - lead
            cV = "s_bitcmp1_b32 s43, s30" if self.regpf else f"s_cmp_lt_u32 s30, {limV}"
            cK = "s_bitcmp1_b32 s44, s30" if self.regpf else f"s_cmp_lt_u32 s30, {limK}"
            post = mk(f"s_add_u32 s32, s32, 8192\ns_add_u32 s33, s33, 8192\ns_add_u32 s31, s31, 32768\n"
                      f"s_add_u32 s48, s39, {5*SLOT}\ns_cmp_ge_u32 s31, s48\ns_cselect_b32 s48, {5*SLOT}, 0\ns_sub_u32 s31, s31, s48")
            gs = [self.guard(self.g_KV(r, ("s31", 0), ("s32", 0)), cK) for r in (0, 1)]
            gs += [self.guard(self.g_KV(2, ("s31", 0), ("s33", 0)), cV), self.guard(self.g_KV(3, ("s31", 0), ("s33", 0)) + post, cV)]
            return gs
        def adv_read():
            q = ["s_add_u32 s35, s35, 1", "s_cmp_eq_u32 s35, 5", f"s_mov_b32 s34, {SLOT}", f"s_cmov_b32 s34, {-4*SLOT}", "s_cselect_b32 s35, 0, s35"]
            g = [mk("\n".join(q))]
            for r in V_KA + V_VA:
                g.append(mk(f"v_add_u32 v{r}, s34, v{r}")[0])
            return g
        def QK(ebuf, qt, sb):
            q = []
            for u in range(4):
                for kt in range(2):
                    c = vq(NM_(qt)) if u == 0 else vq(S_(sb, kt))
                    q.append(f"v_mfma_f32_16x16x32_bf16 {vq(S_(sb,kt))}, {aq(K_(ebuf,kt,u))}, {aq(Q_(qt,u))}, {c}")
            return mk("\n".join(q))
        def SM(qt, sb):
            q = []
            for kt in range(2):
                b = S_(sb, kt)
                for r in range(4): q.append(f"v_exp_f32 v{b+r}, v{b+r}")
            for kt in range(2):
                b = S_(sb, kt)
                q.append(f"v_cvt_pk_bf16_f32 v{P_(qt)+2*kt}, v{b}, v{b+1}")
                q.append(f"v_cvt_pk_bf16_f32 v{P_(qt)+2*kt+1}, v{b+2}, v{b+3}")
            return mk("\n".join(q))
        def PV(vbuf, qt):
            q = []
            for T in range(8):
                q.append(f"v_mfma_f32_16x16x32_bf16 {vq(O_(T,qt))}, {aq(Vf(vbuf,T))}, {vq(P_(qt))}, {vq(O_(T,qt))}")
            q.append(f"v_mfma_f32_16x16x32_bf16 {aq(L_(qt))}, {vq(V_ONES)}, {vq(P_(qt))}, {aq(L_(qt))}")
            return mk("\n".join(q))
        def body(typ, do_qk=True):
            ebuf = 0 if typ == "A" else 1
            if typ == "A":
                qk = [0, 1, 2, 3, 4]; sb = [0, 1, 2, 0, 1]; pv = [0, 1, 2, 3]; carried = None
            else:
                qk = [0, 1, 2, 3]; sb = [2, 0, 1, 2]; pv = [0, 1, 2, 3, 4]; carried = (4, 1)
            reads = (rdK(ebuf ^ 1) + rdV(ebuf)) if do_qk else []
            dmas = dma_groups() if do_qk else []
            if self.fused:
                if do_qk:
                    pre = []
                    for c in range(2):
                        pre += mk(f"s_add_u32 m0, s42, {c*16384}\ns_add_u32 s36, s41, {c*65536}\n"
                                  f"buffer_load_dwordx4 v{V_DO[0]}, {S_WQ}, s36 offen {self.woflags} lds")
                        for k in range(1, 4):
                            pre += mk(f"buffer_load_dwordx4 v{V_DO[k]}, {S_WQ}, s36 offen offset:{1024*k} {self.woflags} lds")
                    pre += mk("s_add_u32 s41, s41, 131072\ns_add_u32 s42, s42, 32768")
                    if "nopre" not in self.exp: dmas = dmas + [self.guard(pre, "s_cmp_ge_u32 s30, 14")]
            nslots = 5
            per = (len(reads) + nslots - 1) // nslots
            for k in range(nslots):
                main = []
                if do_qk and k < len(qk): main += QK(ebuf, qk[k], sb[k])
                if k < len(pv): main += PV(ebuf ^ 1, pv[k])
                fill = []
                if k == 0:
                    if carried: fill += SM(*carried)
                    if do_qk: fill = adv_read() + fill
                elif do_qk:
                    fill += SM(qk[k-1], sb[k-1])
                rd = reads[k*per:(k+1)*per]
                dm = [dmas[k]] if k < len(dmas) else []
                if k == 0:
                    fill = dm + fill + rd
                else:
                    fill = merge_fills(fill, rd, dm)
                p.extend(interleave(main, fill) if main else _flat(fill))
        from asmlib import _flat
        e(f"{L}_bodyA:")
        top("A"); body("A")
        e("s_add_u32 s30, s30, 1\ns_cmp_eq_u32 s30, 16")
        e(f"s_cbranch_scc1 {L}_endB")
        e(f"{L}_bodyB:")
        top("B"); body("B")
        e("s_add_u32 s30, s30, 1\ns_cmp_eq_u32 s30, 16")
        e(f"s_cbranch_scc0 {L}_bodyA")
        e("s_waitcnt lgkmcnt(0)")
        body("A", do_qk=False)
        e(f"s_branch {L}_epi")
        e(f"{L}_endB:")
        e("s_waitcnt lgkmcnt(0)")
        body("B", do_qk=False)
        e(f"{L}_epi:")
        stamp(p, 5, stamps)

        MA = 65536
        e(f"s_mul_i32 s52, s3, 5120\ns_add_u32 s52, s52, {MA}")
        e("v_lshlrev_b32 v17, 4, v0")
        e("v_add_u32 v27, s52, v17")
        for i in range(4):
            e(f"ds_write_b128 v27, {vq(O_(4+i,4))} offset:{i*1024}")
        e(f"ds_write_b128 v27, {aq(L_(4))} offset:4096")
        if self.fused: self.fused_early()
        for qt in range(5):
            e(f"v_accvgpr_read_b32 v{V_S+qt}, a{L_(qt)}")
        e(f"s_mov_b32 s52, {fbits(L_LO):#x}\ns_mov_b32 s53, {fbits(L_HI):#x}")
        self.store_O_setup()
        e("s_mov_b64 s[56:57], exec")
        for qt in range(4):
            e(f"v_cmp_le_f32 vcc, s52, v{V_S+qt}")
            e(f"v_cmp_ge_f32 s[58:59], s53, v{V_S+qt}")
            e(f"v_rcp_f32 v{V_S+qt}, v{V_S+qt}")
            e("s_and_b64 s[56:57], s[56:57], vcc")
            e("s_and_b64 s[56:57], s[56:57], s[58:59]")
        if "epi" in self.exp: stamp(p, 11, stamps)
        for qt in range(4): self.store_O_tile(qt)
        e("s_waitcnt lgkmcnt(0)")
        e("s_barrier")
        e(f"s_xor_b32 s48, s3, 1\ns_mul_i32 s48, s48, 5120\ns_add_u32 s48, s48, {MA}")
        e("v_add_u32 v27, s48, v17")
        for i in range(4):
            e(f"ds_read_b128 {vq(V_P+i*4)}, v27 offset:{i*1024}")
        e(f"ds_read_b128 {vq(V_S+12)}, v27 offset:4096")
        for i in range(4):
            for r in range(4):
                e(f"v_add_f32 v{O_(i,4)+r}, v{O_(i,4)+r}, v{V_P+i*4+r}")
        e(f"v_add_f32 v{V_S+4}, v{V_S+4}, v{V_S+12}")
        e(f"v_cmp_le_f32 vcc, s52, v{V_S+4}")
        e(f"v_cmp_ge_f32 s[58:59], s53, v{V_S+4}")
        e(f"v_rcp_f32 v{V_S+4}, v{V_S+4}")
        e("s_and_b64 s[56:57], s[56:57], vcc")
        e("s_and_b64 s[56:57], s[56:57], s[58:59]")
        e("s_cmp_eq_u64 s[56:57], exec")
        e("s_cselect_b32 s48, 0, 1")
        e("v_mov_b32 v27, s48")
        e(f"s_lshl_b32 s48, s3, 2\ns_add_u32 s48, s48, {MA + 20480}")
        e("v_mov_b32 v28, s48")
        e("ds_write_b32 v28, v27")
        self.store_O_tile(4)
        if "epi" in self.exp: stamp(p, 12, stamps)
        e("s_waitcnt vmcnt(0) lgkmcnt(0)")
        if "epi" in self.exp: stamp(p, 13, stamps)
        e("s_barrier")
        e(f"v_mov_b32 v28, {MA + 20480}")
        e(f"ds_read_b128 {vq(V_S+12)}, v28")
        e(f"v_or_b32 v27, v{V_S+12}, v{V_S+13}")
        e(f"v_or_b32 v28, v{V_S+14}, v{V_S+15}")
        e("v_or_b32 v27, v27, v28")
        e("v_readfirstlane_b32 s48, v27")
        e("s_cmp_eq_u32 s51, 0")
        e("s_cselect_b32 s48, s48, 0")
        e("s_cmp_eq_u32 s48, 0")
        e(f"s_cbranch_scc0 {L}_fallback")
        if self.fused:
            self.fused_tail()
        else:
            stamp(p, 6, stamps)
            stamp_flush(p, 7, stamps and f"{L}_stf", "s[54:55]")
        if "trQ" in self.exp or "trA" in self.exp:
            tv = 18 if "trA" in self.exp else 17
            l = self.lab("tr")
            e(f"s_cmp_eq_u32 s3, 0\ns_cbranch_scc0 {l}")
            e(f"s_lshl_b32 s58, s2, 8\ns_add_u32 s58, s58, {65*1024*1024}")
            e("v_lshlrev_b32 v251, 2, v0\nv_add_u32 v251, s58, v251")
            e(f"global_store_dword v251, v{tv}, s[54:55]\ns_waitcnt vmcnt(0)")
            e(f"{l}:")
        e(f"s_branch {L}_done")

        e(f"{L}_fallback:")
        e("s_mov_b32 s51, 1")
        e("s_waitcnt vmcnt(0)")
        e("s_barrier")
        e(f"s_mul_i32 s48, s35, {SLOT}")
        for r in V_KA + V_VA:
            e(f"v_subrev_u32 v{r}, s48, v{r}")
        for qt in range(5):
            e(f"v_mov_b32 v{V_P+qt}, 0xff800000")
        e("s_mov_b32 s30, 0")
        e("s_mov_b32 s32, s40")
        e(f"{L}_mx:")
        for r in (0, 1): p.extend(self.g_KV(r, ("s39", 0), ("s32", 0)))
        e("s_waitcnt vmcnt(0)\ns_barrier")
        p.extend(rdK(0))
        for qt in range(5):
            for u in range(4):
                for kt in range(2):
                    c = "0" if u == 0 else vq(S_(0, kt))
                    e(f"v_mfma_f32_16x16x32_bf16 {vq(S_(0,kt))}, {aq(K_(0,kt,u))}, {aq(Q_(qt,u))}, {c}")
            for r in range(0, 8, 2):
                e(f"v_max3_f32 v{V_P+qt}, v{V_S+r}, v{V_S+r+1}, v{V_P+qt}")
        e("s_waitcnt lgkmcnt(0)\ns_barrier")
        e("s_add_u32 s32, s32, 8192\ns_add_u32 s30, s30, 1\ns_cmp_lt_u32 s30, 16")
        e(f"s_cbranch_scc1 {L}_mx")
        e("v_xor_b32 v27, 16, v0\nv_lshlrev_b32 v27, 2, v27")
        e("v_xor_b32 v28, 32, v0\nv_lshlrev_b32 v28, 2, v28")
        for qt in range(5):
            e(f"ds_bpermute_b32 v{V_S}, v27, v{V_P+qt}")
            e(f"v_max_f32 v{V_P+qt}, v{V_P+qt}, v{V_S}")
            e(f"ds_bpermute_b32 v{V_S}, v28, v{V_P+qt}")
            e(f"v_max_f32 v{V_P+qt}, v{V_P+qt}, v{V_S}")
            for r in range(4):
                e(f"v_sub_f32 v{NM_(qt)+r}, 0, v{V_P+qt}")
        for r in V_KA + V_VA:
            e(f"v_add_u32 v{r}, {3*SLOT}, v{r}")
        for j in range(-1, lead):
            for g in self.bundle_static(j): p.extend(g)
        e("s_waitcnt vmcnt(0)")
        e(f"s_branch {L}_attn")
        e(f"{L}_done:")
        e("s_endpgm")
        return p

    def g_Wo(self, slot, kimm):
        gs = [mk(f"s_add_u32 m0, s38, {slot*16384}\ns_add_u32 s36, s41, {kimm*65536}\n"
                 f"buffer_load_dwordx4 v{V_DO[0]}, {S_WQ}, s36 offen {self.woflags} lds")]
        for k in range(1, 4):
            gs.append(mk(f"buffer_load_dwordx4 v{V_DO[k]}, {S_WQ}, s36 offen offset:{1024*k} {self.woflags} lds"))
        return gs
    def pretouch(self):
        q = []
        q.append("s_lshl_b32 s52, s27, 3\ns_add_u32 s52, s52, s28\ns_mul_i32 s53, s52, 1179648")
        q.append("s_bfe_u32 s48, s2, 0x20003\ns_lshl_b32 s52, s52, 2\ns_add_u32 s52, s52, s48\ns_mul_i32 s52, s52, 294912")
        q.append(f"s_add_u32 s52, s52, {PART0}")
        q.append("v_mov_b32 v209, s53")
        q.append("s_add_u32 s53, s53, 0x100000\nv_writelane_b32 v209, s53, 1")
        q.append(f"s_mov_b32 s53, {FLAG1}\nv_writelane_b32 v209, s53, 2")
        q.append("v_writelane_b32 v209, s52, 3\ns_add_u32 s52, s52, 0x47ffc\nv_writelane_b32 v209, s52, 4")
        q.append("global_load_dword v210, v209, s[54:55]")
        q.append("s_mul_i32 s52, s28, 294912\nv_mov_b32 v209, s52\ns_add_u32 s52, s52, 0x47ffc\nv_writelane_b32 v209, s52, 1")
        q.append("global_load_dword v211, v209, s[84:85]")
        q.append("s_and_b32 s52, s2, 3\ns_lshl_b32 s52, s52, 20\nv_mov_b32 v209, s52\ns_add_u32 s52, s52, 0xffffc\nv_writelane_b32 v209, s52, 1")
        q.append("global_load_dword v212, v209, s[98:99]")
        l = self.lab("pt")
        return [mk(f"s_cmp_eq_u32 s3, 3\ns_cbranch_scc0 {l}") + mk("\n".join(q)) + mk(f"{l}:")]
    def fused_setup(self):
        e = self.p.e
        e("s_and_b32 s46, s2, 3\ns_bfe_u32 s47, s2, 0x20003")
        e("s_lshl_b32 s52, s46, 20\ns_lshl_b32 s53, s47, 8\ns_add_u32 s52, s52, s53")
        e("s_add_u32 s8, s98, s52\ns_addc_u32 s9, s99, 0\ns_sub_u32 s10, 0x400000, s52\ns_mov_b32 s11, 0x20000")
        e("v_lshrrev_b32 v27, 4, v0")
        e("v_lshlrev_b32 v28, 2, v27")
        e("v_and_b32 v29, 15, v0")
        e("v_xor_b32 v28, v28, v29")
        e("v_lshlrev_b32 v28, 4, v28")
        e("s_lshl_b32 s52, s3, 4")
        e("v_add_u32 v27, s52, v27")
        e(f"v_lshl_add_u32 v{V_DO[0]}, v27, 10, v28")
        for k in range(1, 4): e(f"v_add_u32 v{V_DO[k]}, {3072*k}, v{V_DO[0]}")
        e("v_lshlrev_b32 v27, 4, v0")
        e(f"v_add_u32 v{V_DOO}, s45, v27")
        e(f"v_add_u32 v{V_BO[0]}, {OB0}, v27")
        e(f"v_add_u32 v{V_BO[1]}, {OB0 + 2*18432}, v27")
        e("v_lshrrev_b32 v27, 4, v0")
        e("v_bfe_u32 v28, v0, 2, 2")
        e("v_lshl_add_u32 v27, v27, 2, v28")
        e("v_lshlrev_b32 v28, 2, v28")
        e("v_and_b32 v29, 3, v0")
        e("s_lshl_b32 s52, s3, 2")
        e("v_add_u32 v29, s52, v29")
        e("v_xor_b32 v28, v28, v29")
        e("v_lshlrev_b32 v28, 4, v28")
        e(f"v_lshl_add_u32 v{V_AO}, v27, 8, v28")
        l = self.lab("nonce")
        e(f"s_cmp_eq_u32 s2, 0\ns_cbranch_scc0 {l}\ns_cmp_eq_u32 s3, 0\ns_cbranch_scc0 {l}")
        e("s_memrealtime s[88:89]\ns_waitcnt lgkmcnt(0)\ns_or_b32 s88, s88, 1")
        e("v_mov_b32 v30, s88\nv_mov_b32 v31, s89\nv_mov_b32 v29, 0")
        e("s_mov_b64 exec, 1\ns_nop 4")
        e("global_store_dwordx2 v29, v[30:31], s[86:87] sc1")
        e("s_mov_b64 exec, -1")
        e(f"{l}:")
    def fused_early(self):
        e = self.p.e
        l = self.lab("early")
        e(f"s_cmp_eq_u32 s3, 0\ns_cbranch_scc0 {l}")
        e("v_mov_b32 v27, 0")
        e("global_load_dwordx2 v[240:241], v27, s[86:87] sc1")
        if self.inv: e("buffer_inv sc1")
        e(f"{l}:")
    def poll(self, base_sreg, tag):
        e = self.p.e
        lp = self.lab(tag + "p"); dn = self.lab(tag + "d")
        e("s_mov_b64 exec, 15\ns_nop 4")
        e(f"v_lshlrev_b32 v27, 3, v0\nv_add_u32 v27, {base_sreg}, v27")
        e("s_mov_b32 s97, 0")
        e(f"{lp}:")
        e("global_load_dwordx2 v[30:31], v27, s[54:55] sc1")
        e("s_waitcnt vmcnt(0)")
        e("v_cmp_eq_u32 vcc, s88, v30\nv_cmp_eq_u32 s[56:57], s89, v31")
        e("s_nop 3\ns_and_b64 s[56:57], s[56:57], vcc\ns_cmp_eq_u64 s[56:57], exec")
        e(f"s_cbranch_scc1 {dn}")
        e(f"s_sleep 1\ns_add_u32 s97, s97, 1\ns_cmp_lt_u32 s97, 0x40000\ns_cbranch_scc1 {lp}")
        e(f"{dn}:")
        e("s_mov_b64 exec, -1")
    def signal(self, base_sreg, member_sreg):
        e = self.p.e
        e(f"s_lshl_b32 s48, {member_sreg}, 3\ns_add_u32 s48, s48, {base_sreg}")
        e("v_mov_b32 v27, s48\nv_mov_b32 v30, s88\nv_mov_b32 v31, s89")
        e("s_mov_b64 exec, 1\ns_nop 4")
        e("global_store_dwordx2 v27, v[30:31], s[54:55] sc1")
        e("s_mov_b64 exec, -1")
    def fused_tail(self):
        p = self.p; e = p.e; L = self.name; stamps = self.stamps
        stamp(p, 6, stamps)
        e("s_and_b32 s46, s2, 3\ns_bfe_u32 s47, s2, 0x20003")
        e("s_lshl_b32 s52, s27, 2\ns_add_u32 s52, s52, s46\ns_lshl_b32 s52, s52, 3\ns_add_u32 s52, s52, s28")
        e(f"s_lshl_b32 s52, s52, 7\ns_add_u32 s43, s52, {FLAG1}")
        e("s_lshl_b32 s52, s27, 3\ns_add_u32 s52, s52, s28\ns_lshl_b32 s52, s52, 2\ns_add_u32 s52, s52, s47")
        e(f"s_mul_i32 s53, s52, 294912\ns_add_u32 s53, s53, {PART0}")
        e(f"s_lshl_b32 s52, s52, 7\ns_add_u32 s44, s52, {FLAG2}")
        e("s_add_u32 s4, s54, s53\ns_addc_u32 s5, s55, 0\ns_mov_b32 s6, 294912\ns_mov_b32 s7, 0x20000")
        e("s_mov_b32 s12, s84\ns_mov_b32 s13, s85\ns_mov_b32 s14, 2359296\ns_mov_b32 s15, 0x20000")
        e("s_mul_i32 s45, s3, 5\ns_cmp_eq_u32 s3, 3\ns_cselect_b32 s53, 1, 0\ns_sub_u32 s45, s45, s53\ns_lshl_b32 s45, s45, 10")
        for r in range(32, 104): e(f"v_mov_b32 v{r}, 0")
        lw = self.lab("w0")
        e(f"s_cmp_eq_u32 s3, 0\ns_cbranch_scc0 {lw}")
        lp = self.lab("np"); dn = self.lab("nd")
        e("s_mov_b32 s97, 0\nv_mov_b32 v27, 0")
        e("v_readfirstlane_b32 s88, v240\nv_readfirstlane_b32 s89, v241")
        e(f"s_nop 3\ns_cmp_lg_u32 s88, 0\ns_cbranch_scc1 {dn}")
        e(f"{lp}:")
        e("global_load_dwordx2 v[30:31], v27, s[86:87] sc1\ns_waitcnt vmcnt(0)")
        e("v_readfirstlane_b32 s88, v30\nv_readfirstlane_b32 s89, v31")
        e(f"s_nop 3\ns_cmp_lg_u32 s88, 0\ns_cbranch_scc1 {dn}")
        e(f"s_sleep 1\ns_add_u32 s97, s97, 1\ns_cmp_lt_u32 s97, 0x40000\ns_cbranch_scc1 {lp}")
        e(f"{dn}:")
        self.signal("s43", "s47")
        self.poll("s43", "f1")
        e(f"{lw}:")
        e("s_barrier")
        stamp(p, 7, stamps)
        def FAo(buf, ks, ee): return buf * 88 + ks * 8 + ee * 4
        def FBo(buf, ks, qt): return buf * 88 + 16 + (ks * 9 + qt) * 4
        def acc(ee, qt): return 32 + (ee * 9 + qt) * 4
        def rdO(buf, slot):
            q = []
            for ks in range(2):
                for ee in range(2):
                    for hf in range(2):
                        q.append(f"ds_read_b64_tr_b16 {aq(FAo(buf,ks,ee)+2*hf,2)}, v{V_AO} offset:{slot*16384 + ks*8192 + hf*4096 + 8*ee}")
                for qt in range(9):
                    q.append(f"ds_read_b128 {aq(FBo(buf,ks,qt))}, v{V_BO[slot >> 1]} offset:{(slot & 1)*18432 + (ks*9+qt)*1024}")
            return mk("\n".join(q))
        def mmO(buf):
            q = []
            for ks in range(2):
                for ee in range(2):
                    for qt in range(9):
                        q.append(f"v_mfma_f32_16x16x32_bf16 {vq(acc(ee,qt))}, {aq(FAo(buf,ks,ee))}, {aq(FBo(buf,ks,qt))}, {vq(acc(ee,qt))}")
            return mk("\n".join(q))
        def g_O(slot, kimm):
            fl = self.oloadflags
            gs = [mk(f"s_add_u32 m0, s45, {OB0 + slot*18432}\ns_add_u32 s37, s50, {kimm*18432}\n"
                     f"buffer_load_dwordx4 v{V_DOO}, {S_OW}, s37 offen {fl} lds")]
            for k in range(1, 4):
                gs.append(mk(f"buffer_load_dwordx4 v{V_DOO}, {S_OW}, s37 offen offset:{k*1024} {fl} lds"))
            l = self.lab("o5")
            gs.append(mk(f"s_cbranch_vccz {l}\ns_add_u32 m0, s45, {OB0 + slot*18432 + 4096}\ns_add_u32 s37, s37, 4096\n"
                         f"buffer_load_dwordx4 v{V_DOO}, {S_OW}, s37 offen {fl} lds\n{l}:"))
            return gs
        X = self.exp
        e("s_cmp_lt_u32 s3, 2\ns_cselect_b64 vcc, -1, 0")
        e("s_lshl_b32 s38, s3, 12")
        e(f"s_mul_i32 s33, s46, 294912")
        e("s_mul_i32 s48, s26, 18432\ns_add_u32 s50, s33, s48")
        for g in g_O(0, 0) + g_O(1, 1): p.extend(g)
        e("s_waitcnt vmcnt(4)")
        e("s_barrier")
        p.extend(rdO(0, 0))
        for g in g_O(2, 2) + g_O(3, 3): p.extend(g)
        e("s_add_u32 s34, s26, 4\ns_and_b32 s34, s34, 15")
        e("s_mul_i32 s48, s34, 18432\ns_add_u32 s50, s33, s48\ns_lshl_b32 s41, s34, 16")
        e("s_mov_b32 s30, 0")
        if "trO" in self.exp: e("s_mov_b32 s96, 0")
        e(f"{L}_oloop:")
        for k in range(4):
            if "trO" in X: e("s_memtime s[92:93]")
            if k < 3:
                lc = self.lab("oc"); ld = self.lab("od")
                first = [8, 8, 16][k]
                if first != 16:
                    e(f"s_cmp_eq_u32 s30, 0\ns_cbranch_scc0 {lc}\ns_waitcnt vmcnt({[8, 12, 16][k]})\ns_branch {ld}\n{lc}:\ns_waitcnt vmcnt(16)\n{ld}:")
                else:
                    e("s_waitcnt vmcnt(16)")
            else:
                e("s_waitcnt vmcnt(16)")
            e("s_waitcnt lgkmcnt(0)")
            if "trO" in X: e("s_memtime s[94:95]")
            e("s_barrier")
            if "trO" in X:
                e("s_waitcnt lgkmcnt(0)")
                e("s_mov_b32 m0, s96\ns_nop 3\nv_writelane_b32 v18, s92, m0\ns_add_u32 m0, s96, 1\ns_nop 3\nv_writelane_b32 v18, s94, m0\ns_add_u32 s96, s96, 2")
            dm = ([] if "onoO" in X else g_O(k, k)) + ([] if "onoW" in X else self.g_Wo(k, k))
            fill = merge_fills(rdO((k + 1) & 1, (k + 1) & 3) if "onord" not in X else [], dm)
            p.extend(interleave(mmO(k & 1) if "onomm" not in X else mk("s_nop 0"), fill, 0, 29))
        e("s_add_u32 s34, s34, 4\ns_and_b32 s34, s34, 15")
        e("s_mul_i32 s48, s34, 18432\ns_add_u32 s50, s33, s48\ns_lshl_b32 s41, s34, 16")
        e("s_add_u32 s30, s30, 1\ns_cmp_lt_u32 s30, 4")
        e(f"s_cbranch_scc1 {L}_oloop")
        e("s_waitcnt lgkmcnt(0)")
        stamp(p, 8, stamps)
        e("v_lshlrev_b32 v27, 4, v0\ns_lshl_b32 s52, s3, 11\nv_add_u32 v26, s52, v27")
        e("v_and_b32 v25, 15, v0\nv_lshlrev_b32 v25, 11, v25\nv_lshrrev_b32 v24, 4, v0\nv_lshl_add_u32 v25, v24, 4, v25")
        e("s_lshl_b32 s52, s3, 6\nv_add_u32 v25, s52, v25")
        e("s_mul_i32 s52, s28, 294912\ns_lshl_b32 s53, s27, 10\ns_add_u32 s52, s52, s53\ns_lshl_b32 s53, s47, 8\ns_add_u32 s45, s52, s53")
        e("s_mul_i32 s42, s46, 73728")
        labs = [self.lab(f"oc{o}") for o in range(4)]
        fin = self.lab("ofin")
        for o in range(1, 4):
            e(f"s_cmp_eq_u32 s46, {o}\ns_cbranch_scc1 {labs[o]}")
        for o in range(4):
            e(f"{labs[o]}:")
            for qt in range(9):
                if qt in OWN[o]: continue
                e(f"s_add_u32 s48, s42, {qt*8192}")
                for ee in range(2):
                    e(f"buffer_store_dwordx4 {vq(acc(ee,qt))}, v26, s[4:7], s48 offen offset:{ee*1024} sc1")
            e("s_waitcnt vmcnt(0)\ns_barrier")
            lw = self.lab("w1")
            e(f"s_cmp_eq_u32 s3, 0\ns_cbranch_scc0 {lw}")
            self.signal("s44", "s46")
            self.poll("s44", "f2")
            e(f"{lw}:")
            e("s_barrier")
            stamp(p, 9, stamps)
            T = 112
            k = 0
            for d in range(1, 4):
                src = (o + d) & 3
                for qt in OWN[o]:
                    e(f"s_mov_b32 s48, {src*73728 + qt*8192}")
                    for ee in range(2):
                        e(f"buffer_load_dwordx4 {vq(T + k*4)}, v26, s[4:7], s48 offen offset:{ee*1024} sc1"); k += 1
            e("s_waitcnt vmcnt(0)")
            k = 0
            for d in range(1, 4):
                for qt in OWN[o]:
                    for ee in range(2):
                        for r in range(4):
                            e(f"v_add_f32 v{acc(ee,qt)+r}, v{acc(ee,qt)+r}, v{T + k*4 + r}")
                        k += 1
            for qt in OWN[o]:
                a0, a1 = acc(0, qt), acc(1, qt)
                e(f"v_cvt_pk_bf16_f32 v{a0}, v{a0}, v{a0+1}\nv_cvt_pk_bf16_f32 v{a0+1}, v{a0+2}, v{a0+3}")
                e(f"v_cvt_pk_bf16_f32 v{a0+2}, v{a1}, v{a1+1}\nv_cvt_pk_bf16_f32 v{a0+3}, v{a1+2}, v{a1+3}")
                e(f"s_add_u32 s48, s45, {qt*32768}")
                e(f"buffer_store_dwordx4 {vq(a0)}, v25, s[12:15], s48 offen")
            if o < 3: e(f"s_branch {fin}")
        e(f"{fin}:")
        e("s_waitcnt vmcnt(0)")
        stamp(p, 10, stamps)
        stamp_flush(p, 14 if "epi" in self.exp else 11, stamps and f"{L}_stf", "s[54:55]")
        if "trO" in self.exp:
            l = self.lab("tr")
            e(f"s_cmp_eq_u32 s3, 0\ns_cbranch_scc0 {l}")
            e(f"s_lshl_b32 s58, s2, 8\ns_add_u32 s58, s58, {65*1024*1024}")
            e("v_lshlrev_b32 v251, 2, v0\nv_add_u32 v251, s58, v251")
            e(f"global_store_dword v251, v18, s[54:55]\ns_waitcnt vmcnt(0)")
            e(f"{l}:")
    def store_O_setup(self):
        e = self.p.e
        e("s_add_u32 s36, s29, s25")
        e("s_lshl_b32 s36, s36, 2")
        e("s_lshl_b32 s37, s24, 1")
        for u in range(4):
            e(f"s_xor_b32 s48, s37, {u}")
            e("s_add_u32 s48, s48, s36")
            e("s_mul_i32 s48, s48, 9216")
            e("s_lshl_b32 s49, s24, 12")
            e(f"s_add_u32 s{42+u}, s48, s49")
            if u < 2: e(f"s_add_u32 s{46+u}, s48, 8192")
    def store_O_tile(self, qt):
        e = self.p.e
        rc = V_S + qt
        e(f"v_mov_b32 v{V_S+9}, v{rc}\nv_mov_b32 v{V_S+8}, v{rc}")
        for u in range(4 if qt < 4 else 2):
            a, b = O_(2*u, qt), O_(2*u+1, qt)
            for x in (a, a+2, b, b+2):
                e(f"v_pk_mul_f32 {vq(x,2)}, {vq(x,2)}, {vq(V_S+8,2)}")
            e(f"v_cvt_pk_bf16_f32 v{a}, v{a}, v{a+1}")
            e(f"v_cvt_pk_bf16_f32 v{a+1}, v{a+2}, v{a+3}")
            e(f"v_cvt_pk_bf16_f32 v{a+2}, v{b}, v{b+1}")
            e(f"v_cvt_pk_bf16_f32 v{a+3}, v{b+2}, v{b+3}")
            if qt < 4:
                e(f"buffer_store_dwordx4 {vq(a)}, v17, {S_OW}, s{42+u} offen offset:{qt*1024} {self.oflags}")
            else:
                e(f"buffer_store_dwordx4 {vq(a)}, v17, {S_OW}, s{46+u} offen {self.oflags}")

def gen_k1(name, **kw):
    return K1(name, **kw).gen()

if __name__ == "__main__":
    import sys
    st = len(sys.argv) > 1
    def out(fn, **kw):
        p = gen_k1("k1_kernel", stamps=st, **kw)
        txt, n = finalize(p, "k1_kernel")
        print(fn, "nops inserted", n, "instrs", len(p))
        open(fn, "w").write("; @launch kernel=k1_kernel grid=(256,1,1) block=(256,1,1) lds=163840\n.amdgcn_target \"amdgcn-amd-amdhsa--gfx950\"\n.text\n" + txt + kd("k1_kernel"))
    out("k1_only.s")
    for x in sys.argv[2:]:
        if x.startswith("rot"): out(f"k1_{x}.s", rot=int(x[3:]))
        elif x == "regpf": out(f"k1_{x}.s", regpf=True, lead=4)
        elif x.startswith("lead"): out(f"k1_{x}.s", lead=int(x[4:]))
        elif x.startswith("M"): out(f"k1_{x}.s", mapping=x)
        elif x.startswith("fused"): out(f"k1_{x}.s", fused=True, oflags="sc1", inv=("noinv" not in x), oloadflags=("sc1" if "osc1" in x else ""))
        elif x.startswith("o_"): out(f"k1_{x}.s", oflags=x[2:].replace("_", " "))
        elif x == "wnt": out(f"k1_{x}.s", wflags="nt")
        elif x == "kvdef": out(f"k1_{x}.s", kvflags="")
        else: out(f"k1_{x}.s", exp=x)
```

```python
import sys
from gen_k1 import gen_k1
from gen_k2 import gen_k2, kd, finalize
HEADER = open("concat_heads__gqa_block_cached__mha_block_cached__near_ridge.s.ref").read().split("; Override launch")[0]
import gen_k2 as G2
def build(out, stamps=False, dbg=False, **kw):
    if dbg: G2.DBG_MODE[0] = (512, 0)
    k1 = gen_k1("attn_kernel", stamps=stamps or dbg, **kw.get("k1", {}))
    if dbg: G2.DBG_MODE[0] = (0, 8)
    k2 = gen_k2("oproj_kernel", stamps=dbg, **kw.get("k2", {}))
    G2.DBG_MODE[0] = None
    t1, n1 = finalize(k1, "attn_kernel")
    t2, n2 = finalize(k2, "oproj_kernel")
    s = HEADER
    s += "; @launch kernel=attn_kernel grid=(256,1,1) block=(256,1,1) lds=163840\n"
    s += "; @launch kernel=oproj_kernel grid=(256,1,1) block=(256,1,1) lds=131072\n"
    s += '.amdgcn_target "amdgcn-amd-amdhsa--gfx950"\n.text\n'
    s += t1 + kd("attn_kernel") + t2 + kd("oproj_kernel")
    open(out, "w").write(s)
    print(out, "nops", n1, n2, "bytes", len(s))
KNAME = "concat_heads__gqa_block_cached__mha_block_cached__near_ridge_kernel"
def build_fused(out, stamps=False, dbg=False, **kw):
    G2.STAMP_CYC[0] = False
    if dbg: G2.DBG_MODE[0] = (0, 2); stamps = True
    kw.setdefault("oflags", "sc1"); kw.setdefault("inv", False); kw.setdefault("oloadflags", "sc1")
    k = gen_k1(KNAME, stamps=stamps, fused=True, **kw)
    t, n = finalize(k, KNAME)
    s = HEADER
    s += "; @launch grid=(256,1,1) block=(256,1,1) lds=163840\n"
    s += '.amdgcn_target "amdgcn-amd-amdhsa--gfx950"\n.text\n'
    s += t + kd(KNAME)
    open(out, "w").write(s)
    G2.STAMP_CYC[0] = True
    G2.DBG_MODE[0] = None
    print(out, "nops", n, "bytes", len(s))
if __name__ == "__main__":
    build_fused("f_base.s")
    build_fused("f_st.s", stamps=True)
    build_fused("f_rp_st.s", stamps=True, regpf=True, lead=4)
    build_fused("f_rp.s", regpf=True, lead=4)
    build_fused("f_rp0_st.s", stamps=True, regpf=True, lead=4, skips=())
    build_fused("f_rp2_st.s", stamps=True, regpf=True, lead=4, skips=(8, 11))
    build_fused("f_dbg.s", dbg=True)
    build_fused("f_kvdef.s", kvflags="")
    build_fused("f_noinv.s", inv=False)
    for x in ("trO", "trO_onoO", "trO_onoW", "trO_onoO_onoW", "trO_onomm", "trO_onord"):
        build_fused(f"f_{x}.s", stamps=True, exp=x)
    build_fused("f_epi.s", stamps=True, exp="epi")
    build_fused("f_epi_noinv.s", stamps=True, exp="epi", inv=False)
    build_fused("f_epi_nopre.s", stamps=True, exp="epi_nopre")
    build_fused("f_epi_plain.s", stamps=True, exp="epi", oflags="")
    import sys; sys.exit(0)
    build("concat_heads__gqa_block_cached__mha_block_cached__near_ridge.s")
    build("v_dbg.s", dbg=True)
    build("v_osc1.s", k1=dict(oflags="sc1"))
    build("v_ont.s", k1=dict(oflags="nt"))
    build("v_kvdef.s", k1=dict(kvflags=""))
```

```python
from asmlib import *
from gen_k2 import stamp, stamp_flush, kd, finalize
import struct

def fbits(x): return struct.unpack("<I", struct.pack("<f", x))[0]
CSCALE = 1.4426950408889634 / (128 ** 0.5)
L_LO = 2.0 ** -64
L_HI = 2.0 ** 16

XS = [0, 18432]
WS0 = 36864
SLOT = 32768
QX = 106496
KM1 = 16384

OS0 = 98304
OB0 = 65536
FLAG1 = 0x1400000
FLAG2 = FLAG1 + 8192
PART0 = 0x1600000
V_DO = [19, 23, 24, 25]; V_DOO = 20; V_AO = 21; V_BO = [22, 26]
OWN = [[0, 1, 2], [3, 4], [5, 6], [7, 8]]
STG = [f"a[{80+4*i}:{83+4*i}]" for i in range(12)] + [f"a[{232+4*i}:{235+4*i}]" for i in range(6)] + [f"v[{212+4*i}:{215+4*i}]" for i in range(6)]
V_DK = [1, 2]; V_DV = [3, 4]
V_KA = [5, 6, 7, 8]
V_VA = list(range(9, 17))
V_DW = [205, 206, 207, 208]; V_DX = [200, 201, 202, 203, 204]
V_XA = [19, 20]; V_XT = [21, 22]
V_WA = [23, 24, 25, 26]
V_ONES = 28
V_O = 32
V_OT = 160
V_S = 192; V_P = 216; V_NM = 236
def vq(b, n=4): return f"v[{b}:{b+n-1}]"
def aq(b, n=4): return f"a[{b}:{b+n-1}]"
def O_(T, qt): return V_O + (T * 4 + qt) * 4 if qt < 4 else V_OT + T * 4
def S_(buf, kt): return V_S + buf * 8 + kt * 4
def P_(qt): return V_P + qt * 4
def NM_(qt): return V_NM + qt * 4
A_Q = 0
def Q_(qt, u): return A_Q + (qt * 4 + u) * 4 if qt < 4 else 64 + u * 4
A_L = 80
def L_(qt): return A_L + qt * 4
A_K = 100
def K_(buf, kt, u): return A_K + buf * 32 + (kt * 4 + u) * 4
A_V = 164
def Vf(buf, T): return A_V + buf * 32 + T * 4
A_FR = 128
def FA(buf, T): return A_FR + buf * 52 + T * 4
def FB(buf, qt): return A_FR + buf * 52 + 32 + qt * 4

S_X = "s[4:7]"; S_WQ = "s[8:11]"; S_K = "s[12:15]"; S_V = "s[16:19]"; S_OW = "s[20:23]"

class K1:
    def __init__(self, name, mapping="M1", kvflags="nt", wflags="", oflags="", stamps=False, rot=4, lead=2, bursts=(2, 4), exp="", fused=False, inv=True, oloadflags="", woflags="", touch=False, regpf=False, skips=(5, 9), readback=False, wavex=False, pbf16=False, ownfirst=False):
        self.pbf16 = pbf16; self.ownfirst = ownfirst
        self.readback = readback; self.wavex = wavex
        self.touch = touch; self.regpf = regpf; self.skips = skips
        self.exp = exp; self.fused = fused; self.inv = inv; self.oloadflags = oloadflags; self.woflags = woflags
        self.name = name; self.mapping = mapping; self.kvflags = kvflags; self.wflags = wflags; self.oflags = oflags
        self.stamps = stamps; self.rot = rot; self.lead = lead; self.bursts = bursts
        self.p = Prog(); self.uid = 0
    def lab(self, t):
        self.uid += 1
        return f"{self.name}_{t}{self.uid}"
    def g_W(self, slot):
        gs = [mk(f"s_add_u32 m0, s38, {WS0 + slot*16384}")
              + mk(f"buffer_load_dwordx4 v{V_DW[0]}, {S_WQ}, s44 offen {self.wflags} lds")]
        gs[0].insert(1, mk("s_nop 0")[0])
        for k in range(1, 4):
            gs.append(mk(f"buffer_load_dwordx4 v{V_DW[k]}, {S_WQ}, s44 offen offset:{k*1024} {self.wflags} lds"))
        gs[-1] = gs[-1] + mk("s_add_u32 s44, s44, 0x40000\ns_and_b32 s44, s44, 0x3fffff")
        return gs
    def g_X(self, slot):
        gs = [mk(f"s_add_u32 m0, s45, {XS[slot]}\ns_nop 0\nbuffer_load_dwordx4 v{V_DX[0]}, {S_X}, s46 offen {self.wflags} lds")]
        for k in range(1, 4):
            gs.append(mk(f"buffer_load_dwordx4 v{V_DX[k]}, {S_X}, s46 offen offset:{k*1024} {self.wflags} lds"))
        l = self.lab("x5")
        gs.append(mk(f"s_cbranch_vccz {l}\ns_add_u32 m0, s45, {XS[slot] + 4096}\ns_nop 0\n"
                     f"buffer_load_dwordx4 v{V_DX[4]}, {S_X}, s46 offen {self.wflags} lds\n{l}:\n"
                     f"s_add_u32 s46, s46, 128\ns_and_b32 s46, s46, 1023"))
        return gs
    def g_KV(self, region, slot_expr, tile_expr):
        isK = region < 2
        srd = S_K if isK else S_V
        vo = V_DK if isK else V_DV
        return mk(f"s_add_u32 m0, {slot_expr[0]}, {slot_expr[1] + region*8192}\n"
                  f"s_add_u32 s37, {tile_expr[0]}, {tile_expr[1] + (region & 1)*131072}\n"
                  f"buffer_load_dwordx4 v{vo[0]}, {srd}, s37 offen {self.kvflags} lds\n"
                  f"buffer_load_dwordx4 v{vo[1]}, {srd}, s37 offen offset:1024 {self.kvflags} lds")
    def guard(self, group, cmp):
        l = self.lab("g")
        return mk(f"{cmp}\ns_cbranch_scc0 {l}") + group + mk(f"{l}:")
    def bundle_static(self, j, parts="KV"):
        gs = []
        slot = ((j + 4) % 5) * SLOT + (KM1 if j == -1 else 0)
        if "K" in parts and j + 1 <= 15:
            gs += [self.g_KV(r, ("s39", slot), ("s40", (j + 1) * 8192)) for r in (0, 1)]
        if "V" in parts and j >= 0:
            gs += [self.g_KV(r, ("s39", slot), ("s40", j * 8192)) for r in (2, 3)]
        return gs

    def stage_loads(self, jb):
        gs = []
        for r in range(4):
            isK = r < 2
            srd = S_K if isK else S_V
            vo = V_DK if isK else V_DV
            tile = jb + 1 if isK else jb
            q0 = STG[(jb - 1) * 8 + r * 2]; q1 = STG[(jb - 1) * 8 + r * 2 + 1]
            gs.append(mk(f"s_add_u32 s37, s40, {tile*8192 + (r & 1)*131072}\n"
                         f"buffer_load_dwordx4 {q0}, v{vo[0]}, {srd}, s37 offen {self.kvflags}"))
            gs.append(mk(f"buffer_load_dwordx4 {q1}, v{vo[1]}, {srd}, s37 offen offset:1024 {self.kvflags}"))
        return gs
    def stage_writes(self):
        gs = []
        for jb in (1, 2, 3):
            slot = (jb + 4) % 5
            for r in range(4):
                for ii in range(2):
                    off = slot * SLOT + r * 8192 + ii * 1024
                    base = 28 if off < 65536 else 29
                    gs.append(mk(f"ds_write_b128 v{base}, {STG[(jb-1)*8 + r*2 + ii]} offset:{off % 65536}")[0])
        return gs
    def gen(self):
        p = self.p; e = p.e; L = self.name; stamps = self.stamps; rot = self.rot; lead = self.lead
        e("s_cmp_ge_u32 s2, 256")
        e(f"s_cbranch_scc1 {L}_done")
        stamp(p, 0, stamps)
        e("s_load_dwordx8 s[36:43], s[0:1], 0")
        e("s_load_dwordx8 s[44:51], s[0:1], 40")
        e("s_load_dwordx2 s[54:55], s[0:1], 96")
        if self.fused:
            e("s_load_dwordx2 s[98:99], s[0:1], 32")
            e("s_load_dwordx2 s[100:101], s[0:1], 72")
            e("s_load_dwordx4 s[84:87], s[0:1], 80")
        e("v_lshrrev_b32 v27, 6, v0")
        e("v_and_b32 v0, 63, v0")
        e("v_readfirstlane_b32 s3, v27")
        e("s_and_b32 s52, s2, 7")
        e("s_lshr_b32 s27, s52, 2")
        if self.mapping == "M1":
            e("s_lshr_b32 s28, s2, 5")
            e("s_bfe_u32 s53, s2, 0x20003")
            e("s_and_b32 s52, s52, 3")
            if "swapoct" in self.exp:
                e("s_and_b32 s57, s52, 1\ns_lshl_b32 s57, s57, 1\ns_lshr_b32 s52, s52, 1\ns_or_b32 s52, s52, s57")
            e("s_lshl_b32 s29, s52, 3")
            e("s_lshl_b32 s56, s53, 1")
            e("s_add_u32 s29, s29, s56")
            e("s_mov_b32 s56, s28")
        elif self.mapping == "M4":
            e("s_lshr_b32 s56, s2, 3")
            e("s_and_b32 s53, s56, 7")
            e("s_lshr_b32 s56, s56, 3")
            e("s_and_b32 s57, s52, 1")
            e("s_lshl_b32 s28, s57, 2")
            e("s_add_u32 s28, s28, s56")
            e("s_bfe_u32 s57, s52, 0x10001")
            e("s_lshl_b32 s29, s57, 4")
            e("s_lshl_b32 s57, s53, 1")
            e("s_add_u32 s29, s29, s57")
        elif self.mapping == "M2":
            e("s_lshr_b32 s56, s2, 3")
            e("s_and_b32 s53, s56, 15")
            e("s_lshr_b32 s56, s56, 4")
            e("s_and_b32 s57, s52, 3")
            e("s_lshl_b32 s28, s57, 1")
            e("s_add_u32 s28, s28, s56")
            e("s_lshl_b32 s29, s53, 1")
        if rot == 8:
            e("s_lshl_b32 s26, s56, 1\ns_lshl_b32 s57, s53, 2\ns_add_u32 s26, s26, s57\ns_and_b32 s26, s26, 14")
        elif rot == 4:
            e("s_add_u32 s26, s56, s53\ns_and_b32 s26, s26, 3\ns_lshl_b32 s26, s26, 2")
        elif rot == 2:
            e("s_add_u32 s26, s56, s53\ns_and_b32 s26, s26, 1\ns_lshl_b32 s26, s26, 3")
        else:
            e("s_mov_b32 s26, 0")
        e("s_and_b32 s24, s3, 1")
        e("s_lshr_b32 s25, s3, 1")
        e("v_lshrrev_b32 v27, 5, v0")
        e("s_lshl_b32 s52, s3, 3")
        e("v_add_u32 v27, s52, v27")
        e("v_and_b32 v30, 31, v0")
        for k in range(4):
            e(f"v_add_u32 v28, {2*k}, v27")
            e("v_and_b32 v29, 3, v28")
            e("v_lshlrev_b32 v29, 2, v29")
            e("v_xor_b32 v29, v29, v30")
            e("v_lshlrev_b32 v29, 4, v29")
            e(f"v_lshl_add_u32 v{V_DW[k]}, v28, 13, v29")
            if k: e(f"v_subrev_u32 v{V_DW[k]}, {k*1024}, v{V_DW[k]}")
        e("s_mul_i32 s52, s3, 5\ns_cmp_eq_u32 s3, 3\ns_cselect_b32 s53, 1, 0\ns_sub_u32 s52, s52, s53")
        e("s_lshl_b32 s57, s52, 10")
        e("s_lshl_b32 s52, s52, 3")
        e("v_lshrrev_b32 v27, 3, v0")
        e("v_add_u32 v27, s52, v27")
        e("v_and_b32 v30, 7, v0")
        for k in range(5):
            e(f"v_add_u32 v28, {8*k}, v27")
            e("v_lshrrev_b32 v29, 1, v28")
            e("v_and_b32 v29, 7, v29")
            e("v_xor_b32 v29, v29, v30")
            e("v_lshlrev_b32 v29, 4, v29")
            e(f"v_lshl_add_u32 v{V_DX[k]}, v28, 10, v29")
            if 0 < k < 4: e(f"v_subrev_u32 v{V_DX[k]}, {k*1024}, v{V_DX[k]}")
        e("s_cmp_lt_u32 s3, 2")
        e("s_cselect_b64 vcc, -1, 0")
        e("s_waitcnt lgkmcnt(0)")
        e("s_cmp_eq_u32 s27, 0")
        e("s_cselect_b32 s4, s36, s44\ns_cselect_b32 s5, s37, s45")
        e("s_cselect_b32 s12, s38, s46\ns_cselect_b32 s13, s39, s47")
        e("s_cselect_b32 s16, s40, s48\ns_cselect_b32 s17, s41, s49")
        e("s_cselect_b32 s8, s42, s50\ns_cselect_b32 s9, s43, s51")
        if self.fused: e("s_cselect_b32 s98, s98, s100\ns_cselect_b32 s99, s99, s101")
        e("s_lshl_b32 s39, s3, 11\ns_lshl_b32 s40, s25, 12")
        e("s_mul_i32 s52, s28, 147456")
        e("s_add_u32 s4, s4, s52\ns_addc_u32 s5, s5, 0\ns_mov_b32 s6, 147456\ns_mov_b32 s7, 0x20000")
        e("s_lshl_b32 s52, s29, 8")
        e("s_add_u32 s8, s8, s52\ns_addc_u32 s9, s9, 0\ns_sub_u32 s10, 0x400000, s52\ns_mov_b32 s11, 0x20000")
        e("s_lshl_b32 s38, s3, 12")
        e("s_mov_b32 s45, s57")
        e("s_lshl_b32 s46, s26, 6")
        e("s_lshl_b32 s44, s26, 18")
        for g in self.g_X(0): p.extend(g)
        for g in self.g_W(0): p.extend(g)
        stamp(p, 1, stamps)
        e("s_lshl_b32 s52, s28, 5\ns_add_u32 s52, s52, s29")
        e("s_lshr_b32 s53, s52, 15\ns_lshl_b32 s52, s52, 17")
        e("s_add_u32 s12, s12, s52\ns_addc_u32 s13, s13, s53\ns_mov_b32 s14, 262144\ns_mov_b32 s15, 0x20000")
        e("s_add_u32 s16, s16, s52\ns_addc_u32 s17, s17, s53\ns_mov_b32 s18, 262144\ns_mov_b32 s19, 0x20000")
        e("s_lshl_b32 s52, s27, 3\ns_add_u32 s52, s52, s28\ns_mul_i32 s52, s52, 1179648")
        e("s_add_u32 s20, s54, s52\ns_addc_u32 s21, s55, 0\ns_mov_b32 s22, 1179648\ns_mov_b32 s23, 0x20000")
        e("v_lshrrev_b32 v27, 4, v0")
        e("s_lshl_b32 s52, s24, 3")
        e("v_add_u32 v27, s52, v27")
        e("v_and_b32 v30, 15, v0")
        for ii in range(2):
            e(f"v_add_u32 v29, {4*ii}, v27")
            e(f"v_xor_b32 v31, v29, v30")
            e(f"v_lshlrev_b32 v31, 4, v31")
            e(f"v_lshl_add_u32 v{V_DK[ii]}, v27, 8, v31")
            e(f"v_and_b32 v29, 7, v29")
            e(f"v_lshlrev_b32 v29, 1, v29")
            e(f"v_xor_b32 v31, v29, v30")
            e(f"v_lshlrev_b32 v31, 4, v31")
            e(f"v_lshl_add_u32 v{V_DV[ii]}, v27, 8, v31")
        e("v_and_b32 v27, 15, v0")
        e("v_lshrrev_b32 v28, 4, v0")
        e("v_lshrrev_b32 v29, 1, v27")
        e("v_xor_b32 v29, v29, v28")
        e("s_lshl_b32 s52, s24, 13")
        e("v_lshlrev_b32 v30, 7, v27")
        e("v_add_u32 v30, s52, v30")
        for sp in range(2):
            e(f"v_xor_b32 v31, {4*sp}, v29")
            e(f"v_lshl_add_u32 v{V_XA[sp]}, v31, 4, v30")
        e("s_sub_u32 s52, 16384, s52")
        for sp in range(2):
            e(f"v_add_u32 v{V_XT[sp]}, s52, v{V_XA[sp]}")
        e("v_bfe_u32 v29, v0, 2, 2")
        e("v_lshl_add_u32 v30, v28, 3, v29")
        e("v_lshlrev_b32 v30, 9, v30")
        e(f"v_add_u32 v30, {WS0}, v30")
        e("v_lshlrev_b32 v29, 2, v29")
        e("v_and_b32 v31, 3, v0")
        e("v_xor_b32 v29, v29, v31")
        e("s_lshl_b32 s52, s25, 4\ns_lshl_b32 s53, s24, 3\ns_or_b32 s52, s52, s53")
        e("v_xor_b32 v29, s52, v29")
        for u in range(4):
            e(f"v_xor_b32 v31, {4*u}, v29")
            e(f"v_lshl_add_u32 v{V_WA[u]}, v31, 4, v30")
        e("v_xor_b32 v29, v27, v28")
        e("s_lshl_b32 s53, s24, 3")
        e("v_xor_b32 v29, s53, v29")
        e("s_lshl_b32 s52, s25, 13")
        e(f"s_add_u32 s52, s52, {3*SLOT}")
        e("v_lshlrev_b32 v30, 8, v27")
        e("v_add_u32 v30, s52, v30")
        for u in range(4):
            e(f"v_xor_b32 v31, {4*u}, v29")
            e(f"v_lshl_add_u32 v{V_KA[u]}, v31, 4, v30")
        e("v_bfe_u32 v29, v0, 2, 2")
        e("v_lshl_add_u32 v29, v28, 2, v29")
        e("v_lshlrev_b32 v30, 8, v29")
        e("v_and_b32 v31, 1, v0")
        e("v_lshl_add_u32 v30, v31, 3, v30")
        e("s_lshl_b32 s52, s25, 13")
        e(f"s_add_u32 s52, s52, {3*SLOT + 16384}")
        e("v_add_u32 v30, s52, v30")
        e("v_and_b32 v29, 7, v29")
        e("v_lshlrev_b32 v29, 1, v29")
        e("v_bfe_u32 v31, v0, 1, 1")
        e("v_xor_b32 v29, v29, v31")
        e("s_lshl_b32 s53, s24, 3")
        e("v_xor_b32 v29, s53, v29")
        for T in range(8):
            e(f"v_xor_b32 v31, {2*T}, v29")
            e(f"v_lshl_add_u32 v{V_VA[T]}, v31, 4, v30")
        for r in range(V_O, V_O + 144):
            e(f"v_mov_b32 v{r}, 0")
        for g in self.g_W(1): p.extend(g)

        def rdQ(buf, ks):
            q = []
            wo = (ks % 4) * 16384
            xo = XS[(ks // 2) % 2]
            sp = ks & 1
            for T in range(8):
                u = T >> 1
                q.append(f"ds_read_b64_tr_b16 {aq(FA(buf,T),2)}, v{V_WA[u]} offset:{wo + 8*(T&1)}")
                q.append(f"ds_read_b64_tr_b16 {aq(FA(buf,T)+2,2)}, v{V_WA[u]} offset:{wo + 8*(T&1)+2048}")
            for qt in range(4):
                q.append(f"ds_read_b128 {aq(FB(buf,qt))}, v{V_XA[sp]} offset:{xo + qt*2048}")
            q.append(f"ds_read_b128 {aq(FB(buf,4))}, v{V_XT[sp]} offset:{xo}")
            return mk("\n".join(q))
        def mmQ(buf):
            q = []
            for T in range(8):
                for qt in range(4):
                    q.append(f"v_mfma_f32_16x16x32_bf16 {vq(O_(T,qt))}, {aq(FA(buf,T))}, {aq(FB(buf,qt))}, {vq(O_(T,qt))}")
                if T < 4:
                    q.append(f"v_mfma_f32_16x16x32_bf16 {vq(V_OT+T*4)}, {aq(FA(buf,T))}, {aq(FB(buf,4))}, {vq(V_OT+T*4)}")
            return mk("\n".join(q))
        X = self.exp
        def qbody(s_, wait, dmas):
            if "trQ" in X: e("s_memtime s[92:93]")
            if wait is not None: e(f"s_waitcnt vmcnt({wait}) lgkmcnt(0)")
            else: e("s_waitcnt lgkmcnt(0)")
            if "trQ" in X:
                e("s_memtime s[94:95]")
            e("s_barrier")
            if "trQ" in X:
                e("s_waitcnt lgkmcnt(0)")
                e("s_mov_b32 m0, s96\ns_nop 3\nv_writelane_b32 v17, s92, m0\ns_add_u32 m0, s96, 1\ns_nop 3\nv_writelane_b32 v17, s94, m0\ns_add_u32 s96, s96, 2")
            rd = rdQ((s_ + 1) & 1, (s_ + 1) % 4 + (4 if (s_ + 1) % 4 < 0 else 0)) if (s_ < 15 and "noread" not in X) else []
            if "nodma" in X: dmas = []
            fill = merge_fills(rd, dmas)
            p.extend(interleave(mmQ(s_ & 1) if "nomfma" not in X else mk("s_nop 0"), fill, 0, 27))
        e("s_waitcnt vmcnt(4)")
        e("s_barrier")
        p.extend(rdQ(0, 0))
        for g in self.g_X(1) + self.g_W(2) + self.g_W(3): p.extend(g)
        stamp(p, 2, stamps)
        e("s_mov_b32 s30, 0")
        if "trQ" in X: e("s_mov_b32 s96, 0\nv_mov_b32 v17, 0")
        e(f"{L}_qloop:")
        if not self.regpf:
            waits = [12, 4, 12, 4]
            for k in range(4):
                d = self.g_W(k)
                if k & 1: d = d + self.g_X(((k - 1) // 2) % 2)
                qbody(k, waits[k] if "nodma" not in X else None, d)
        else:
            l24 = self.lab("q24"); ld = self.lab("qd")
            e(f"s_cmp_eq_u32 s30, 0\ns_cbranch_scc0 {l24}\ns_waitcnt vmcnt(12)\ns_branch {ld}\n{l24}:\ns_waitcnt vmcnt(24)\n{ld}:")
            qbody(0, None, self.g_W(0))
            lv = [self.lab("qv") for _ in range(3)]; lj = self.lab("qj")
            e(f"s_cmp_eq_u32 s30, 1\ns_cbranch_scc1 {lv[1]}\ns_cmp_eq_u32 s30, 2\ns_cbranch_scc1 {lv[2]}")
            for it in range(3):
                e(f"{lv[it]}:")
                qbody(1, 4, self.g_W(1) + self.g_X(0) + self.stage_loads(it + 1))
                if it < 2: e(f"s_branch {lj}")
            e(f"{lj}:")
            qbody(2, 20, self.g_W(2))
            qbody(3, 12, self.g_W(3) + self.g_X(1))
        e("s_add_u32 s30, s30, 1")
        e("s_cmp_lt_u32 s30, 3")
        e(f"s_cbranch_scc1 {L}_qloop")
        if not self.regpf:
            qbody(12, 16, self.bundle_static(-1))
            qbody(13, 4, self.bundle_static(0))
            qbody(14, 16, self.pretouch() if (self.fused and self.touch) else [])
            qbody(15, None, self.bundle_static(1))
        else:
            qbody(12, 24, self.bundle_static(-1))
            qbody(13, 4, self.bundle_static(0))
            qbody(14, 16, [])
            e("v_lshlrev_b32 v28, 4, v0\nv_add_u32 v28, s39, v28\nv_add_u32 v29, 0x10000, v28")
            qbody(15, None, self.stage_writes())
        e("s_waitcnt lgkmcnt(0)")
        stamp(p, 3, stamps)

        e(f"s_mov_b32 s48, {fbits(CSCALE):#x}\ns_mov_b32 s49, {fbits(CSCALE):#x}")
        T0 = 176
        k = 0
        for qt in (4, 0, 1, 2, 3):
            for u in range(4 if qt < 4 else 2):
                t = T0 + (k % 4) * 4; k += 1
                for h in range(2):
                    src = O_(2*u+h, qt) if qt < 4 else V_OT + (2*u+h)*4
                    e(f"v_pk_mul_f32 {vq(src,2)}, {vq(src,2)}, s[48:49]")
                    e(f"v_pk_mul_f32 {vq(src+2,2)}, {vq(src+2,2)}, s[48:49]")
                    e(f"v_cvt_pk_bf16_f32 v{t+2*h}, v{src}, v{src+1}")
                    e(f"v_cvt_pk_bf16_f32 v{t+2*h+1}, v{src+2}, v{src+3}")
                for r in range(4): e(f"v_accvgpr_write_b32 a{Q_(qt,u)+r}, v{t+r}")
                if qt == 4:
                    if u == 0:
                        e(f"s_add_u32 s52, s39, {QX}")
                        e(f"v_lshlrev_b32 v27, 4, v0")
                        e(f"v_add_u32 v27, s52, v27")
                    e(f"ds_write_b128 v27, {vq(t)} offset:{u*1024}")
            if lead >= 3 and qt == 1 and not self.regpf:
                for g in self.bundle_static(2): p.extend(g)
            if lead >= 4 and qt == 3 and not self.regpf:
                for g in self.bundle_static(3): p.extend(g)
        e("s_waitcnt lgkmcnt(0)")
        e("s_barrier")
        e("v_xor_b32 v27, 0x800, v27")
        e(f"ds_read_b128 {aq(Q_(4,2))}, v27")
        e(f"ds_read_b128 {aq(Q_(4,3))}, v27 offset:1024")
        for r in range(20): e(f"v_mov_b32 v{V_NM+r}, 0")
        if self.fused: self.fused_setup()
        e("s_mov_b32 s51, 0")
        e(f"{L}_attn:")
        for r in range(4): e(f"v_mov_b32 v{V_ONES+r}, 0x3f803f80")
        for r in range(V_O, V_O + 160): e(f"v_mov_b32 v{r}, 0")
        for r in range(20): e(f"v_mov_b32 v{V_P+r}, 0")
        for r in range(20): e(f"v_accvgpr_write_b32 a{A_L+r}, 0")
        for r in range(64): e(f"v_accvgpr_write_b32 a{A_V+r}, 0")
        for r in range(24): e(f"v_mov_b32 v{V_S+r}, 0xff800000")
        stamp(p, 4, stamps)

        def rdK(buf, extra=0):
            return mk("\n".join(f"ds_read_b128 {aq(K_(buf,kt,u))}, v{V_KA[u]} offset:{kt*4096 + extra}" for kt in range(2) for u in range(4)))
        def rdV(buf):
            q = []
            for T in range(8):
                q.append(f"ds_read_b64_tr_b16 {aq(Vf(buf,T),2)}, v{V_VA[T]}")
                q.append(f"ds_read_b64_tr_b16 {aq(Vf(buf,T)+2,2)}, v{V_VA[T]} offset:4096")
            return mk("\n".join(q))
        e("s_waitcnt lgkmcnt(0)")
        e("s_barrier")
        e("s_cmp_eq_u32 s24, 0")
        e(f"s_cbranch_scc0 {L}_k0p1")
        p.extend(rdK(0, KM1))
        e(f"s_branch {L}_k0done")
        e(f"{L}_k0p1:")
        p.extend(rdK(1, KM1))
        e(f"{L}_k0done:")
        e("s_mov_b32 s30, 0")
        if "trA" in self.exp: e("s_mov_b32 s96, 0")
        e("s_mov_b32 s35, 3")
        if self.fused: e("s_lshl_b32 s41, s26, 16\ns_lshl_b32 s42, s3, 12")
        if self.regpf:
            issue = []; nb = 4
            for j in range(16):
                if j in self.skips or nb > 15: continue
                issue.append((j, nb)); nb += 1
            assert nb == 16, issue
            self.issue = issue
            mV = sum(1 << j for j, n in issue); mK = sum(1 << j for j, n in issue if n < 15)
            e(f"s_mov_b32 s43, {mV}\ns_mov_b32 s44, {mK}")
        e(f"s_add_u32 s31, s39, {((lead+4)%5)*SLOT}")
        e(f"s_add_u32 s32, s40, {(lead+1)*8192}")
        e(f"s_add_u32 s33, s40, {lead*8192}")
        e("s_cmp_eq_u32 s24, 0")
        e(f"s_cbranch_scc0 {L}_bodyB")

        def ladder(vals, tag):
            runs = []
            for j, v in enumerate(vals):
                if runs and runs[-1][2] == v: runs[-1][1] = j
                else: runs.append([j, j, v])
            done = self.lab(tag + "d")
            if len(runs) == 1:
                e(f"s_waitcnt vmcnt({vals[0]})"); return
            big = max(runs, key=lambda r: r[1] - r[0])
            labs = []
            lb = self.lab(tag)
            if big[0] == 0: e(f"s_cmp_le_u32 s30, {big[1]}\ns_cbranch_scc1 {lb}")
            else: e(f"s_sub_u32 s48, s30, {big[0]}\ns_cmp_le_u32 s48, {big[1]-big[0]}\ns_cbranch_scc1 {lb}")
            labs.append((lb, big[2]))
            rest = [r for r in runs if r is not big]
            for r in rest[:-1]:
                l = self.lab(tag); labs.append((l, r[2]))
                e(f"s_cmp_le_u32 s30, {r[1]}\ns_cbranch_scc1 {l}")
            e(f"s_waitcnt vmcnt({rest[-1][2]})")
            e(f"s_branch {done}")
            for k, (l, n) in enumerate(labs):
                e(f"{l}:\ns_waitcnt vmcnt({n})")
                if k + 1 < len(labs): e(f"s_branch {done}")
            e(f"{done}:")
        def nwait(j):
            if self.regpf:
                if j in (1, 2, 3): return 48
                if j == 0: return 0
                n = 0
                for (jj, nb) in self.issue:
                    if jj < j and nb > j: n += (4 if nb == 15 else 8)
                if self.fused and j == 15: n += 8
                if self.fused and self.ownfirst and j in (14, 15): n += 6
                return n
            if self.fused and j == 15: return 8
            return sum((4 if i == 15 else 8) for i in range(j + 1, min(j + lead - 1, 15) + 1))
        def top(tag):
            vals = [nwait(j) for j in range(16)]
            if "trA" in self.exp: e("s_memtime s[92:93]")
            ladder(vals, tag)
            e("s_waitcnt lgkmcnt(0)")
            if "trA" in self.exp: e("s_memtime s[94:95]")
            e("s_barrier")
            if "trA" in self.exp:
                e("s_waitcnt lgkmcnt(0)")
                e("s_mov_b32 m0, s96\ns_nop 3\nv_writelane_b32 v18, s92, m0\ns_add_u32 m0, s96, 1\ns_nop 3\nv_writelane_b32 v18, s94, m0\ns_add_u32 s96, s96, 2")
        def dma_groups():
            limV = 16 - lead
            limK = 15 - lead
            cV = "s_bitcmp1_b32 s43, s30" if self.regpf else f"s_cmp_lt_u32 s30, {limV}"
            cK = "s_bitcmp1_b32 s44, s30" if self.regpf else f"s_cmp_lt_u32 s30, {limK}"
            post = mk(f"s_add_u32 s32, s32, 8192\ns_add_u32 s33, s33, 8192\ns_add_u32 s31, s31, 32768\n"
                      f"s_add_u32 s48, s39, {5*SLOT}\ns_cmp_ge_u32 s31, s48\ns_cselect_b32 s48, {5*SLOT}, 0\ns_sub_u32 s31, s31, s48")
            gs = [self.guard(self.g_KV(r, ("s31", 0), ("s32", 0)), cK) for r in (0, 1)]
            gs += [self.guard(self.g_KV(2, ("s31", 0), ("s33", 0)), cV), self.guard(self.g_KV(3, ("s31", 0), ("s33", 0)) + post, cV)]
            return gs
        def adv_read():
            q = ["s_add_u32 s35, s35, 1", "s_cmp_eq_u32 s35, 5", f"s_mov_b32 s34, {SLOT}", f"s_cmov_b32 s34, {-4*SLOT}", "s_cselect_b32 s35, 0, s35"]
            g = [mk("\n".join(q))]
            for r in V_KA + V_VA:
                g.append(mk(f"v_add_u32 v{r}, s34, v{r}")[0])
            return g
        def QK(ebuf, qt, sb):
            q = []
            for u in range(4):
                for kt in range(2):
                    c = vq(NM_(qt)) if u == 0 else vq(S_(sb, kt))
                    q.append(f"v_mfma_f32_16x16x32_bf16 {vq(S_(sb,kt))}, {aq(K_(ebuf,kt,u))}, {aq(Q_(qt,u))}, {c}")
            return mk("\n".join(q))
        def SM(qt, sb):
            q = []
            for kt in range(2):
                b = S_(sb, kt)
                for r in range(4): q.append(f"v_exp_f32 v{b+r}, v{b+r}")
            for kt in range(2):
                b = S_(sb, kt)
                q.append(f"v_cvt_pk_bf16_f32 v{P_(qt)+2*kt}, v{b}, v{b+1}")
                q.append(f"v_cvt_pk_bf16_f32 v{P_(qt)+2*kt+1}, v{b+2}, v{b+3}")
            return mk("\n".join(q))
        def PV(vbuf, qt):
            q = []
            for T in range(8):
                q.append(f"v_mfma_f32_16x16x32_bf16 {vq(O_(T,qt))}, {aq(Vf(vbuf,T))}, {vq(P_(qt))}, {vq(O_(T,qt))}")
            q.append(f"v_mfma_f32_16x16x32_bf16 {aq(L_(qt))}, {vq(V_ONES)}, {vq(P_(qt))}, {aq(L_(qt))}")
            return mk("\n".join(q))
        def body(typ, do_qk=True):
            ebuf = 0 if typ == "A" else 1
            if typ == "A":
                qk = [0, 1, 2, 3, 4]; sb = [0, 1, 2, 0, 1]; pv = [0, 1, 2, 3]; carried = None
            else:
                qk = [0, 1, 2, 3]; sb = [2, 0, 1, 2]; pv = [0, 1, 2, 3, 4]; carried = (4, 1)
            reads = (rdK(ebuf ^ 1) + rdV(ebuf)) if do_qk else []
            dmas = dma_groups() if do_qk else []
            if self.fused:
                if do_qk:
                    pre = []
                    for c in range(2):
                        pre += mk(f"s_add_u32 m0, s42, {c*16384}\ns_add_u32 s36, s41, {c*65536}\n"
                                  f"buffer_load_dwordx4 v{V_DO[0]}, {S_WQ}, s36 offen {self.woflags} lds")
                        for k in range(1, 4):
                            pre += mk(f"buffer_load_dwordx4 v{V_DO[k]}, {S_WQ}, s36 offen offset:{1024*k} {self.woflags} lds")
                    pre += mk("s_add_u32 s41, s41, 131072\ns_add_u32 s42, s42, 32768")
                    grp = self.guard(pre, "s_cmp_ge_u32 s30, 14")
                    if self.ownfirst:
                        wm = mk("s_add_u32 s36, s26, 4\ns_add_u32 s36, s36, s28\ns_and_b32 s36, s36, 15\ns_lshl_b32 s36, s36, 16")
                        for k in range(4):
                            wm += mk(f"buffer_load_dwordx4 a[{228+4*k}:{231+4*k}], v{V_DO[k]}, {S_WQ}, s36 offen offset:{1024*k} {self.woflags}")
                        wm += mk("s_lshr_b32 s36, s28, 1\ns_add_u32 s36, s36, s26\ns_add_u32 s36, s36, 12\ns_and_b32 s36, s36, 15\ns_lshl_b32 s36, s36, 16\n"
                                 "s_and_b32 s37, s28, 1\ns_lshl_b32 s37, s37, 13\ns_add_u32 s36, s36, s37")
                        for k in range(2):
                            wm += mk(f"buffer_load_dwordx4 a[{244+4*k}:{247+4*k}], v{V_DO[k]}, {S_WQ}, s36 offen offset:{1024*k} {self.woflags}")
                        grp = self.guard(wm, "s_cmp_eq_u32 s30, 13") + grp
                    if "nopre" not in self.exp: dmas = dmas + [grp]
            nslots = 5
            per = (len(reads) + nslots - 1) // nslots
            for k in range(nslots):
                main = []
                if do_qk and k < len(qk): main += QK(ebuf, qk[k], sb[k])
                if k < len(pv): main += PV(ebuf ^ 1, pv[k])
                fill = []
                if k == 0:
                    if carried: fill += SM(*carried)
                    if do_qk: fill = adv_read() + fill
                elif do_qk:
                    fill += SM(qk[k-1], sb[k-1])
                rd = reads[k*per:(k+1)*per]
                dm = [dmas[k]] if k < len(dmas) else []
                if k == 0:
                    fill = dm + fill + rd
                else:
                    fill = merge_fills(fill, rd, dm)
                p.extend(interleave(main, fill) if main else _flat(fill))
        from asmlib import _flat
        e(f"{L}_bodyA:")
        top("A"); body("A")
        e("s_add_u32 s30, s30, 1\ns_cmp_eq_u32 s30, 16")
        e(f"s_cbranch_scc1 {L}_endB")
        e(f"{L}_bodyB:")
        top("B"); body("B")
        e("s_add_u32 s30, s30, 1\ns_cmp_eq_u32 s30, 16")
        e(f"s_cbranch_scc0 {L}_bodyA")
        e("s_waitcnt lgkmcnt(0)")
        body("A", do_qk=False)
        e(f"s_branch {L}_epi")
        e(f"{L}_endB:")
        e("s_waitcnt lgkmcnt(0)")
        body("B", do_qk=False)
        e(f"{L}_epi:")
        stamp(p, 5, stamps)

        MA = 65536
        e(f"s_mul_i32 s52, s3, 5120\ns_add_u32 s52, s52, {MA}")
        e("v_lshlrev_b32 v17, 4, v0")
        e("v_add_u32 v27, s52, v17")
        for i in range(4):
            e(f"ds_write_b128 v27, {vq(O_(4+i,4))} offset:{i*1024}")
        e(f"ds_write_b128 v27, {aq(L_(4))} offset:4096")
        if self.fused: self.fused_early()
        for qt in range(5):
            e(f"v_accvgpr_read_b32 v{V_S+qt}, a{L_(qt)}")
        e(f"s_mov_b32 s52, {fbits(L_LO):#x}\ns_mov_b32 s53, {fbits(L_HI):#x}")
        self.store_O_setup()
        e("s_mov_b64 s[56:57], exec")
        for qt in range(4):
            e(f"v_cmp_le_f32 vcc, s52, v{V_S+qt}")
            e(f"v_cmp_ge_f32 s[58:59], s53, v{V_S+qt}")
            e(f"v_rcp_f32 v{V_S+qt}, v{V_S+qt}")
            e("s_and_b64 s[56:57], s[56:57], vcc")
            e("s_and_b64 s[56:57], s[56:57], s[58:59]")
        if "epi" in self.exp: stamp(p, 11, stamps)
        for qt in range(4): self.store_O_tile(qt)
        e("s_waitcnt lgkmcnt(0)")
        e("s_barrier")
        e(f"s_xor_b32 s48, s3, 1\ns_mul_i32 s48, s48, 5120\ns_add_u32 s48, s48, {MA}")
        e("v_add_u32 v27, s48, v17")
        for i in range(4):
            e(f"ds_read_b128 {vq(V_P+i*4)}, v27 offset:{i*1024}")
        e(f"ds_read_b128 {vq(V_S+12)}, v27 offset:4096")
        for i in range(4):
            for r in range(4):
                e(f"v_add_f32 v{O_(i,4)+r}, v{O_(i,4)+r}, v{V_P+i*4+r}")
        e(f"v_add_f32 v{V_S+4}, v{V_S+4}, v{V_S+12}")
        e(f"v_cmp_le_f32 vcc, s52, v{V_S+4}")
        e(f"v_cmp_ge_f32 s[58:59], s53, v{V_S+4}")
        e(f"v_rcp_f32 v{V_S+4}, v{V_S+4}")
        e("s_and_b64 s[56:57], s[56:57], vcc")
        e("s_and_b64 s[56:57], s[56:57], s[58:59]")
        e("s_cmp_eq_u64 s[56:57], exec")
        e("s_cselect_b32 s48, 0, 1")
        e("v_mov_b32 v27, s48")
        e(f"s_lshl_b32 s48, s3, 2\ns_add_u32 s48, s48, {MA + 20480}")
        e("v_mov_b32 v28, s48")
        e("ds_write_b32 v28, v27")
        self.store_O_tile(4)
        if "epi" in self.exp: stamp(p, 12, stamps)
        e("s_waitcnt vmcnt(0) lgkmcnt(0)")
        if "epi" in self.exp: stamp(p, 13, stamps)
        e("s_barrier")
        e(f"v_mov_b32 v28, {MA + 20480}")
        e(f"ds_read_b128 {vq(V_S+12)}, v28")
        e(f"v_or_b32 v27, v{V_S+12}, v{V_S+13}")
        e(f"v_or_b32 v28, v{V_S+14}, v{V_S+15}")
        e("v_or_b32 v27, v27, v28")
        e("v_readfirstlane_b32 s48, v27")
        e("s_cmp_eq_u32 s51, 0")
        e("s_cselect_b32 s48, s48, 0")
        e("s_cmp_eq_u32 s48, 0")
        e(f"s_cbranch_scc0 {L}_fallback")
        if self.fused:
            self.fused_tail()
        else:
            stamp(p, 6, stamps)
            stamp_flush(p, 7, stamps and f"{L}_stf", "s[54:55]")
        if "trQ" in self.exp or "trA" in self.exp:
            tv = 18 if "trA" in self.exp else 17
            l = self.lab("tr")
            e(f"s_cmp_eq_u32 s3, 0\ns_cbranch_scc0 {l}")
            e(f"s_lshl_b32 s58, s2, 8\ns_add_u32 s58, s58, {65*1024*1024}")
            e("v_lshlrev_b32 v251, 2, v0\nv_add_u32 v251, s58, v251")
            e(f"global_store_dword v251, v{tv}, s[54:55]\ns_waitcnt vmcnt(0)")
            e(f"{l}:")
        e(f"s_branch {L}_done")

        e(f"{L}_fallback:")
        e("s_mov_b32 s51, 1")
        e("s_waitcnt vmcnt(0)")
        e("s_barrier")
        e(f"s_mul_i32 s48, s35, {SLOT}")
        for r in V_KA + V_VA:
            e(f"v_subrev_u32 v{r}, s48, v{r}")
        for qt in range(5):
            e(f"v_mov_b32 v{V_P+qt}, 0xff800000")
        e("s_mov_b32 s30, 0")
        e("s_mov_b32 s32, s40")
        e(f"{L}_mx:")
        for r in (0, 1): p.extend(self.g_KV(r, ("s39", 0), ("s32", 0)))
        e("s_waitcnt vmcnt(0)\ns_barrier")
        p.extend(rdK(0))
        for qt in range(5):
            for u in range(4):
                for kt in range(2):
                    c = "0" if u == 0 else vq(S_(0, kt))
                    e(f"v_mfma_f32_16x16x32_bf16 {vq(S_(0,kt))}, {aq(K_(0,kt,u))}, {aq(Q_(qt,u))}, {c}")
            for r in range(0, 8, 2):
                e(f"v_max3_f32 v{V_P+qt}, v{V_S+r}, v{V_S+r+1}, v{V_P+qt}")
        e("s_waitcnt lgkmcnt(0)\ns_barrier")
        e("s_add_u32 s32, s32, 8192\ns_add_u32 s30, s30, 1\ns_cmp_lt_u32 s30, 16")
        e(f"s_cbranch_scc1 {L}_mx")
        e("v_xor_b32 v27, 16, v0\nv_lshlrev_b32 v27, 2, v27")
        e("v_xor_b32 v28, 32, v0\nv_lshlrev_b32 v28, 2, v28")
        for qt in range(5):
            e(f"ds_bpermute_b32 v{V_S}, v27, v{V_P+qt}")
            e(f"v_max_f32 v{V_P+qt}, v{V_P+qt}, v{V_S}")
            e(f"ds_bpermute_b32 v{V_S}, v28, v{V_P+qt}")
            e(f"v_max_f32 v{V_P+qt}, v{V_P+qt}, v{V_S}")
            for r in range(4):
                e(f"v_sub_f32 v{NM_(qt)+r}, 0, v{V_P+qt}")
        for r in V_KA + V_VA:
            e(f"v_add_u32 v{r}, {3*SLOT}, v{r}")
        for j in range(-1, lead):
            for g in self.bundle_static(j): p.extend(g)
        e("s_waitcnt vmcnt(0)")
        e(f"s_branch {L}_attn")
        e(f"{L}_done:")
        e("s_endpgm")
        return p

    def g_Wo(self, slot, kimm):
        gs = [mk(f"s_add_u32 m0, s38, {slot*16384}\ns_add_u32 s36, s41, {kimm*65536}\n"
                 f"buffer_load_dwordx4 v{V_DO[0]}, {S_WQ}, s36 offen {self.woflags} lds")]
        for k in range(1, 4):
            gs.append(mk(f"buffer_load_dwordx4 v{V_DO[k]}, {S_WQ}, s36 offen offset:{1024*k} {self.woflags} lds"))
        return gs
    def pretouch(self):
        q = []
        q.append("s_lshl_b32 s52, s27, 3\ns_add_u32 s52, s52, s28\ns_mul_i32 s53, s52, 1179648")
        q.append("s_bfe_u32 s48, s2, 0x20003\ns_lshl_b32 s52, s52, 2\ns_add_u32 s52, s52, s48\ns_mul_i32 s52, s52, 294912")
        q.append(f"s_add_u32 s52, s52, {PART0}")
        q.append("v_mov_b32 v209, s53")
        q.append("s_add_u32 s53, s53, 0x100000\nv_writelane_b32 v209, s53, 1")
        q.append(f"s_mov_b32 s53, {FLAG1}\nv_writelane_b32 v209, s53, 2")
        q.append("v_writelane_b32 v209, s52, 3\ns_add_u32 s52, s52, 0x47ffc\nv_writelane_b32 v209, s52, 4")
        q.append("global_load_dword v210, v209, s[54:55]")
        q.append("s_mul_i32 s52, s28, 294912\nv_mov_b32 v209, s52\ns_add_u32 s52, s52, 0x47ffc\nv_writelane_b32 v209, s52, 1")
        q.append("global_load_dword v211, v209, s[84:85]")
        q.append("s_and_b32 s52, s2, 3\ns_lshl_b32 s52, s52, 20\nv_mov_b32 v209, s52\ns_add_u32 s52, s52, 0xffffc\nv_writelane_b32 v209, s52, 1")
        q.append("global_load_dword v212, v209, s[98:99]")
        l = self.lab("pt")
        return [mk(f"s_cmp_eq_u32 s3, 3\ns_cbranch_scc0 {l}") + mk("\n".join(q)) + mk(f"{l}:")]
    def fused_setup(self):
        e = self.p.e
        e("s_and_b32 s46, s2, 3\ns_bfe_u32 s47, s2, 0x20003")
        if self.ownfirst: e("s_lshl_b32 s26, s47, 2")
        e("s_lshl_b32 s52, s46, 20\ns_lshl_b32 s53, s47, 8\ns_add_u32 s52, s52, s53")
        e("s_add_u32 s8, s98, s52\ns_addc_u32 s9, s99, 0\ns_sub_u32 s10, 0x400000, s52\ns_mov_b32 s11, 0x20000")
        e("v_lshrrev_b32 v27, 4, v0")
        e("v_lshlrev_b32 v28, 2, v27")
        e("v_and_b32 v29, 15, v0")
        e("v_xor_b32 v28, v28, v29")
        e("v_lshlrev_b32 v28, 4, v28")
        e("s_lshl_b32 s52, s3, 4")
        e("v_add_u32 v27, s52, v27")
        e(f"v_lshl_add_u32 v{V_DO[0]}, v27, 10, v28")
        for k in range(1, 4): e(f"v_add_u32 v{V_DO[k]}, {3072*k}, v{V_DO[0]}")
        e("v_lshlrev_b32 v27, 4, v0")
        e(f"v_add_u32 v{V_DOO}, s45, v27")
        e(f"v_add_u32 v{V_BO[0]}, {OB0}, v27")
        e(f"v_add_u32 v{V_BO[1]}, {OB0 + 2*18432}, v27")
        e("v_lshrrev_b32 v27, 4, v0")
        e("v_bfe_u32 v28, v0, 2, 2")
        e("v_lshl_add_u32 v27, v27, 2, v28")
        e("v_lshlrev_b32 v28, 2, v28")
        e("v_and_b32 v29, 3, v0")
        e("s_lshl_b32 s52, s3, 2")
        e("v_add_u32 v29, s52, v29")
        e("v_xor_b32 v28, v28, v29")
        e("v_lshlrev_b32 v28, 4, v28")
        e(f"v_lshl_add_u32 v{V_AO}, v27, 8, v28")
        l = self.lab("nonce")
        e(f"s_cmp_eq_u32 s2, 0\ns_cbranch_scc0 {l}\ns_cmp_eq_u32 s3, 0\ns_cbranch_scc0 {l}")
        e("s_memrealtime s[88:89]\ns_waitcnt lgkmcnt(0)\ns_or_b32 s88, s88, 1")
        e("v_mov_b32 v30, s88\nv_mov_b32 v31, s89\nv_mov_b32 v29, 0")
        e("s_mov_b64 exec, 1\ns_nop 4")
        e("global_store_dwordx2 v29, v[30:31], s[86:87] sc1")
        e("s_mov_b64 exec, -1")
        e(f"{l}:")
    def fused_early(self):
        e = self.p.e
        l = self.lab("early")
        if not self.wavex: e(f"s_cmp_eq_u32 s3, 0\ns_cbranch_scc0 {l}")
        e("v_mov_b32 v27, 0")
        e("global_load_dwordx2 v[240:241], v27, s[86:87] sc1")
        if self.inv: e("buffer_inv sc1")
        e(f"{l}:")
    def poll(self, base_sreg, tag, stride_shift=3):
        e = self.p.e
        lp = self.lab(tag + "p"); dn = self.lab(tag + "d")
        e("s_mov_b64 exec, 15\ns_nop 4")
        e(f"v_lshlrev_b32 v27, {stride_shift}, v0\nv_add_u32 v27, {base_sreg}, v27")
        e("s_mov_b32 s97, 0")
        e(f"{lp}:")
        e("global_load_dwordx2 v[30:31], v27, s[54:55] sc1")
        e("s_waitcnt vmcnt(0)")
        e("v_cmp_eq_u32 vcc, s88, v30\nv_cmp_eq_u32 s[56:57], s89, v31")
        e("s_nop 3\ns_and_b64 s[56:57], s[56:57], vcc\ns_cmp_eq_u64 s[56:57], exec")
        e(f"s_cbranch_scc1 {dn}")
        e(f"s_sleep 1\ns_add_u32 s97, s97, 1\ns_cmp_lt_u32 s97, 0x40000\ns_cbranch_scc1 {lp}")
        e(f"{dn}:")
        e("s_mov_b64 exec, -1")
    def signal(self, base_sreg, member_sreg):
        e = self.p.e
        e(f"s_lshl_b32 s48, {member_sreg}, 3\ns_add_u32 s48, s48, {base_sreg}")
        e("v_mov_b32 v27, s48\nv_mov_b32 v30, s88\nv_mov_b32 v31, s89")
        e("s_mov_b64 exec, 1\ns_nop 4")
        e("global_store_dwordx2 v27, v[30:31], s[54:55] sc1")
        e("s_mov_b64 exec, -1")
    def fused_tail(self):
        p = self.p; e = p.e; L = self.name; stamps = self.stamps
        stamp(p, 6, stamps)
        e("s_and_b32 s46, s2, 3\ns_bfe_u32 s47, s2, 0x20003")
        e("s_lshl_b32 s52, s27, 2\ns_add_u32 s52, s52, s46\ns_lshl_b32 s52, s52, 3\ns_add_u32 s52, s52, s28")
        e(f"s_lshl_b32 s52, s52, 7\ns_add_u32 s43, s52, {FLAG1}")
        e("s_lshl_b32 s52, s27, 3\ns_add_u32 s52, s52, s28\ns_lshl_b32 s52, s52, 2\ns_add_u32 s52, s52, s47")
        e(f"s_mul_i32 s53, s52, 294912\ns_add_u32 s53, s53, {PART0}")
        e(f"s_lshl_b32 s52, s52, 7\ns_add_u32 s44, s52, {FLAG2}")
        e("s_add_u32 s4, s54, s53\ns_addc_u32 s5, s55, 0\ns_mov_b32 s6, 294912\ns_mov_b32 s7, 0x20000")
        e("s_mov_b32 s12, s84\ns_mov_b32 s13, s85\ns_mov_b32 s14, 2359296\ns_mov_b32 s15, 0x20000")
        e("s_mul_i32 s45, s3, 5\ns_cmp_eq_u32 s3, 3\ns_cselect_b32 s53, 1, 0\ns_sub_u32 s45, s45, s53\ns_lshl_b32 s45, s45, 10")
        def g_O(slot, kimm):
            fl = self.oloadflags
            gs = [mk(f"s_add_u32 m0, s45, {OB0 + slot*18432}\ns_add_u32 s37, s50, {kimm*18432}\n"
                     f"buffer_load_dwordx4 v{V_DOO}, {S_OW}, s37 offen {fl} lds")]
            for k in range(1, 4):
                gs.append(mk(f"buffer_load_dwordx4 v{V_DOO}, {S_OW}, s37 offen offset:{k*1024} {fl} lds"))
            l = self.lab("o5")
            gs.append(mk(f"s_cbranch_vccz {l}\ns_add_u32 m0, s45, {OB0 + slot*18432 + 4096}\ns_add_u32 s37, s37, 4096\n"
                         f"buffer_load_dwordx4 v{V_DOO}, {S_OW}, s37 offen {fl} lds\n{l}:"))
            return gs
        def get_tag():
            lp = self.lab("np"); dn = self.lab("nd")
            e("s_mov_b32 s97, 0\nv_mov_b32 v27, 0")
            e("v_readfirstlane_b32 s88, v240\nv_readfirstlane_b32 s89, v241")
            e(f"s_nop 3\ns_cmp_lg_u32 s88, 0\ns_cbranch_scc1 {dn}")
            e(f"{lp}:")
            e("global_load_dwordx2 v[30:31], v27, s[86:87] sc1\ns_waitcnt vmcnt(0)")
            e("v_readfirstlane_b32 s88, v30\nv_readfirstlane_b32 s89, v31")
            e(f"s_nop 3\ns_cmp_lg_u32 s88, 0\ns_cbranch_scc1 {dn}")
            e(f"s_sleep 1\ns_add_u32 s97, s97, 1\ns_cmp_lt_u32 s97, 0x40000\ns_cbranch_scc1 {lp}")
            e(f"{dn}:")
        if self.wavex: get_tag()
        lw = self.lab("w0")
        e(f"s_cmp_eq_u32 s3, 0\ns_cbranch_scc0 {lw}")
        if not self.wavex: get_tag()
        self.signal("s43", "s47")
        e(f"{lw}:")
        e("s_lshl_b32 s38, s3, 12")
        e(f"s_mul_i32 s33, s46, 294912")
        def FAo(buf, ks, ee): return buf * 88 + ks * 8 + ee * 4
        def FBo(buf, ks, qt): return buf * 88 + 16 + (ks * 9 + qt) * 4
        def acc(ee, qt): return 32 + (ee * 9 + qt) * 4
        def rdO(buf, slot):
            q = []
            for ks in range(2):
                for ee in range(2):
                    for hf in range(2):
                        q.append(f"ds_read_b64_tr_b16 {aq(FAo(buf,ks,ee)+2*hf,2)}, v{V_AO} offset:{slot*16384 + ks*8192 + hf*4096 + 8*ee}")
                for qt in range(9):
                    q.append(f"ds_read_b128 {aq(FBo(buf,ks,qt))}, v{V_BO[slot >> 1]} offset:{(slot & 1)*18432 + (ks*9+qt)*1024}")
            return mk("\n".join(q))
        def mmO(buf):
            q = []
            for ks in range(2):
                for ee in range(2):
                    for qt in range(9):
                        q.append(f"v_mfma_f32_16x16x32_bf16 {vq(acc(ee,qt))}, {aq(FAo(buf,ks,ee))}, {aq(FBo(buf,ks,qt))}, {vq(acc(ee,qt))}")
            return mk("\n".join(q))
        X = self.exp
        if self.ownfirst:
            e("s_cmp_lt_u32 s3, 2\ns_cselect_b64 vcc, -1, 0")
            e("s_mul_i32 s48, s26, 18432\ns_add_u32 s50, s33, s48")
            for g in g_O(0, 0) + g_O(1, 1): p.extend(g)
            for r in range(32, 104): e(f"v_mov_b32 v{r}, 0")
            lw = self.lab("w0b")
            e(f"s_cmp_eq_u32 s3, 0\ns_cbranch_scc0 {lw}")
            self.poll("s43", "f1")
            e("s_cmp_lt_u32 s3, 2\ns_cselect_b64 vcc, -1, 0")
            e(f"{lw}:")
            e("s_waitcnt vmcnt(4)")
            e("s_barrier")
            stamp(p, 7, stamps)
        else:
            if self.readback:
                e("s_cmp_lt_u32 s3, 2\ns_cselect_b64 vcc, -1, 0")
                e("s_mul_i32 s48, s47, 73728\ns_add_u32 s50, s33, s48")
                for sl in range(4):
                    for g in g_O(sl, sl): p.extend(g)
            for r in range(32, 104): e(f"v_mov_b32 v{r}, 0")
            lw = self.lab("w0b")
            e(f"s_cmp_eq_u32 s3, 0\ns_cbranch_scc0 {lw}")
            self.poll("s43", "f1")
            e(f"{lw}:")
            e("s_barrier")
            stamp(p, 7, stamps)
            e("s_cmp_lt_u32 s3, 2\ns_cselect_b64 vcc, -1, 0")
            e("s_mul_i32 s48, s26, 18432\ns_add_u32 s50, s33, s48")
            for g in g_O(0, 0) + g_O(1, 1): p.extend(g)
            e("s_waitcnt vmcnt(4)")
            e("s_barrier")
        p.extend(rdO(0, 0))
        for g in g_O(2, 2) + g_O(3, 3): p.extend(g)
        e("s_add_u32 s34, s26, 4\ns_and_b32 s34, s34, 15")
        e("s_mul_i32 s48, s34, 18432\ns_add_u32 s50, s33, s48\ns_lshl_b32 s41, s34, 16")
        e("s_mov_b32 s30, 0")
        if "trO" in self.exp: e("s_mov_b32 s96, 0")
        e(f"{L}_oloop:")
        for k in range(4):
            if "trO" in X: e("s_memtime s[92:93]")
            if k < 3:
                lc = self.lab("oc"); ld = self.lab("od")
                first = [8, 8, 16][k]
                if first != 16:
                    e(f"s_cmp_eq_u32 s30, 0\ns_cbranch_scc0 {lc}\ns_waitcnt vmcnt({[8, 12, 16][k]})\ns_branch {ld}\n{lc}:\ns_waitcnt vmcnt(16)\n{ld}:")
                else:
                    e("s_waitcnt vmcnt(16)")
            else:
                e("s_waitcnt vmcnt(16)")
            e("s_waitcnt lgkmcnt(0)")
            if "trO" in X: e("s_memtime s[94:95]")
            e("s_barrier")
            if "trO" in X:
                e("s_waitcnt lgkmcnt(0)")
                e("s_mov_b32 m0, s96\ns_nop 3\nv_writelane_b32 v18, s92, m0\ns_add_u32 m0, s96, 1\ns_nop 3\nv_writelane_b32 v18, s94, m0\ns_add_u32 s96, s96, 2")
            dm = ([] if "onoO" in X else g_O(k, k)) + ([] if "onoW" in X else self.g_Wo(k, k))
            fill = merge_fills(rdO((k + 1) & 1, (k + 1) & 3) if "onord" not in X else [], dm)
            p.extend(interleave(mmO(k & 1) if "onomm" not in X else mk("s_nop 0"), fill, 0, 29))
        e("s_add_u32 s34, s34, 4\ns_and_b32 s34, s34, 15")
        e("s_mul_i32 s48, s34, 18432\ns_add_u32 s50, s33, s48\ns_lshl_b32 s41, s34, 16")
        e("s_add_u32 s30, s30, 1\ns_cmp_lt_u32 s30, 4")
        e(f"s_cbranch_scc1 {L}_oloop")
        e("s_waitcnt lgkmcnt(0)")
        stamp(p, 8, stamps)
        e("v_lshlrev_b32 v27, 4, v0\ns_lshl_b32 s52, s3, 11\nv_add_u32 v26, s52, v27")
        e("v_and_b32 v25, 15, v0\nv_lshlrev_b32 v25, 11, v25\nv_lshrrev_b32 v24, 4, v0\nv_lshl_add_u32 v25, v24, 4, v25")
        e("s_lshl_b32 s52, s3, 6\nv_add_u32 v25, s52, v25")
        e("s_mul_i32 s52, s28, 294912\ns_lshl_b32 s53, s27, 10\ns_add_u32 s52, s52, s53\ns_lshl_b32 s53, s47, 8\ns_add_u32 s45, s52, s53")
        e("s_mul_i32 s42, s46, 73728")
        labs = [self.lab(f"oc{o}") for o in range(4)]
        fin = self.lab("ofin")
        for o in range(1, 4):
            e(f"s_cmp_eq_u32 s46, {o}\ns_cbranch_scc1 {labs[o]}")
        for o in range(4):
            e(f"{labs[o]}:")
            for qt in range(9):
                if qt in OWN[o]: continue
                if self.pbf16:
                    a0, a1 = acc(0, qt), acc(1, qt)
                    e(f"v_cvt_pk_bf16_f32 v{a0}, v{a0}, v{a0+1}\nv_cvt_pk_bf16_f32 v{a0+1}, v{a0+2}, v{a0+3}")
                    e(f"v_cvt_pk_bf16_f32 v{a0+2}, v{a1}, v{a1+1}\nv_cvt_pk_bf16_f32 v{a0+3}, v{a1+2}, v{a1+3}")
                    e(f"s_add_u32 s48, s42, {qt*8192}")
                    e(f"buffer_store_dwordx4 {vq(a0)}, v26, s[4:7], s48 offen sc1")
                    continue
                e(f"s_add_u32 s48, s42, {qt*8192}")
                for ee in range(2):
                    e(f"buffer_store_dwordx4 {vq(acc(ee,qt))}, v26, s[4:7], s48 offen offset:{ee*1024} sc1")
            if self.wavex:
                e("s_waitcnt vmcnt(0)")
                e("s_lshl_b32 s48, s46, 2\ns_add_u32 s49, s48, s3")
                self.signal("s44", "s49")
                e("s_lshl_b32 s48, s3, 3\ns_add_u32 s49, s44, s48")
                self.poll("s49", "f2", stride_shift=5)
            else:
                e("s_waitcnt vmcnt(0)\ns_barrier")
                lw = self.lab("w1")
                e(f"s_cmp_eq_u32 s3, 0\ns_cbranch_scc0 {lw}")
                self.signal("s44", "s46")
                self.poll("s44", "f2")
                e(f"{lw}:")
                e("s_barrier")
            stamp(p, 9, stamps)
            T = 112
            k = 0
            for d in range(1, 4):
                src = (o + d) & 3
                for qt in OWN[o]:
                    e(f"s_mov_b32 s48, {src*73728 + qt*8192}")
                    for ee in range(1 if self.pbf16 else 2):
                        e(f"buffer_load_dwordx4 {vq(T + k*4)}, v26, s[4:7], s48 offen offset:{ee*1024} sc1"); k += 1
            nl = k
            k = 0
            for d in range(1, 4):
                for qt in OWN[o]:
                    if self.pbf16:
                        e(f"s_waitcnt vmcnt({nl - 1 - k})")
                        t = T + k * 4
                        for r in range(4):
                            ee, i = r >> 1, (r & 1) * 2
                            e(f"v_lshlrev_b32 v106, 16, v{t+r}\nv_and_b32 v107, 0xffff0000, v{t+r}")
                            e(f"v_add_f32 v{acc(ee,qt)+i}, v{acc(ee,qt)+i}, v106\nv_add_f32 v{acc(ee,qt)+i+1}, v{acc(ee,qt)+i+1}, v107")
                        k += 1
                        continue
                    for ee in range(2):
                        e(f"s_waitcnt vmcnt({nl - 1 - k})")
                        for r in range(4):
                            e(f"v_add_f32 v{acc(ee,qt)+r}, v{acc(ee,qt)+r}, v{T + k*4 + r}")
                        k += 1
            for qt in OWN[o]:
                a0, a1 = acc(0, qt), acc(1, qt)
                e(f"v_cvt_pk_bf16_f32 v{a0}, v{a0}, v{a0+1}\nv_cvt_pk_bf16_f32 v{a0+1}, v{a0+2}, v{a0+3}")
                e(f"v_cvt_pk_bf16_f32 v{a0+2}, v{a1}, v{a1+1}\nv_cvt_pk_bf16_f32 v{a0+3}, v{a1+2}, v{a1+3}")
                e(f"s_add_u32 s48, s45, {qt*32768}")
                e(f"buffer_store_dwordx4 {vq(a0)}, v25, s[12:15], s48 offen")
            if o < 3: e(f"s_branch {fin}")
        e(f"{fin}:")
        e("s_waitcnt vmcnt(0)")
        stamp(p, 10, stamps)
        stamp_flush(p, 14 if "epi" in self.exp else 11, stamps and f"{L}_stf", "s[54:55]")
        if "trO" in self.exp:
            l = self.lab("tr")
            e(f"s_cmp_eq_u32 s3, 0\ns_cbranch_scc0 {l}")
            e(f"s_lshl_b32 s58, s2, 8\ns_add_u32 s58, s58, {65*1024*1024}")
            e("v_lshlrev_b32 v251, 2, v0\nv_add_u32 v251, s58, v251")
            e(f"global_store_dword v251, v18, s[54:55]\ns_waitcnt vmcnt(0)")
            e(f"{l}:")
    def store_O_setup(self):
        e = self.p.e
        e("s_add_u32 s36, s29, s25")
        e("s_lshl_b32 s36, s36, 2")
        e("s_lshl_b32 s37, s24, 1")
        for u in range(4):
            e(f"s_xor_b32 s48, s37, {u}")
            e("s_add_u32 s48, s48, s36")
            e("s_mul_i32 s48, s48, 9216")
            e("s_lshl_b32 s49, s24, 12")
            e(f"s_add_u32 s{42+u}, s48, s49")
            if u < 2: e(f"s_add_u32 s{46+u}, s48, 8192")
    def store_O_tile(self, qt):
        e = self.p.e
        rc = V_S + qt
        e(f"v_mov_b32 v{V_S+9}, v{rc}\nv_mov_b32 v{V_S+8}, v{rc}")
        for u in range(4 if qt < 4 else 2):
            a, b = O_(2*u, qt), O_(2*u+1, qt)
            for x in (a, a+2, b, b+2):
                e(f"v_pk_mul_f32 {vq(x,2)}, {vq(x,2)}, {vq(V_S+8,2)}")
            e(f"v_cvt_pk_bf16_f32 v{a}, v{a}, v{a+1}")
            e(f"v_cvt_pk_bf16_f32 v{a+1}, v{a+2}, v{a+3}")
            e(f"v_cvt_pk_bf16_f32 v{a+2}, v{b}, v{b+1}")
            e(f"v_cvt_pk_bf16_f32 v{a+3}, v{b+2}, v{b+3}")
            if qt < 4:
                e(f"buffer_store_dwordx4 {vq(a)}, v17, {S_OW}, s{42+u} offen offset:{qt*1024} {self.oflags}")
            else:
                e(f"buffer_store_dwordx4 {vq(a)}, v17, {S_OW}, s{46+u} offen {self.oflags}")

def gen_k1(name, **kw):
    return K1(name, **kw).gen()

if __name__ == "__main__":
    import sys
    st = len(sys.argv) > 1
    def out(fn, **kw):
        p = gen_k1("k1_kernel", stamps=st, **kw)
        txt, n = finalize(p, "k1_kernel")
        print(fn, "nops inserted", n, "instrs", len(p))
        open(fn, "w").write("; @launch kernel=k1_kernel grid=(256,1,1) block=(256,1,1) lds=163840\n.amdgcn_target \"amdgcn-amd-amdhsa--gfx950\"\n.text\n" + txt + kd("k1_kernel"))
    out("k1_only.s")
    for x in sys.argv[2:]:
        if x.startswith("rot"): out(f"k1_{x}.s", rot=int(x[3:]))
        elif x == "regpf": out(f"k1_{x}.s", regpf=True, lead=4)
        elif x.startswith("lead"): out(f"k1_{x}.s", lead=int(x[4:]))
        elif x.startswith("M"): out(f"k1_{x}.s", mapping=x)
        elif x.startswith("fused"): out(f"k1_{x}.s", fused=True, oflags="sc1", inv=("noinv" not in x), oloadflags=("sc1" if "osc1" in x else ""))
        elif x.startswith("o_"): out(f"k1_{x}.s", oflags=x[2:].replace("_", " "))
        elif x == "wnt": out(f"k1_{x}.s", wflags="nt")
        elif x == "kvdef": out(f"k1_{x}.s", kvflags="")
        else: out(f"k1_{x}.s", exp=x)
```

```python
import sys
from gen_k1 import gen_k1
from gen_k2 import gen_k2, kd, finalize
HEADER = open("concat_heads__gqa_block_cached__mha_block_cached__near_ridge.s.ref").read().split("; Override launch")[0]
import gen_k2 as G2
def build(out, stamps=False, dbg=False, **kw):
    if dbg: G2.DBG_MODE[0] = (512, 0)
    k1 = gen_k1("attn_kernel", stamps=stamps or dbg, **kw.get("k1", {}))
    if dbg: G2.DBG_MODE[0] = (0, 8)
    k2 = gen_k2("oproj_kernel", stamps=dbg, **kw.get("k2", {}))
    G2.DBG_MODE[0] = None
    t1, n1 = finalize(k1, "attn_kernel")
    t2, n2 = finalize(k2, "oproj_kernel")
    s = HEADER
    s += "; @launch kernel=attn_kernel grid=(256,1,1) block=(256,1,1) lds=163840\n"
    s += "; @launch kernel=oproj_kernel grid=(256,1,1) block=(256,1,1) lds=131072\n"
    s += '.amdgcn_target "amdgcn-amd-amdhsa--gfx950"\n.text\n'
    s += t1 + kd("attn_kernel") + t2 + kd("oproj_kernel")
    open(out, "w").write(s)
    print(out, "nops", n1, n2, "bytes", len(s))
KNAME = "concat_heads__gqa_block_cached__mha_block_cached__near_ridge_kernel"
def build_fused(out, stamps=False, dbg=False, **kw):
    G2.STAMP_CYC[0] = False
    if dbg: G2.DBG_MODE[0] = (0, 2); stamps = True
    kw.setdefault("oflags", "sc1"); kw.setdefault("inv", False); kw.setdefault("oloadflags", "sc1")
    k = gen_k1(KNAME, stamps=stamps, fused=True, **kw)
    t, n = finalize(k, KNAME)
    s = HEADER
    s += "; @launch grid=(256,1,1) block=(256,1,1) lds=163840\n"
    s += '.amdgcn_target "amdgcn-amd-amdhsa--gfx950"\n.text\n'
    s += t + kd(KNAME)
    open(out, "w").write(s)
    G2.STAMP_CYC[0] = True
    G2.DBG_MODE[0] = None
    print(out, "nops", n, "bytes", len(s))
if __name__ == "__main__":
    base = dict(regpf=True, lead=4, pbf16=True)
    build_fused("f_pb.s", **base)
    build_fused("f_pb_st.s", stamps=True, **base)
    build_fused("f_of.s", ownfirst=True, **base)
    build_fused("f_of_st.s", stamps=True, ownfirst=True, **base)
```

```python
from asmlib import *
from gen_k2 import stamp, stamp_flush, kd, finalize
import struct

def fbits(x): return struct.unpack("<I", struct.pack("<f", x))[0]
CSCALE = 1.4426950408889634 / (128 ** 0.5)
L_LO = 2.0 ** -64
L_HI = 2.0 ** 16

XS = [0, 18432]
WS0 = 36864
SLOT = 32768
QX = 106496
KM1 = 16384

OS0 = 98304
OB0 = 65536
FLAG1 = 0x1400000
FLAG2 = FLAG1 + 8192
PART0 = 0x1600000
V_DO = [19, 23, 24, 25]; V_DOO = 20; V_AO = 21; V_AO1 = 18; V_BO = [22, 26]
OWN = [[0, 1, 2], [3, 4], [5, 6], [7, 8]]
STG = [f"a[{80+4*i}:{83+4*i}]" for i in range(12)] + [f"a[{232+4*i}:{235+4*i}]" for i in range(6)] + [f"v[{212+4*i}:{215+4*i}]" for i in range(6)]
V_DK = [1, 2]; V_DV = [3, 4]
V_KA = [5, 6, 7, 8]
V_VA = list(range(9, 17))
V_DW = [205, 206, 207, 208]; V_DX = [200, 201, 202, 203, 204]
V_XA = [19, 20]; V_XT = [21, 22]
V_WA = [23, 24, 25, 26]
V_ONES = 28
V_O = 32
V_OT = 160
V_S = 192; V_P = 216; V_NM = 236
def vq(b, n=4): return f"v[{b}:{b+n-1}]"
def aq(b, n=4): return f"a[{b}:{b+n-1}]"
def O_(T, qt): return V_O + (T * 4 + qt) * 4 if qt < 4 else V_OT + T * 4
def S_(buf, kt): return V_S + buf * 8 + kt * 4
def P_(qt): return V_P + qt * 4
def NM_(qt): return V_NM + qt * 4
A_Q = 0
def Q_(qt, u): return A_Q + (qt * 4 + u) * 4 if qt < 4 else 64 + u * 4
A_L = 80
def L_(qt): return A_L + qt * 4
A_K = 100
def K_(buf, kt, u): return A_K + buf * 32 + (kt * 4 + u) * 4
A_V = 164
def Vf(buf, T): return A_V + buf * 32 + T * 4
A_FR = 128
def FA(buf, T): return A_FR + buf * 52 + T * 4
def FB(buf, qt): return A_FR + buf * 52 + 32 + qt * 4

S_X = "s[4:7]"; S_WQ = "s[8:11]"; S_K = "s[12:15]"; S_V = "s[16:19]"; S_OW = "s[20:23]"

class K1:
    def __init__(self, name, mapping="M1", kvflags="nt", wflags="", oflags="", stamps=False, rot=4, lead=2, bursts=(2, 4), exp="", fused=False, inv=True, oloadflags="", woflags="", touch=False, regpf=False, skips=(5, 9), readback=False, wavex=False, pbf16=False, ownfirst=False, early4=False, codewarm=False, ldsown=False, wonat=False, outflags="", oobtail=False, trim=False):
        self.oobtail = oobtail; self.trim = trim
        self.outflags = outflags
        self.wonat = wonat
        self.ldsown = ldsown
        if ldsown: ownfirst = True
        self.codewarm = codewarm
        self.early4 = early4
        self.pbf16 = pbf16; self.ownfirst = ownfirst or ldsown
        self.readback = readback; self.wavex = wavex
        self.touch = touch; self.regpf = regpf; self.skips = skips
        self.exp = exp; self.fused = fused; self.inv = inv; self.oloadflags = oloadflags; self.woflags = woflags
        self.name = name; self.mapping = mapping; self.kvflags = kvflags; self.wflags = wflags; self.oflags = oflags
        self.stamps = stamps; self.rot = rot; self.lead = lead; self.bursts = bursts
        self.p = Prog(); self.uid = 0
    def lab(self, t):
        self.uid += 1
        return f"{self.name}_{t}{self.uid}"
    def g_W(self, slot):
        gs = [mk(f"s_add_u32 m0, s38, {WS0 + slot*16384}")
              + mk(f"buffer_load_dwordx4 v{V_DW[0]}, {S_WQ}, s44 offen {self.wflags} lds")]
        gs[0].insert(1, mk("s_nop 0")[0])
        for k in range(1, 4):
            gs.append(mk(f"buffer_load_dwordx4 v{V_DW[k]}, {S_WQ}, s44 offen offset:{k*1024} {self.wflags} lds"))
        gs[-1] = gs[-1] + mk("s_add_u32 s44, s44, 0x40000\ns_and_b32 s44, s44, 0x3fffff")
        return gs
    def g_X(self, slot):
        gs = [mk(f"s_add_u32 m0, s45, {XS[slot]}\ns_nop 0\nbuffer_load_dwordx4 v{V_DX[0]}, {S_X}, s46 offen {self.wflags} lds")]
        for k in range(1, 4):
            gs.append(mk(f"buffer_load_dwordx4 v{V_DX[k]}, {S_X}, s46 offen offset:{k*1024} {self.wflags} lds"))
        l = self.lab("x5")
        gs.append(mk(f"s_cbranch_vccz {l}\ns_add_u32 m0, s45, {XS[slot] + 4096}\ns_nop 0\n"
                     f"buffer_load_dwordx4 v{V_DX[4]}, {S_X}, s46 offen {self.wflags} lds\n{l}:\n"
                     f"s_add_u32 s46, s46, 128\ns_and_b32 s46, s46, 1023"))
        return gs
    def g_KV(self, region, slot_expr, tile_expr):
        isK = region < 2
        srd = S_K if isK else S_V
        vo = V_DK if isK else V_DV
        return mk(f"s_add_u32 m0, {slot_expr[0]}, {slot_expr[1] + region*8192}\n"
                  f"s_add_u32 s37, {tile_expr[0]}, {tile_expr[1] + (region & 1)*131072}\n"
                  f"buffer_load_dwordx4 v{vo[0]}, {srd}, s37 offen {self.kvflags} lds\n"
                  f"buffer_load_dwordx4 v{vo[1]}, {srd}, s37 offen offset:1024 {self.kvflags} lds")
    def guard(self, group, cmp):
        l = self.lab("g")
        return mk(f"{cmp}\ns_cbranch_scc0 {l}") + group + mk(f"{l}:")
    def bundle_static(self, j, parts="KV"):
        gs = []
        slot = ((j + 4) % 5) * SLOT + (KM1 if j == -1 else 0)
        if "K" in parts and j + 1 <= 15:
            gs += [self.g_KV(r, ("s39", slot), ("s40", (j + 1) * 8192)) for r in (0, 1)]
        if "V" in parts and j >= 0:
            gs += [self.g_KV(r, ("s39", slot), ("s40", j * 8192)) for r in (2, 3)]
        return gs

    def stage_loads(self, jb):
        gs = []
        for r in range(4):
            isK = r < 2
            srd = S_K if isK else S_V
            vo = V_DK if isK else V_DV
            tile = jb + 1 if isK else jb
            q0 = STG[(jb - 1) * 8 + r * 2]; q1 = STG[(jb - 1) * 8 + r * 2 + 1]
            gs.append(mk(f"s_add_u32 s37, s40, {tile*8192 + (r & 1)*131072}\n"
                         f"buffer_load_dwordx4 {q0}, v{vo[0]}, {srd}, s37 offen {self.kvflags}"))
            gs.append(mk(f"buffer_load_dwordx4 {q1}, v{vo[1]}, {srd}, s37 offen offset:1024 {self.kvflags}"))
        return gs
    def stage_writes(self):
        gs = []
        for jb in (1, 2, 3):
            slot = (jb + 4) % 5
            for r in range(4):
                for ii in range(2):
                    off = slot * SLOT + r * 8192 + ii * 1024
                    base = 28 if off < 65536 else 29
                    gs.append(mk(f"ds_write_b128 v{base}, {STG[(jb-1)*8 + r*2 + ii]} offset:{off % 65536}")[0])
        return gs
    def gen(self):
        p = self.p; e = p.e; L = self.name; stamps = self.stamps; rot = self.rot; lead = self.lead
        e("s_cmp_ge_u32 s2, 256")
        e(f"s_cbranch_scc1 {L}_done")
        if "perm" in self.exp:
            e("s_and_b32 s3, s2, 7\ns_lshl_b32 s3, s3, 5\ns_lshr_b32 s2, s2, 3\ns_or_b32 s2, s2, s3")
        stamp(p, 0, stamps)
        e("s_load_dwordx8 s[36:43], s[0:1], 0")
        e("s_load_dwordx8 s[44:51], s[0:1], 40")
        e("s_load_dwordx2 s[54:55], s[0:1], 96")
        if self.fused:
            e("s_load_dwordx2 s[98:99], s[0:1], 32")
            e("s_load_dwordx2 s[100:101], s[0:1], 72")
            e("s_load_dwordx4 s[84:87], s[0:1], 80")
        if self.codewarm:
            e("s_getpc_b64 s[90:91]")
            e(f"{L}_pc:")
            e("s_lshr_b32 s92, s2, 3\ns_lshl_b32 s92, s92, 12")
            e("v_lshlrev_b32 v28, 4, v0\nv_add_u32 v28, s92, v28")
            e("v_and_b32 v28, 0x7fff, v28")
            e(f"v_min_u32 v28, {L}_done-{L}_pc-16, v28")
            e("global_load_dwordx4 v[252:255], v28, s[90:91]")
        e("v_lshrrev_b32 v27, 6, v0")
        e("v_and_b32 v0, 63, v0")
        e("v_readfirstlane_b32 s3, v27")
        e("s_and_b32 s52, s2, 7")
        e("s_lshr_b32 s27, s52, 2")
        if self.mapping == "M1":
            e("s_lshr_b32 s28, s2, 5")
            e("s_bfe_u32 s53, s2, 0x20003")
            e("s_and_b32 s52, s52, 3")
            if "swapoct" in self.exp:
                e("s_and_b32 s57, s52, 1\ns_lshl_b32 s57, s57, 1\ns_lshr_b32 s52, s52, 1\ns_or_b32 s52, s52, s57")
            e("s_lshl_b32 s29, s52, 3")
            e("s_lshl_b32 s56, s53, 1")
            e("s_add_u32 s29, s29, s56")
            e("s_mov_b32 s56, s28")
        elif self.mapping == "M4":
            e("s_lshr_b32 s56, s2, 3")
            e("s_and_b32 s53, s56, 7")
            e("s_lshr_b32 s56, s56, 3")
            e("s_and_b32 s57, s52, 1")
            e("s_lshl_b32 s28, s57, 2")
            e("s_add_u32 s28, s28, s56")
            e("s_bfe_u32 s57, s52, 0x10001")
            e("s_lshl_b32 s29, s57, 4")
            e("s_lshl_b32 s57, s53, 1")
            e("s_add_u32 s29, s29, s57")
        elif self.mapping == "M2":
            e("s_lshr_b32 s56, s2, 3")
            e("s_and_b32 s53, s56, 15")
            e("s_lshr_b32 s56, s56, 4")
            e("s_and_b32 s57, s52, 3")
            e("s_lshl_b32 s28, s57, 1")
            e("s_add_u32 s28, s28, s56")
            e("s_lshl_b32 s29, s53, 1")
        if rot == 8:
            e("s_lshl_b32 s26, s56, 1\ns_lshl_b32 s57, s53, 2\ns_add_u32 s26, s26, s57\ns_and_b32 s26, s26, 14")
        elif rot == 4:
            e("s_add_u32 s26, s56, s53\ns_and_b32 s26, s26, 3\ns_lshl_b32 s26, s26, 2")
        elif rot == 2:
            e("s_add_u32 s26, s56, s53\ns_and_b32 s26, s26, 1\ns_lshl_b32 s26, s26, 3")
        else:
            e("s_mov_b32 s26, 0")
        e("s_and_b32 s24, s3, 1")
        e("s_lshr_b32 s25, s3, 1")
        e("v_lshrrev_b32 v27, 5, v0")
        e("s_lshl_b32 s52, s3, 3")
        e("v_add_u32 v27, s52, v27")
        e("v_and_b32 v30, 31, v0")
        for k in range(4):
            e(f"v_add_u32 v28, {2*k}, v27")
            e("v_and_b32 v29, 3, v28")
            e("v_lshlrev_b32 v29, 2, v29")
            e("v_xor_b32 v29, v29, v30")
            e("v_lshlrev_b32 v29, 4, v29")
            e(f"v_lshl_add_u32 v{V_DW[k]}, v28, 13, v29")
            if k: e(f"v_subrev_u32 v{V_DW[k]}, {k*1024}, v{V_DW[k]}")
        e("s_mul_i32 s52, s3, 5\ns_cmp_eq_u32 s3, 3\ns_cselect_b32 s53, 1, 0\ns_sub_u32 s52, s52, s53")
        e("s_lshl_b32 s57, s52, 10")
        e("s_lshl_b32 s52, s52, 3")
        e("v_lshrrev_b32 v27, 3, v0")
        e("v_add_u32 v27, s52, v27")
        e("v_and_b32 v30, 7, v0")
        for k in range(5):
            e(f"v_add_u32 v28, {8*k}, v27")
            e("v_lshrrev_b32 v29, 1, v28")
            e("v_and_b32 v29, 7, v29")
            e("v_xor_b32 v29, v29, v30")
            e("v_lshlrev_b32 v29, 4, v29")
            e(f"v_lshl_add_u32 v{V_DX[k]}, v28, 10, v29")
            if 0 < k < 4: e(f"v_subrev_u32 v{V_DX[k]}, {k*1024}, v{V_DX[k]}")
        e("s_cmp_lt_u32 s3, 2")
        e("s_cselect_b64 vcc, -1, 0")
        e("s_waitcnt lgkmcnt(0)")
        e("s_cmp_eq_u32 s27, 0")
        e("s_cselect_b32 s4, s36, s44\ns_cselect_b32 s5, s37, s45")
        e("s_cselect_b32 s12, s38, s46\ns_cselect_b32 s13, s39, s47")
        e("s_cselect_b32 s16, s40, s48\ns_cselect_b32 s17, s41, s49")
        e("s_cselect_b32 s8, s42, s50\ns_cselect_b32 s9, s43, s51")
        if self.fused: e("s_cselect_b32 s98, s98, s100\ns_cselect_b32 s99, s99, s101")
        e("s_lshl_b32 s39, s3, 11\ns_lshl_b32 s40, s25, 12")
        e("s_mul_i32 s52, s28, 147456")
        e("s_add_u32 s4, s4, s52\ns_addc_u32 s5, s5, 0\ns_mov_b32 s6, 147456\ns_mov_b32 s7, 0x20000")
        e("s_lshl_b32 s52, s29, 8")
        e("s_add_u32 s8, s8, s52\ns_addc_u32 s9, s9, 0\ns_sub_u32 s10, 0x400000, s52\ns_mov_b32 s11, 0x20000")
        e("s_lshl_b32 s38, s3, 12")
        e("s_mov_b32 s45, s57")
        e("s_lshl_b32 s46, s26, 6")
        e("s_lshl_b32 s44, s26, 18")
        for g in self.g_X(0): p.extend(g)
        for g in self.g_W(0): p.extend(g)
        stamp(p, 1, stamps)
        e("s_lshl_b32 s52, s28, 5\ns_add_u32 s52, s52, s29")
        e("s_lshr_b32 s53, s52, 15\ns_lshl_b32 s52, s52, 17")
        e("s_add_u32 s12, s12, s52\ns_addc_u32 s13, s13, s53\ns_mov_b32 s14, 262144\ns_mov_b32 s15, 0x20000")
        e("s_add_u32 s16, s16, s52\ns_addc_u32 s17, s17, s53\ns_mov_b32 s18, 262144\ns_mov_b32 s19, 0x20000")
        e("s_lshl_b32 s52, s27, 3\ns_add_u32 s52, s52, s28\ns_mul_i32 s52, s52, 1179648")
        e("s_add_u32 s20, s54, s52\ns_addc_u32 s21, s55, 0\ns_mov_b32 s22, 1179648\ns_mov_b32 s23, 0x20000")
        e("v_lshrrev_b32 v27, 4, v0")
        e("s_lshl_b32 s52, s24, 3")
        e("v_add_u32 v27, s52, v27")
        e("v_and_b32 v30, 15, v0")
        for ii in range(2):
            e(f"v_add_u32 v29, {4*ii}, v27")
            e(f"v_xor_b32 v31, v29, v30")
            e(f"v_lshlrev_b32 v31, 4, v31")
            e(f"v_lshl_add_u32 v{V_DK[ii]}, v27, 8, v31")
            e(f"v_and_b32 v29, 7, v29")
            e(f"v_lshlrev_b32 v29, 1, v29")
            e(f"v_xor_b32 v31, v29, v30")
            e(f"v_lshlrev_b32 v31, 4, v31")
            e(f"v_lshl_add_u32 v{V_DV[ii]}, v27, 8, v31")
        e("v_and_b32 v27, 15, v0")
        e("v_lshrrev_b32 v28, 4, v0")
        e("v_lshrrev_b32 v29, 1, v27")
        e("v_xor_b32 v29, v29, v28")
        e("s_lshl_b32 s52, s24, 13")
        e("v_lshlrev_b32 v30, 7, v27")
        e("v_add_u32 v30, s52, v30")
        for sp in range(2):
            e(f"v_xor_b32 v31, {4*sp}, v29")
            e(f"v_lshl_add_u32 v{V_XA[sp]}, v31, 4, v30")
        e("s_sub_u32 s52, 16384, s52")
        for sp in range(2):
            e(f"v_add_u32 v{V_XT[sp]}, s52, v{V_XA[sp]}")
        e("v_bfe_u32 v29, v0, 2, 2")
        e("v_lshl_add_u32 v30, v28, 3, v29")
        e("v_lshlrev_b32 v30, 9, v30")
        e(f"v_add_u32 v30, {WS0}, v30")
        e("v_lshlrev_b32 v29, 2, v29")
        e("v_and_b32 v31, 3, v0")
        e("v_xor_b32 v29, v29, v31")
        e("s_lshl_b32 s52, s25, 4\ns_lshl_b32 s53, s24, 3\ns_or_b32 s52, s52, s53")
        e("v_xor_b32 v29, s52, v29")
        for u in range(4):
            e(f"v_xor_b32 v31, {4*u}, v29")
            e(f"v_lshl_add_u32 v{V_WA[u]}, v31, 4, v30")
        e("v_xor_b32 v29, v27, v28")
        e("s_lshl_b32 s53, s24, 3")
        e("v_xor_b32 v29, s53, v29")
        e("s_lshl_b32 s52, s25, 13")
        e(f"s_add_u32 s52, s52, {3*SLOT}")
        e("v_lshlrev_b32 v30, 8, v27")
        e("v_add_u32 v30, s52, v30")
        for u in range(4):
            e(f"v_xor_b32 v31, {4*u}, v29")
            e(f"v_lshl_add_u32 v{V_KA[u]}, v31, 4, v30")
        e("v_bfe_u32 v29, v0, 2, 2")
        e("v_lshl_add_u32 v29, v28, 2, v29")
        e("v_lshlrev_b32 v30, 8, v29")
        e("v_and_b32 v31, 1, v0")
        e("v_lshl_add_u32 v30, v31, 3, v30")
        e("s_lshl_b32 s52, s25, 13")
        e(f"s_add_u32 s52, s52, {3*SLOT + 16384}")
        e("v_add_u32 v30, s52, v30")
        e("v_and_b32 v29, 7, v29")
        e("v_lshlrev_b32 v29, 1, v29")
        e("v_bfe_u32 v31, v0, 1, 1")
        e("v_xor_b32 v29, v29, v31")
        e("s_lshl_b32 s53, s24, 3")
        e("v_xor_b32 v29, s53, v29")
        for T in range(8):
            e(f"v_xor_b32 v31, {2*T}, v29")
            e(f"v_lshl_add_u32 v{V_VA[T]}, v31, 4, v30")
        for r in range(V_O, V_O + 144):
            e(f"v_mov_b32 v{r}, 0")
        for g in self.g_W(1): p.extend(g)

        def rdQ(buf, ks):
            q = []
            wo = (ks % 4) * 16384
            xo = XS[(ks // 2) % 2]
            sp = ks & 1
            for T in range(8):
                u = T >> 1
                q.append(f"ds_read_b64_tr_b16 {aq(FA(buf,T),2)}, v{V_WA[u]} offset:{wo + 8*(T&1)}")
                q.append(f"ds_read_b64_tr_b16 {aq(FA(buf,T)+2,2)}, v{V_WA[u]} offset:{wo + 8*(T&1)+2048}")
            for qt in range(4):
                q.append(f"ds_read_b128 {aq(FB(buf,qt))}, v{V_XA[sp]} offset:{xo + qt*2048}")
            q.append(f"ds_read_b128 {aq(FB(buf,4))}, v{V_XT[sp]} offset:{xo}")
            return mk("\n".join(q))
        def mmQ(buf):
            q = []
            for T in range(8):
                for qt in range(4):
                    q.append(f"v_mfma_f32_16x16x32_bf16 {vq(O_(T,qt))}, {aq(FA(buf,T))}, {aq(FB(buf,qt))}, {vq(O_(T,qt))}")
                if T < 4:
                    q.append(f"v_mfma_f32_16x16x32_bf16 {vq(V_OT+T*4)}, {aq(FA(buf,T))}, {aq(FB(buf,4))}, {vq(V_OT+T*4)}")
            return mk("\n".join(q))
        X = self.exp
        def qbody(s_, wait, dmas):
            if "trQ" in X: e("s_memtime s[92:93]")
            if wait is not None: e(f"s_waitcnt vmcnt({wait}) lgkmcnt(0)")
            else: e("s_waitcnt lgkmcnt(0)")
            if "trQ" in X:
                e("s_memtime s[94:95]")
            e("s_barrier")
            if "trQ" in X:
                e("s_waitcnt lgkmcnt(0)")
                e("s_mov_b32 m0, s96\ns_nop 3\nv_writelane_b32 v17, s92, m0\ns_add_u32 m0, s96, 1\ns_nop 3\nv_writelane_b32 v17, s94, m0\ns_add_u32 s96, s96, 2")
            rd = rdQ((s_ + 1) & 1, (s_ + 1) % 4 + (4 if (s_ + 1) % 4 < 0 else 0)) if (s_ < 15 and "noread" not in X) else []
            if "nodma" in X: dmas = []
            fill = merge_fills(rd, dmas)
            p.extend(interleave(mmQ(s_ & 1) if "nomfma" not in X else mk("s_nop 0"), fill, 0, 27))
        e("s_waitcnt vmcnt(4)")
        e("s_barrier")
        p.extend(rdQ(0, 0))
        for g in self.g_X(1) + self.g_W(2) + self.g_W(3): p.extend(g)
        stamp(p, 2, stamps)
        e("s_mov_b32 s30, 0")
        if "trQ" in X: e("s_mov_b32 s96, 0\nv_mov_b32 v17, 0")
        e(f"{L}_qloop:")
        if not self.regpf:
            waits = [12, 4, 12, 4]
            for k in range(4):
                d = self.g_W(k)
                if k & 1: d = d + self.g_X(((k - 1) // 2) % 2)
                qbody(k, waits[k] if "nodma" not in X else None, d)
        else:
            l24 = self.lab("q24"); ld = self.lab("qd")
            e(f"s_cmp_eq_u32 s30, 0\ns_cbranch_scc0 {l24}\ns_waitcnt vmcnt(12)\ns_branch {ld}\n{l24}:\ns_waitcnt vmcnt(24)\n{ld}:")
            qbody(0, None, self.g_W(0))
            lv = [self.lab("qv") for _ in range(3)]; lj = self.lab("qj")
            e(f"s_cmp_eq_u32 s30, 1\ns_cbranch_scc1 {lv[1]}\ns_cmp_eq_u32 s30, 2\ns_cbranch_scc1 {lv[2]}")
            for it in range(3):
                e(f"{lv[it]}:")
                qbody(1, 4, self.g_W(1) + self.g_X(0) + self.stage_loads(it + 1))
                if it < 2: e(f"s_branch {lj}")
            e(f"{lj}:")
            qbody(2, 20, self.g_W(2))
            qbody(3, 12, self.g_W(3) + self.g_X(1))
        e("s_add_u32 s30, s30, 1")
        e("s_cmp_lt_u32 s30, 3")
        e(f"s_cbranch_scc1 {L}_qloop")
        if not self.regpf:
            qbody(12, 16, self.bundle_static(-1))
            qbody(13, 4, self.bundle_static(0))
            qbody(14, 16, self.pretouch() if (self.fused and self.touch) else [])
            qbody(15, None, self.bundle_static(1))
        else:
            qbody(12, 24, self.bundle_static(-1))
            qbody(13, 4, self.bundle_static(0))
            qbody(14, 16, self.pretouch() if (self.fused and self.touch) else [])
            e("v_lshlrev_b32 v28, 4, v0\nv_add_u32 v28, s39, v28\nv_add_u32 v29, 0x10000, v28")
            qbody(15, None, self.stage_writes())
        e("s_waitcnt lgkmcnt(0)")
        stamp(p, 3, stamps)

        def rdK(buf, extra=0):
            return mk("\n".join(f"ds_read_b128 {aq(K_(buf,kt,u))}, v{V_KA[u]} offset:{kt*4096 + extra}" for kt in range(2) for u in range(4)))
        def read_k0():
            l1 = self.lab("k0p"); l2 = self.lab("k0d")
            e("s_cmp_eq_u32 s24, 0")
            e(f"s_cbranch_scc0 {l1}")
            p.extend(rdK(0, KM1))
            e(f"s_branch {l2}")
            e(f"{l1}:")
            p.extend(rdK(1, KM1))
            e(f"{l2}:")
        self.read_k0 = read_k0
        e(f"s_mov_b32 s48, {fbits(CSCALE):#x}\ns_mov_b32 s49, {fbits(CSCALE):#x}")
        T0 = 176
        k = 0
        for qt in (4, 0, 1, 2, 3):
            for u in range(4 if qt < 4 else 2):
                t = T0 + (k % 4) * 4; k += 1
                for h in range(2):
                    src = O_(2*u+h, qt) if qt < 4 else V_OT + (2*u+h)*4
                    e(f"v_pk_mul_f32 {vq(src,2)}, {vq(src,2)}, s[48:49]")
                    e(f"v_pk_mul_f32 {vq(src+2,2)}, {vq(src+2,2)}, s[48:49]")
                    e(f"v_cvt_pk_bf16_f32 v{t+2*h}, v{src}, v{src+1}")
                    e(f"v_cvt_pk_bf16_f32 v{t+2*h+1}, v{src+2}, v{src+3}")
                for r in range(4): e(f"v_accvgpr_write_b32 a{Q_(qt,u)+r}, v{t+r}")
                if qt == 4:
                    if u == 0:
                        e(f"s_add_u32 s52, s39, {QX}")
                        e(f"v_lshlrev_b32 v27, 4, v0")
                        e(f"v_add_u32 v27, s52, v27")
                    e(f"ds_write_b128 v27, {vq(t)} offset:{u*1024}")
            if qt == 4 and self.early4:
                e("s_waitcnt vmcnt(8) lgkmcnt(0)")
                e("s_barrier")
                e("v_xor_b32 v27, 0x800, v27")
                e(f"ds_read_b128 {aq(Q_(4,2))}, v27")
                e(f"ds_read_b128 {aq(Q_(4,3))}, v27 offset:1024")
                read_k0()
                e("s_waitcnt lgkmcnt(0)")
                e("s_barrier")
                for g in self.bundle_static(4): p.extend(g)
            if lead >= 3 and qt == 1 and not self.regpf:
                for g in self.bundle_static(2): p.extend(g)
            if lead >= 4 and qt == 3 and not self.regpf:
                for g in self.bundle_static(3): p.extend(g)
        if not self.early4:
            e("s_waitcnt lgkmcnt(0)")
            e("s_barrier")
            e("v_xor_b32 v27, 0x800, v27")
            e(f"ds_read_b128 {aq(Q_(4,2))}, v27")
            e(f"ds_read_b128 {aq(Q_(4,3))}, v27 offset:1024")
        for r in range(20): e(f"v_mov_b32 v{V_NM+r}, 0")
        if self.fused: self.fused_setup()
        e("s_mov_b32 s51, 0")
        e(f"{L}_attn:")
        for r in range(4): e(f"v_mov_b32 v{V_ONES+r}, 0x3f803f80")
        for r in range(V_O, V_O + 160): e(f"v_mov_b32 v{r}, 0")
        for r in range(20): e(f"v_mov_b32 v{V_P+r}, 0")
        for r in range(20): e(f"v_accvgpr_write_b32 a{A_L+r}, 0")
        if self.trim:
            lz = self.lab("vz"); lzd = self.lab("vzd")
            e(f"s_cmp_eq_u32 s24, 0\ns_cbranch_scc0 {lz}")
            for r in range(32): e(f"v_accvgpr_write_b32 a{A_V+32+r}, 0")
            e(f"s_branch {lzd}\n{lz}:")
            for r in range(32): e(f"v_accvgpr_write_b32 a{A_V+r}, 0")
            e(f"{lzd}:")
            for r in range(8): e(f"v_mov_b32 v{V_S+8+r}, 0xff800000")
        else:
            for r in range(64): e(f"v_accvgpr_write_b32 a{A_V+r}, 0")
            for r in range(24): e(f"v_mov_b32 v{V_S+r}, 0xff800000")
        stamp(p, 4, stamps)

        def rdV(buf):
            q = []
            for T in range(8):
                q.append(f"ds_read_b64_tr_b16 {aq(Vf(buf,T),2)}, v{V_VA[T]}")
                q.append(f"ds_read_b64_tr_b16 {aq(Vf(buf,T)+2,2)}, v{V_VA[T]} offset:4096")
            return mk("\n".join(q))
        if not self.early4:
            e(f"s_waitcnt vmcnt({8 if self.regpf else 8*lead}) lgkmcnt(0)")
            e("s_barrier")
            read_k0()
        e("s_mov_b32 s30, 0")
        if "trA" in self.exp: e("s_mov_b32 s96, 0")
        e("s_mov_b32 s35, 3")
        if self.fused: e("s_lshl_b32 s41, s26, 16\ns_lshl_b32 s42, s3, 12")
        if self.regpf:
            issue = []; nb = 5 if self.early4 else 4
            for j in range(16):
                if j in self.skips or nb > 15 or (self.early4 and j == 0): continue
                issue.append((j, nb)); nb += 1
            assert nb == 16, issue
            self.issue = issue
            mV = sum(1 << j for j, n in issue); mK = sum(1 << j for j, n in issue if n < 15)
            e(f"s_mov_b32 s43, {mV}\ns_mov_b32 s44, {mK}")
        nb0 = lead + (1 if self.early4 else 0)
        e(f"s_add_u32 s31, s39, {((nb0+4)%5)*SLOT}")
        e(f"s_add_u32 s32, s40, {(nb0+1)*8192}")
        e(f"s_add_u32 s33, s40, {nb0*8192}")
        e("s_cmp_eq_u32 s24, 0")
        e(f"s_cbranch_scc0 {L}_bodyB")

        def ladder(vals, tag):
            runs = []
            for j, v in enumerate(vals):
                if runs and runs[-1][2] == v: runs[-1][1] = j
                else: runs.append([j, j, v])
            done = self.lab(tag + "d")
            if len(runs) == 1:
                e(f"s_waitcnt vmcnt({vals[0]})"); return
            big = max(runs, key=lambda r: r[1] - r[0])
            labs = []
            lb = self.lab(tag)
            if big[0] == 0: e(f"s_cmp_le_u32 s30, {big[1]}\ns_cbranch_scc1 {lb}")
            else: e(f"s_sub_u32 s48, s30, {big[0]}\ns_cmp_le_u32 s48, {big[1]-big[0]}\ns_cbranch_scc1 {lb}")
            labs.append((lb, big[2]))
            rest = [r for r in runs if r is not big]
            for r in rest[:-1]:
                l = self.lab(tag); labs.append((l, r[2]))
                e(f"s_cmp_le_u32 s30, {r[1]}\ns_cbranch_scc1 {l}")
            e(f"s_waitcnt vmcnt({rest[-1][2]})")
            e(f"s_branch {done}")
            for k, (l, n) in enumerate(labs):
                e(f"{l}:\ns_waitcnt vmcnt({n})")
                if k + 1 < len(labs): e(f"s_branch {done}")
            e(f"{done}:")
        def nwait(j):
            if self.regpf:
                if j in (1, 2, 3): return 48
                if j == 0: return 8 if self.early4 else 0
                n = 0
                for (jj, nb) in self.issue:
                    if jj < j and nb > j: n += (4 if nb == 15 else 8)
                if self.fused and j == 15: n += 8
                if self.fused and self.ownfirst and j in (14, 15): n += 6
                return n
            if self.fused and j == 15: return 8
            return sum((4 if i == 15 else 8) for i in range(j + 1, min(j + lead - 1, 15) + 1))
        def top(tag):
            vals = [nwait(j) for j in range(16)]
            if "trA" in self.exp: e("s_memtime s[92:93]")
            ladder(vals, tag)
            e("s_waitcnt lgkmcnt(0)")
            if "trA" in self.exp: e("s_memtime s[94:95]")
            e("s_barrier")
            if "trA" in self.exp:
                e("s_waitcnt lgkmcnt(0)")
                e("s_mov_b32 m0, s96\ns_nop 3\nv_writelane_b32 v18, s92, m0\ns_add_u32 m0, s96, 1\ns_nop 3\nv_writelane_b32 v18, s94, m0\ns_add_u32 s96, s96, 2")
        def dma_groups():
            limV = 16 - lead
            limK = 15 - lead
            cV = "s_bitcmp1_b32 s43, s30" if self.regpf else f"s_cmp_lt_u32 s30, {limV}"
            cK = "s_bitcmp1_b32 s44, s30" if self.regpf else f"s_cmp_lt_u32 s30, {limK}"
            post = mk(f"s_add_u32 s32, s32, 8192\ns_add_u32 s33, s33, 8192\ns_add_u32 s31, s31, 32768\n"
                      f"s_add_u32 s48, s39, {5*SLOT}\ns_cmp_ge_u32 s31, s48\ns_cselect_b32 s48, {5*SLOT}, 0\ns_sub_u32 s31, s31, s48")
            gs = [self.guard(self.g_KV(r, ("s31", 0), ("s32", 0)), cK) for r in (0, 1)]
            gs += [self.guard(self.g_KV(2, ("s31", 0), ("s33", 0)), cV), self.guard(self.g_KV(3, ("s31", 0), ("s33", 0)) + post, cV)]
            return gs
        def adv_read():
            q = ["s_add_u32 s35, s35, 1", "s_cmp_eq_u32 s35, 5", f"s_mov_b32 s34, {SLOT}", f"s_cmov_b32 s34, {-4*SLOT}", "s_cselect_b32 s35, 0, s35"]
            g = [mk("\n".join(q))]
            for r in V_KA + V_VA:
                g.append(mk(f"v_add_u32 v{r}, s34, v{r}")[0])
            return g
        def QK(ebuf, qt, sb):
            q = []
            for u in range(4):
                for kt in range(2):
                    c = vq(NM_(qt)) if u == 0 else vq(S_(sb, kt))
                    q.append(f"v_mfma_f32_16x16x32_bf16 {vq(S_(sb,kt))}, {aq(K_(ebuf,kt,u))}, {aq(Q_(qt,u))}, {c}")
            return mk("\n".join(q))
        def SM(qt, sb):
            q = []
            for kt in range(2):
                b = S_(sb, kt)
                for r in range(4): q.append(f"v_exp_f32 v{b+r}, v{b+r}")
            for kt in range(2):
                b = S_(sb, kt)
                q.append(f"v_cvt_pk_bf16_f32 v{P_(qt)+2*kt}, v{b}, v{b+1}")
                q.append(f"v_cvt_pk_bf16_f32 v{P_(qt)+2*kt+1}, v{b+2}, v{b+3}")
            return mk("\n".join(q))
        def PV(vbuf, qt):
            q = []
            for T in range(8):
                q.append(f"v_mfma_f32_16x16x32_bf16 {vq(O_(T,qt))}, {aq(Vf(vbuf,T))}, {vq(P_(qt))}, {vq(O_(T,qt))}")
            q.append(f"v_mfma_f32_16x16x32_bf16 {aq(L_(qt))}, {vq(V_ONES)}, {vq(P_(qt))}, {aq(L_(qt))}")
            return mk("\n".join(q))
        def body(typ, do_qk=True):
            ebuf = 0 if typ == "A" else 1
            if typ == "A":
                qk = [0, 1, 2, 3, 4]; sb = [0, 1, 2, 0, 1]; pv = [0, 1, 2, 3]; carried = None
            else:
                qk = [0, 1, 2, 3]; sb = [2, 0, 1, 2]; pv = [0, 1, 2, 3, 4]; carried = (4, 1)
            reads = (rdK(ebuf ^ 1) + rdV(ebuf)) if do_qk else []
            dmas = dma_groups() if do_qk else []
            if self.fused:
                if do_qk:
                    pre = []
                    for c in range(2):
                        pre += mk(f"s_add_u32 m0, s42, {c*16384}\ns_add_u32 s36, s41, {c*65536}\n"
                                  f"buffer_load_dwordx4 v{V_DO[0]}, {S_WQ}, s36 offen {self.woflags} lds")
                        for k in range(1, 4):
                            pre += mk(f"buffer_load_dwordx4 v{V_DO[k]}, {S_WQ}, s36 offen offset:{1024*k} {self.woflags} lds")
                    pre += mk("s_add_u32 s41, s41, 131072\ns_add_u32 s42, s42, 32768")
                    grp = self.guard(pre, "s_cmp_ge_u32 s30, 14")
                    if self.ownfirst:
                        wm = mk("s_add_u32 s36, s26, 4\ns_add_u32 s36, s36, s28\ns_and_b32 s36, s36, 15\ns_lshl_b32 s36, s36, 16")
                        for k in range(4):
                            wm += mk(f"buffer_load_dwordx4 a[{228+4*k}:{231+4*k}], v{V_DO[k]}, {S_WQ}, s36 offen offset:{1024*k} {self.woflags}")
                        wm += mk("s_lshr_b32 s36, s28, 1\ns_add_u32 s36, s36, s26\ns_add_u32 s36, s36, 12\ns_and_b32 s36, s36, 15\ns_lshl_b32 s36, s36, 16\n"
                                 "s_and_b32 s37, s28, 1\ns_lshl_b32 s37, s37, 13\ns_add_u32 s36, s36, s37")
                        for k in range(2):
                            wm += mk(f"buffer_load_dwordx4 a[{244+4*k}:{247+4*k}], v{V_DO[k]}, {S_WQ}, s36 offen offset:{1024*k} {self.woflags}")
                        grp = self.guard(wm, "s_cmp_eq_u32 s30, 13") + grp
                    if "nopre" not in self.exp: dmas = dmas + [grp]
            nslots = 5
            per = (len(reads) + nslots - 1) // nslots
            for k in range(nslots):
                main = []
                if do_qk and k < len(qk): main += QK(ebuf, qk[k], sb[k])
                if k < len(pv): main += PV(ebuf ^ 1, pv[k])
                fill = []
                if k == 0:
                    if carried: fill += SM(*carried)
                    if do_qk: fill = adv_read() + fill
                elif do_qk:
                    fill += SM(qk[k-1], sb[k-1])
                rd = reads[k*per:(k+1)*per]
                dm = [dmas[k]] if k < len(dmas) else []
                if k == 0:
                    fill = dm + fill + rd
                else:
                    fill = merge_fills(fill, rd, dm)
                p.extend(interleave(main, fill) if main else _flat(fill))
        from asmlib import _flat
        e(f"{L}_bodyA:")
        top("A"); body("A")
        e("s_add_u32 s30, s30, 1\ns_cmp_eq_u32 s30, 16")
        e(f"s_cbranch_scc1 {L}_endB")
        e(f"{L}_bodyB:")
        top("B"); body("B")
        e("s_add_u32 s30, s30, 1\ns_cmp_eq_u32 s30, 16")
        e(f"s_cbranch_scc0 {L}_bodyA")
        e("s_waitcnt lgkmcnt(0)")
        if self.ldsown: e("s_barrier")
        body("A", do_qk=False)
        e(f"s_branch {L}_epi")
        e(f"{L}_endB:")
        e("s_waitcnt lgkmcnt(0)")
        if self.ldsown: e("s_barrier")
        body("B", do_qk=False)
        e(f"{L}_epi:")
        stamp(p, 5, stamps)

        MA = 139264 if self.ldsown else 65536
        e(f"s_mul_i32 s52, s3, 5120\ns_add_u32 s52, s52, {MA}")
        e("v_lshlrev_b32 v17, 4, v0")
        e("v_add_u32 v27, s52, v17")
        for i in range(4):
            e(f"ds_write_b128 v27, {vq(O_(4+i,4))} offset:{i*1024}")
        e(f"ds_write_b128 v27, {aq(L_(4))} offset:4096")
        if self.fused: self.fused_early()
        for qt in range(5):
            e(f"v_accvgpr_read_b32 v{V_S+qt}, a{L_(qt)}")
        e(f"s_mov_b32 s52, {fbits(L_LO):#x}\ns_mov_b32 s53, {fbits(L_HI):#x}")
        self.store_O_setup()
        e("s_mov_b64 s[56:57], exec")
        for qt in range(4):
            e(f"v_cmp_le_f32 vcc, s52, v{V_S+qt}")
            e(f"v_cmp_ge_f32 s[58:59], s53, v{V_S+qt}")
            e(f"v_rcp_f32 v{V_S+qt}, v{V_S+qt}")
            e("s_and_b64 s[56:57], s[56:57], vcc")
            e("s_and_b64 s[56:57], s[56:57], s[58:59]")
        if "epi" in self.exp: stamp(p, 11, stamps)
        for qt in range(4): self.store_O_tile(qt)
        e("s_waitcnt lgkmcnt(0)")
        e("s_barrier")
        e(f"s_xor_b32 s48, s3, 1\ns_mul_i32 s48, s48, 5120\ns_add_u32 s48, s48, {MA}")
        e("v_add_u32 v27, s48, v17")
        for i in range(4):
            e(f"ds_read_b128 {vq(V_P+i*4)}, v27 offset:{i*1024}")
        e(f"ds_read_b128 {vq(V_S+12)}, v27 offset:4096")
        for i in range(4):
            for r in range(4):
                e(f"v_add_f32 v{O_(i,4)+r}, v{O_(i,4)+r}, v{V_P+i*4+r}")
        e(f"v_add_f32 v{V_S+4}, v{V_S+4}, v{V_S+12}")
        e(f"v_cmp_le_f32 vcc, s52, v{V_S+4}")
        e(f"v_cmp_ge_f32 s[58:59], s53, v{V_S+4}")
        e(f"v_rcp_f32 v{V_S+4}, v{V_S+4}")
        e("s_and_b64 s[56:57], s[56:57], vcc")
        e("s_and_b64 s[56:57], s[56:57], s[58:59]")
        e("s_cmp_eq_u64 s[56:57], exec")
        e("s_cselect_b32 s48, 0, 1")
        e("v_mov_b32 v27, s48")
        e(f"s_lshl_b32 s48, s3, 2\ns_add_u32 s48, s48, {MA + 20480}")
        e("v_mov_b32 v28, s48")
        e("ds_write_b32 v28, v27")
        self.store_O_tile(4)
        if "epi" in self.exp: stamp(p, 12, stamps)
        e("s_waitcnt vmcnt(0) lgkmcnt(0)")
        if "epi" in self.exp: stamp(p, 13, stamps)
        e("s_barrier")
        e(f"v_mov_b32 v28, {MA + 20480}")
        e(f"ds_read_b128 {vq(V_S+12)}, v28")
        e(f"v_or_b32 v27, v{V_S+12}, v{V_S+13}")
        e(f"v_or_b32 v28, v{V_S+14}, v{V_S+15}")
        e("v_or_b32 v27, v27, v28")
        e("v_readfirstlane_b32 s48, v27")
        e("s_cmp_eq_u32 s51, 0")
        e("s_cselect_b32 s48, s48, 0")
        e("s_cmp_eq_u32 s48, 0")
        e(f"s_cbranch_scc0 {L}_fallback")
        if self.fused:
            self.fused_tail()
        else:
            stamp(p, 6, stamps)
            stamp_flush(p, 7, stamps and f"{L}_stf", "s[54:55]")
        if "trQ" in self.exp or "trA" in self.exp:
            tv = 18 if "trA" in self.exp else 17
            l = self.lab("tr")
            e(f"s_cmp_eq_u32 s3, 0\ns_cbranch_scc0 {l}")
            e(f"s_lshl_b32 s58, s2, 8\ns_add_u32 s58, s58, {65*1024*1024}")
            e("v_lshlrev_b32 v251, 2, v0\nv_add_u32 v251, s58, v251")
            e(f"global_store_dword v251, v{tv}, s[54:55]\ns_waitcnt vmcnt(0)")
            e(f"{l}:")
        e(f"s_branch {L}_done")

        e(f"{L}_fallback:")
        e("s_mov_b32 s51, 1")
        e("s_waitcnt vmcnt(0)")
        e("s_barrier")
        e(f"s_mul_i32 s48, s35, {SLOT}")
        for r in V_KA + V_VA:
            e(f"v_subrev_u32 v{r}, s48, v{r}")
        for qt in range(5):
            e(f"v_mov_b32 v{V_P+qt}, 0xff800000")
        e("s_mov_b32 s30, 0")
        e("s_mov_b32 s32, s40")
        e(f"{L}_mx:")
        for r in (0, 1): p.extend(self.g_KV(r, ("s39", 0), ("s32", 0)))
        e("s_waitcnt vmcnt(0)\ns_barrier")
        p.extend(rdK(0))
        for qt in range(5):
            for u in range(4):
                for kt in range(2):
                    c = "0" if u == 0 else vq(S_(0, kt))
                    e(f"v_mfma_f32_16x16x32_bf16 {vq(S_(0,kt))}, {aq(K_(0,kt,u))}, {aq(Q_(qt,u))}, {c}")
            for r in range(0, 8, 2):
                e(f"v_max3_f32 v{V_P+qt}, v{V_S+r}, v{V_S+r+1}, v{V_P+qt}")
        e("s_waitcnt lgkmcnt(0)\ns_barrier")
        e("s_add_u32 s32, s32, 8192\ns_add_u32 s30, s30, 1\ns_cmp_lt_u32 s30, 16")
        e(f"s_cbranch_scc1 {L}_mx")
        e("v_xor_b32 v27, 16, v0\nv_lshlrev_b32 v27, 2, v27")
        e("v_xor_b32 v28, 32, v0\nv_lshlrev_b32 v28, 2, v28")
        for qt in range(5):
            e(f"ds_bpermute_b32 v{V_S}, v27, v{V_P+qt}")
            e(f"v_max_f32 v{V_P+qt}, v{V_P+qt}, v{V_S}")
            e(f"ds_bpermute_b32 v{V_S}, v28, v{V_P+qt}")
            e(f"v_max_f32 v{V_P+qt}, v{V_P+qt}, v{V_S}")
            for r in range(4):
                e(f"v_sub_f32 v{NM_(qt)+r}, 0, v{V_P+qt}")
        for r in V_KA + V_VA:
            e(f"v_add_u32 v{r}, {3*SLOT}, v{r}")
        for j in range(-1, lead):
            for g in self.bundle_static(j): p.extend(g)
        e("s_waitcnt vmcnt(0)")
        if self.early4:
            e("s_barrier")
            self.read_k0()
            e("s_waitcnt lgkmcnt(0)")
            e("s_barrier")
            for g in self.bundle_static(4): p.extend(g)
        e(f"s_branch {L}_attn")
        e(f"{L}_done:")
        e("s_endpgm")
        return p

    def g_Wo(self, slot, kimm):
        gs = [mk(f"s_add_u32 m0, s38, {slot*16384}\ns_add_u32 s36, s41, {kimm*65536}\n"
                 f"buffer_load_dwordx4 v{V_DO[0]}, {S_WQ}, s36 offen {self.woflags} lds")]
        for k in range(1, 4):
            gs.append(mk(f"buffer_load_dwordx4 v{V_DO[k]}, {S_WQ}, s36 offen offset:{1024*k} {self.woflags} lds"))
        return gs
    def pretouch(self):
        q = []
        q.append("s_lshl_b32 s52, s27, 3\ns_add_u32 s52, s52, s28\ns_mul_i32 s53, s52, 1179648")
        q.append("s_bfe_u32 s48, s2, 0x20003\ns_lshl_b32 s52, s52, 2\ns_add_u32 s52, s52, s48\ns_mul_i32 s52, s52, 294912")
        q.append(f"s_add_u32 s52, s52, {PART0}")
        q.append("v_mov_b32 v209, s53")
        q.append("s_add_u32 s53, s53, 0x100000\nv_writelane_b32 v209, s53, 1")
        q.append(f"s_mov_b32 s53, {FLAG1}\nv_writelane_b32 v209, s53, 2")
        q.append("v_writelane_b32 v209, s52, 3\ns_add_u32 s52, s52, 0x47ffc\nv_writelane_b32 v209, s52, 4")
        q.append("global_load_dword v210, v209, s[54:55]")
        q.append("s_mul_i32 s52, s28, 294912\nv_mov_b32 v209, s52\ns_add_u32 s52, s52, 0x47ffc\nv_writelane_b32 v209, s52, 1")
        q.append("global_load_dword v211, v209, s[84:85]")
        q.append("s_and_b32 s52, s2, 3\ns_lshl_b32 s52, s52, 20\nv_mov_b32 v209, s52\ns_add_u32 s52, s52, 0xffffc\nv_writelane_b32 v209, s52, 1")
        q.append("global_load_dword v199, v209, s[98:99]")
        l = self.lab("pt")
        return [mk(f"s_cmp_eq_u32 s3, 3\ns_cbranch_scc0 {l}") + mk("\n".join(q)) + mk(f"{l}:")]
    def fused_setup(self):
        e = self.p.e
        e("s_and_b32 s46, s2, 3\ns_bfe_u32 s47, s2, 0x20003")
        if self.ownfirst: e("s_lshl_b32 s26, s47, 2")
        e("s_lshl_b32 s52, s46, 20\ns_lshl_b32 s53, s47, 8\ns_add_u32 s52, s52, s53")
        e("s_add_u32 s8, s98, s52\ns_addc_u32 s9, s99, 0\ns_sub_u32 s10, 0x400000, s52\ns_mov_b32 s11, 0x20000")
        if self.wonat:
            e("v_and_b32 v29, 15, v0")
            for k in range(2):
                e(f"v_lshrrev_b32 v27, 4, v0\nv_add_u32 v27, {4*k}, v27")
                e("v_lshlrev_b32 v28, 1, v27\nv_xor_b32 v28, v28, v29\nv_lshlrev_b32 v28, 4, v28")
                e("s_lshl_b32 s52, s3, 4\nv_add_u32 v27, s52, v27")
                e(f"v_lshl_add_u32 v{V_DO[k]}, v27, 10, v28")
                if k: e(f"v_subrev_u32 v{V_DO[k]}, 1024, v{V_DO[k]}")
            for k in range(2, 4): e(f"v_add_u32 v{V_DO[k]}, {8192 - 2048}, v{V_DO[k-2]}")
        else:
            e("v_lshrrev_b32 v27, 4, v0")
            e("v_lshlrev_b32 v28, 2, v27")
            e("v_and_b32 v29, 15, v0")
            e("v_xor_b32 v28, v28, v29")
            e("v_lshlrev_b32 v28, 4, v28")
            e("s_lshl_b32 s52, s3, 4")
            e("v_add_u32 v27, s52, v27")
            e(f"v_lshl_add_u32 v{V_DO[0]}, v27, 10, v28")
            for k in range(1, 4): e(f"v_add_u32 v{V_DO[k]}, {3072*k}, v{V_DO[0]}")
        e("v_lshlrev_b32 v27, 4, v0")
        e(f"v_add_u32 v{V_DOO}, s45, v27")
        e(f"v_add_u32 v{V_BO[0]}, {OB0}, v27")
        e(f"v_add_u32 v{V_BO[1]}, {OB0 + 2*18432}, v27")
        if self.wonat:
            e("v_lshrrev_b32 v27, 4, v0\nv_bfe_u32 v28, v0, 2, 2\nv_lshl_add_u32 v27, v27, 2, v28")
            e("v_and_b32 v28, 7, v27\nv_lshlrev_b32 v28, 1, v28")
            e("v_bfe_u32 v29, v0, 1, 1\ns_lshl_b32 s52, s3, 2\nv_add_u32 v29, s52, v29\nv_xor_b32 v28, v28, v29")
            e("v_and_b32 v29, 1, v0\nv_lshlrev_b32 v29, 3, v29\nv_lshl_add_u32 v27, v27, 8, v29")
            e(f"v_lshl_add_u32 v{V_AO}, v28, 4, v27")
            e(f"v_xor_b32 v28, 2, v28\nv_lshl_add_u32 v{V_AO1}, v28, 4, v27")
        else:
            e("v_lshrrev_b32 v27, 4, v0")
            e("v_bfe_u32 v28, v0, 2, 2")
            e("v_lshl_add_u32 v27, v27, 2, v28")
            e("v_lshlrev_b32 v28, 2, v28")
            e("v_and_b32 v29, 3, v0")
            e("s_lshl_b32 s52, s3, 2")
            e("v_add_u32 v29, s52, v29")
            e("v_xor_b32 v28, v28, v29")
            e("v_lshlrev_b32 v28, 4, v28")
            e(f"v_lshl_add_u32 v{V_AO}, v27, 8, v28")
        l = self.lab("nonce")
        e(f"s_cmp_eq_u32 s2, 0\ns_cbranch_scc0 {l}\ns_cmp_eq_u32 s3, 0\ns_cbranch_scc0 {l}")
        e("s_memrealtime s[88:89]\ns_waitcnt lgkmcnt(0)\ns_or_b32 s88, s88, 1")
        e("v_mov_b32 v30, s88\nv_mov_b32 v31, s89\nv_mov_b32 v29, 0")
        e("s_mov_b64 exec, 1\ns_nop 4")
        e("global_store_dwordx2 v29, v[30:31], s[86:87] sc1")
        e("s_mov_b64 exec, -1")
        e(f"{l}:")
    def fused_early(self):
        e = self.p.e
        l = self.lab("early")
        if not self.wavex: e(f"s_cmp_eq_u32 s3, 0\ns_cbranch_scc0 {l}")
        e("v_mov_b32 v27, 0")
        e("global_load_dwordx2 v[240:241], v27, s[86:87] sc1")
        if self.inv: e("buffer_inv sc1")
        e(f"{l}:")
    def poll(self, base_sreg, tag, stride_shift=3):
        e = self.p.e
        lp = self.lab(tag + "p"); dn = self.lab(tag + "d")
        e("s_mov_b64 exec, 15\ns_nop 4")
        e(f"v_lshlrev_b32 v27, {stride_shift}, v0\nv_add_u32 v27, {base_sreg}, v27")
        e("s_mov_b32 s97, 0")
        e(f"{lp}:")
        e("global_load_dwordx2 v[30:31], v27, s[54:55] sc1")
        e("s_waitcnt vmcnt(0)")
        e("v_cmp_eq_u32 vcc, s88, v30\nv_cmp_eq_u32 s[56:57], s89, v31")
        e("s_nop 3\ns_and_b64 s[56:57], s[56:57], vcc\ns_cmp_eq_u64 s[56:57], exec")
        e(f"s_cbranch_scc1 {dn}")
        e(f"s_sleep 1\ns_add_u32 s97, s97, 1\ns_cmp_lt_u32 s97, 0x40000\ns_cbranch_scc1 {lp}")
        e(f"{dn}:")
        e("s_mov_b64 exec, -1")
    def signal(self, base_sreg, member_sreg):
        e = self.p.e
        e(f"s_lshl_b32 s48, {member_sreg}, 3\ns_add_u32 s48, s48, {base_sreg}")
        e("v_mov_b32 v27, s48\nv_mov_b32 v30, s88\nv_mov_b32 v31, s89")
        e("s_mov_b64 exec, 1\ns_nop 4")
        e("global_store_dwordx2 v27, v[30:31], s[54:55] sc1")
        e("s_mov_b64 exec, -1")
    def fused_tail(self):
        p = self.p; e = p.e; L = self.name; stamps = self.stamps
        stamp(p, 6, stamps)
        e("s_and_b32 s46, s2, 3\ns_bfe_u32 s47, s2, 0x20003")
        e("s_lshl_b32 s52, s27, 2\ns_add_u32 s52, s52, s46\ns_lshl_b32 s52, s52, 3\ns_add_u32 s52, s52, s28")
        e(f"s_lshl_b32 s52, s52, 7\ns_add_u32 s43, s52, {FLAG1}")
        e("s_lshl_b32 s52, s27, 3\ns_add_u32 s52, s52, s28\ns_lshl_b32 s52, s52, 2\ns_add_u32 s52, s52, s47")
        e(f"s_mul_i32 s53, s52, 294912\ns_add_u32 s53, s53, {PART0}")
        e(f"s_lshl_b32 s52, s52, 7\ns_add_u32 s44, s52, {FLAG2}")
        e("s_add_u32 s4, s54, s53\ns_addc_u32 s5, s55, 0\ns_mov_b32 s6, 294912\ns_mov_b32 s7, 0x20000")
        e("s_mov_b32 s12, s84\ns_mov_b32 s13, s85\ns_mov_b32 s14, 2359296\ns_mov_b32 s15, 0x20000")
        e("s_mul_i32 s45, s3, 5\ns_cmp_eq_u32 s3, 3\ns_cselect_b32 s53, 1, 0\ns_sub_u32 s45, s45, s53\ns_lshl_b32 s45, s45, 10")
        def g_O(slot, kimm):
            fl = self.oloadflags
            gs = [mk(f"s_add_u32 m0, s45, {OB0 + slot*18432}\ns_add_u32 s37, s50, {kimm*18432}\n"
                     f"buffer_load_dwordx4 v{V_DOO}, {S_OW}, s37 offen {fl} lds")]
            for k in range(1, 4):
                gs.append(mk(f"buffer_load_dwordx4 v{V_DOO}, {S_OW}, s37 offen offset:{k*1024} {fl} lds"))
            l = self.lab("o5")
            gs.append(mk(f"s_cbranch_vccz {l}\ns_add_u32 m0, s45, {OB0 + slot*18432 + 4096}\ns_add_u32 s37, s37, 4096\n"
                         f"buffer_load_dwordx4 v{V_DOO}, {S_OW}, s37 offen {fl} lds\n{l}:"))
            return gs
        def get_tag():
            lp = self.lab("np"); dn = self.lab("nd")
            e("s_mov_b32 s97, 0\nv_mov_b32 v27, 0")
            e("v_readfirstlane_b32 s88, v240\nv_readfirstlane_b32 s89, v241")
            e(f"s_nop 3\ns_cmp_lg_u32 s88, 0\ns_cbranch_scc1 {dn}")
            e(f"{lp}:")
            e("global_load_dwordx2 v[30:31], v27, s[86:87] sc1\ns_waitcnt vmcnt(0)")
            e("v_readfirstlane_b32 s88, v30\nv_readfirstlane_b32 s89, v31")
            e(f"s_nop 3\ns_cmp_lg_u32 s88, 0\ns_cbranch_scc1 {dn}")
            e(f"s_sleep 1\ns_add_u32 s97, s97, 1\ns_cmp_lt_u32 s97, 0x40000\ns_cbranch_scc1 {lp}")
            e(f"{dn}:")
        if self.wavex: get_tag()
        lw = self.lab("w0")
        e(f"s_cmp_eq_u32 s3, 0\ns_cbranch_scc0 {lw}")
        if not self.wavex: get_tag()
        self.signal("s43", "s47")
        e(f"{lw}:")
        e("s_lshl_b32 s38, s3, 12")
        e(f"s_mul_i32 s33, s46, 294912")
        def FAo(buf, ks, ee): return buf * 88 + ks * 8 + ee * 4
        def FBo(buf, ks, qt): return buf * 88 + 16 + (ks * 9 + qt) * 4
        def acc(ee, qt): return 32 + (ee * 9 + qt) * 4
        def rdO(buf, slot):
            q = []
            for ks in range(2):
                for ee in range(2):
                    for hf in range(2):
                        if self.wonat:
                            q.append(f"ds_read_b64_tr_b16 {aq(FAo(buf,ks,ee)+2*hf,2)}, v{V_AO1 if ee else V_AO} offset:{slot*16384 + ks*8192 + hf*4096}")
                        else:
                            q.append(f"ds_read_b64_tr_b16 {aq(FAo(buf,ks,ee)+2*hf,2)}, v{V_AO} offset:{slot*16384 + ks*8192 + hf*4096 + 8*ee}")
                for qt in range(9):
                    q.append(f"ds_read_b128 {aq(FBo(buf,ks,qt))}, v{V_BO[slot >> 1]} offset:{(slot & 1)*18432 + (ks*9+qt)*1024}")
            return mk("\n".join(q))
        def mmO(buf):
            q = []
            for ks in range(2):
                for ee in range(2):
                    for qt in range(9):
                        q.append(f"v_mfma_f32_16x16x32_bf16 {vq(acc(ee,qt))}, {aq(FAo(buf,ks,ee))}, {aq(FBo(buf,ks,qt))}, {vq(acc(ee,qt))}")
            return mk("\n".join(q))
        X = self.exp
        if self.ldsown:
            e("s_cmp_lt_u32 s3, 2\ns_cselect_b64 vcc, -1, 0")
            for r in range(32, 104): e(f"v_mov_b32 v{r}, 0")
            stamp(p, 7, stamps)
        elif self.ownfirst:
            e("s_cmp_lt_u32 s3, 2\ns_cselect_b64 vcc, -1, 0")
            e("s_mul_i32 s48, s26, 18432\ns_add_u32 s50, s33, s48")
            for g in g_O(0, 0) + g_O(1, 1): p.extend(g)
            for r in range(32, 104): e(f"v_mov_b32 v{r}, 0")
            lw = self.lab("w0b")
            e(f"s_cmp_eq_u32 s3, 0\ns_cbranch_scc0 {lw}")
            self.poll("s43", "f1")
            e("s_cmp_lt_u32 s3, 2\ns_cselect_b64 vcc, -1, 0")
            e(f"{lw}:")
            e("s_waitcnt vmcnt(4)")
            e("s_barrier")
            stamp(p, 7, stamps)
        else:
            if self.readback:
                e("s_cmp_lt_u32 s3, 2\ns_cselect_b64 vcc, -1, 0")
                e("s_mul_i32 s48, s47, 73728\ns_add_u32 s50, s33, s48")
                for sl in range(4):
                    for g in g_O(sl, sl): p.extend(g)
            for r in range(32, 104): e(f"v_mov_b32 v{r}, 0")
            lw = self.lab("w0b")
            e(f"s_cmp_eq_u32 s3, 0\ns_cbranch_scc0 {lw}")
            self.poll("s43", "f1")
            e(f"{lw}:")
            e("s_barrier")
            stamp(p, 7, stamps)
            e("s_cmp_lt_u32 s3, 2\ns_cselect_b64 vcc, -1, 0")
            e("s_mul_i32 s48, s26, 18432\ns_add_u32 s50, s33, s48")
            for g in g_O(0, 0) + g_O(1, 1): p.extend(g)
            e("s_waitcnt vmcnt(4)")
            e("s_barrier")
        p.extend(rdO(0, 0))
        if not self.ldsown:
            for g in g_O(2, 2) + g_O(3, 3): p.extend(g)
        e("s_add_u32 s34, s26, 4\ns_and_b32 s34, s34, 15")
        e("s_mul_i32 s48, s34, 18432\ns_add_u32 s50, s33, s48\ns_lshl_b32 s41, s34, 16")
        if self.ldsown:
            e("s_mov_b32 s32, s50\ns_mul_i32 s48, s26, 18432\ns_add_u32 s50, s33, s48")
        e("s_mov_b32 s30, 0")
        if "trO" in self.exp: e("s_mov_b32 s96, 0")
        if "olp" in self.exp: stamp(p, 11, stamps)
        e(f"{L}_oloop:")
        for k in range(4):
            if "trO" in X: e("s_memtime s[92:93]")
            if self.ldsown:
                if k < 3:
                    lc = self.lab("oc"); ld = self.lab("od")
                    e(f"s_cmp_eq_u32 s30, 0\ns_cbranch_scc1 {ld}\ns_waitcnt vmcnt(16)\n{ld}:")
                else:
                    e("s_waitcnt vmcnt(16)")
                if k == 1:
                    lp = self.lab("op")
                    e(f"s_cmp_eq_u32 s30, 0\ns_cbranch_scc0 {lp}\ns_cmp_eq_u32 s3, 0\ns_cbranch_scc0 {lp}")
                    self.poll("s43", "f1")
                    e("s_cmp_lt_u32 s3, 2\ns_cselect_b64 vcc, -1, 0")
                    e(f"{lp}:")
            elif k < 3:
                lc = self.lab("oc"); ld = self.lab("od")
                first = [8, 8, 16][k]
                if first != 16:
                    e(f"s_cmp_eq_u32 s30, 0\ns_cbranch_scc0 {lc}\ns_waitcnt vmcnt({[8, 12, 16][k]})\ns_branch {ld}\n{lc}:\ns_waitcnt vmcnt(16)\n{ld}:")
                else:
                    e("s_waitcnt vmcnt(16)")
            else:
                e("s_waitcnt vmcnt(16)")
            e("s_waitcnt lgkmcnt(0)")
            if "trO" in X: e("s_memtime s[94:95]")
            e("s_barrier")
            if "trO" in X:
                e("s_waitcnt lgkmcnt(0)")
                e("s_mov_b32 m0, s96\ns_nop 3\nv_writelane_b32 v18, s92, m0\ns_add_u32 m0, s96, 1\ns_nop 3\nv_writelane_b32 v18, s94, m0\ns_add_u32 s96, s96, 2")
            if self.ldsown and k == 1:
                lx = self.lab("ox")
                e(f"s_cmp_eq_u32 s30, 0\ns_cbranch_scc0 {lx}\ns_mov_b32 s50, s32")
                for g in g_O(0, 0): p.extend(g)
                e(f"{lx}:")
            dm = ([] if "onoO" in X else g_O(k, k)) + ([] if "onoW" in X else self.g_Wo(k, k))
            fill = merge_fills(rdO((k + 1) & 1, (k + 1) & 3) if "onord" not in X else [], dm)
            p.extend(interleave(mmO(k & 1) if "onomm" not in X else mk("s_nop 0"), fill, 0, 29))
        e("s_add_u32 s34, s34, 4\ns_and_b32 s34, s34, 15")
        e("s_mul_i32 s48, s34, 18432\ns_add_u32 s50, s33, s48\ns_lshl_b32 s41, s34, 16")
        if self.oobtail:
            e("s_cmp_eq_u32 s30, 2\ns_cselect_b32 s50, 0x7f000000, s50\ns_cselect_b32 s41, 0x7f000000, s41")
        e("s_add_u32 s30, s30, 1\ns_cmp_lt_u32 s30, 4")
        e(f"s_cbranch_scc1 {L}_oloop")
        e("s_waitcnt lgkmcnt(0)")
        stamp(p, 8, stamps)
        e("v_lshlrev_b32 v27, 4, v0\ns_lshl_b32 s52, s3, 11\nv_add_u32 v26, s52, v27")
        e(f"v_and_b32 v25, 15, v0\nv_lshlrev_b32 v25, 11, v25\nv_lshrrev_b32 v24, 4, v0\nv_lshl_add_u32 v25, v24, {3 if self.wonat else 4}, v25")
        e("s_lshl_b32 s52, s3, 6\nv_add_u32 v25, s52, v25")
        e("s_mul_i32 s52, s28, 294912\ns_lshl_b32 s53, s27, 10\ns_add_u32 s52, s52, s53\ns_lshl_b32 s53, s47, 8\ns_add_u32 s45, s52, s53")
        e("s_mul_i32 s42, s46, 73728")
        labs = [self.lab(f"oc{o}") for o in range(4)]
        fin = self.lab("ofin")
        for o in range(1, 4):
            e(f"s_cmp_eq_u32 s46, {o}\ns_cbranch_scc1 {labs[o]}")
        for o in range(4):
            e(f"{labs[o]}:")
            for qt in range(9):
                if qt in OWN[o]: continue
                if self.pbf16:
                    a0, a1 = acc(0, qt), acc(1, qt)
                    e(f"v_cvt_pk_bf16_f32 v{a0}, v{a0}, v{a0+1}\nv_cvt_pk_bf16_f32 v{a0+1}, v{a0+2}, v{a0+3}")
                    e(f"v_cvt_pk_bf16_f32 v{a0+2}, v{a1}, v{a1+1}\nv_cvt_pk_bf16_f32 v{a0+3}, v{a1+2}, v{a1+3}")
                    e(f"s_add_u32 s48, s42, {qt*8192}")
                    e(f"buffer_store_dwordx4 {vq(a0)}, v26, s[4:7], s48 offen sc1")
                    continue
                e(f"s_add_u32 s48, s42, {qt*8192}")
                for ee in range(2):
                    e(f"buffer_store_dwordx4 {vq(acc(ee,qt))}, v26, s[4:7], s48 offen offset:{ee*1024} sc1")
            if self.wavex:
                e("s_waitcnt vmcnt(0)")
                e("s_lshl_b32 s48, s46, 2\ns_add_u32 s49, s48, s3")
                self.signal("s44", "s49")
                e("s_lshl_b32 s48, s3, 3\ns_add_u32 s49, s44, s48")
                self.poll("s49", "f2", stride_shift=5)
            else:
                e("s_waitcnt vmcnt(0)\ns_barrier")
                lw = self.lab("w1")
                e(f"s_cmp_eq_u32 s3, 0\ns_cbranch_scc0 {lw}")
                self.signal("s44", "s46")
                self.poll("s44", "f2")
                e(f"{lw}:")
                e("s_barrier")
            stamp(p, 9, stamps)
            T = 112
            k = 0
            for d in range(1, 4):
                src = (o + d) & 3
                for qt in OWN[o]:
                    e(f"s_mov_b32 s48, {src*73728 + qt*8192}")
                    for ee in range(1 if self.pbf16 else 2):
                        e(f"buffer_load_dwordx4 {vq(T + k*4)}, v26, s[4:7], s48 offen offset:{ee*1024} sc1"); k += 1
            nl = k
            k = 0
            for d in range(1, 4):
                for qt in OWN[o]:
                    if self.pbf16:
                        e(f"s_waitcnt vmcnt({nl - 1 - k})")
                        t = T + k * 4
                        for r in range(4):
                            ee, i = r >> 1, (r & 1) * 2
                            e(f"v_lshlrev_b32 v106, 16, v{t+r}\nv_and_b32 v107, 0xffff0000, v{t+r}")
                            e(f"v_add_f32 v{acc(ee,qt)+i}, v{acc(ee,qt)+i}, v106\nv_add_f32 v{acc(ee,qt)+i+1}, v{acc(ee,qt)+i+1}, v107")
                        k += 1
                        continue
                    for ee in range(2):
                        e(f"s_waitcnt vmcnt({nl - 1 - k})")
                        for r in range(4):
                            e(f"v_add_f32 v{acc(ee,qt)+r}, v{acc(ee,qt)+r}, v{T + k*4 + r}")
                        k += 1
            for qt in OWN[o]:
                a0, a1 = acc(0, qt), acc(1, qt)
                e(f"v_cvt_pk_bf16_f32 v{a0}, v{a0}, v{a0+1}\nv_cvt_pk_bf16_f32 v{a0+1}, v{a0+2}, v{a0+3}")
                e(f"v_cvt_pk_bf16_f32 v{a0+2}, v{a1}, v{a1+1}\nv_cvt_pk_bf16_f32 v{a0+3}, v{a1+2}, v{a1+3}")
                e(f"s_add_u32 s48, s45, {qt*32768}")
                if self.wonat:
                    e(f"buffer_store_dwordx2 {vq(a0,2)}, v25, s[12:15], s48 offen")
                    e(f"buffer_store_dwordx2 {vq(a0+2,2)}, v25, s[12:15], s48 offen offset:32")
                else:
                    e(f"buffer_store_dwordx4 {vq(a0)}, v25, s[12:15], s48 offen {self.outflags}")
            if o < 3: e(f"s_branch {fin}")
        e(f"{fin}:")
        e("s_waitcnt vmcnt(0)")
        stamp(p, 10, stamps)
        stamp_flush(p, 14 if ("epi" in self.exp or "olp" in self.exp) else 11, stamps and f"{L}_stf", "s[54:55]")
        if "trO" in self.exp:
            l = self.lab("tr")
            e(f"s_cmp_eq_u32 s3, 0\ns_cbranch_scc0 {l}")
            e(f"s_lshl_b32 s58, s2, 8\ns_add_u32 s58, s58, {65*1024*1024}")
            e("v_lshlrev_b32 v251, 2, v0\nv_add_u32 v251, s58, v251")
            e(f"global_store_dword v251, v18, s[54:55]\ns_waitcnt vmcnt(0)")
            e(f"{l}:")
    def store_O_setup(self):
        e = self.p.e
        if self.ldsown:
            e("s_lshl_b32 s36, s25, 1\ns_add_u32 s37, s36, s24\ns_mul_i32 s37, s37, 18432")
            e("s_xor_b32 s48, s24, 1\ns_add_u32 s48, s48, s36\ns_mul_i32 s48, s48, 18432")
            e(f"s_add_u32 s37, s37, {OB0}\ns_add_u32 s48, s48, {OB0}\ns_lshl_b32 s36, s24, 12")
            e("v_add_u32 v31, s37, v17")
            e("v_add_u32 v29, s36, v31")
            e("s_add_u32 s48, s48, s36\nv_add_u32 v30, s48, v17")
        e("s_add_u32 s36, s29, s25")
        e("s_lshl_b32 s36, s36, 2")
        e("s_lshl_b32 s37, s24, 1")
        for u in range(4):
            e(f"s_xor_b32 s48, s37, {u}")
            e("s_add_u32 s48, s48, s36")
            e("s_mul_i32 s48, s48, 9216")
            e("s_lshl_b32 s49, s24, 12")
            e(f"s_add_u32 s{42+u}, s48, s49")
            if u < 2: e(f"s_add_u32 s{46+u}, s48, 8192")
    def store_O_tile(self, qt):
        e = self.p.e
        rc = V_S + qt
        e(f"v_mov_b32 v{V_S+9}, v{rc}\nv_mov_b32 v{V_S+8}, v{rc}")
        for u in range(4 if qt < 4 else 2):
            a, b = O_(2*u, qt), O_(2*u+1, qt)
            for x in (a, a+2, b, b+2):
                e(f"v_pk_mul_f32 {vq(x,2)}, {vq(x,2)}, {vq(V_S+8,2)}")
            e(f"v_cvt_pk_bf16_f32 v{a}, v{a}, v{a+1}")
            e(f"v_cvt_pk_bf16_f32 v{a+1}, v{a+2}, v{a+3}")
            e(f"v_cvt_pk_bf16_f32 v{a+2}, v{b}, v{b+1}")
            e(f"v_cvt_pk_bf16_f32 v{a+3}, v{b+2}, v{b+3}")
            if qt < 4:
                e(f"buffer_store_dwordx4 {vq(a)}, v17, {S_OW}, s{42+u} offen offset:{qt*1024} {self.oflags}")
                if self.ldsown: e(f"ds_write_b128 v{29 if u < 2 else 30}, {vq(a)} offset:{((u & 1)*9 + qt)*1024}")
            else:
                e(f"buffer_store_dwordx4 {vq(a)}, v17, {S_OW}, s{46+u} offen {self.oflags}")
                if self.ldsown: e(f"ds_write_b128 v31, {vq(a)} offset:{((u & 1)*9 + 8)*1024}")

def gen_k1(name, **kw):
    return K1(name, **kw).gen()

if __name__ == "__main__":
    import sys
    st = len(sys.argv) > 1
    def out(fn, **kw):
        p = gen_k1("k1_kernel", stamps=st, **kw)
        txt, n = finalize(p, "k1_kernel")
        print(fn, "nops inserted", n, "instrs", len(p))
        open(fn, "w").write("; @launch kernel=k1_kernel grid=(256,1,1) block=(256,1,1) lds=163840\n.amdgcn_target \"amdgcn-amd-amdhsa--gfx950\"\n.text\n" + txt + kd("k1_kernel"))
    out("k1_only.s")
    for x in sys.argv[2:]:
        if x.startswith("rot"): out(f"k1_{x}.s", rot=int(x[3:]))
        elif x == "regpf": out(f"k1_{x}.s", regpf=True, lead=4)
        elif x.startswith("lead"): out(f"k1_{x}.s", lead=int(x[4:]))
        elif x.startswith("M"): out(f"k1_{x}.s", mapping=x)
        elif x.startswith("fused"): out(f"k1_{x}.s", fused=True, oflags="sc1", inv=("noinv" not in x), oloadflags=("sc1" if "osc1" in x else ""))
        elif x.startswith("o_"): out(f"k1_{x}.s", oflags=x[2:].replace("_", " "))
        elif x == "wnt": out(f"k1_{x}.s", wflags="nt")
        elif x == "kvdef": out(f"k1_{x}.s", kvflags="")
        else: out(f"k1_{x}.s", exp=x)
```

```python
import sys
from gen_k1 import gen_k1
from gen_k2 import gen_k2, kd, finalize
HEADER = open("concat_heads__gqa_block_cached__mha_block_cached__near_ridge.s.ref").read().split("; Override launch")[0]
import gen_k2 as G2
def build(out, stamps=False, dbg=False, **kw):
    if dbg: G2.DBG_MODE[0] = (512, 0)
    k1 = gen_k1("attn_kernel", stamps=stamps or dbg, **kw.get("k1", {}))
    if dbg: G2.DBG_MODE[0] = (0, 8)
    k2 = gen_k2("oproj_kernel", stamps=dbg, **kw.get("k2", {}))
    G2.DBG_MODE[0] = None
    t1, n1 = finalize(k1, "attn_kernel")
    t2, n2 = finalize(k2, "oproj_kernel")
    s = HEADER
    s += "; @launch kernel=attn_kernel grid=(256,1,1) block=(256,1,1) lds=163840\n"
    s += "; @launch kernel=oproj_kernel grid=(256,1,1) block=(256,1,1) lds=131072\n"
    s += '.amdgcn_target "amdgcn-amd-amdhsa--gfx950"\n.text\n'
    s += t1 + kd("attn_kernel") + t2 + kd("oproj_kernel")
    open(out, "w").write(s)
    print(out, "nops", n1, n2, "bytes", len(s))
DOC = """;
;
"""
KNAME = "concat_heads__gqa_block_cached__mha_block_cached__near_ridge_kernel"
def build_fused(out, stamps=False, dbg=False, **kw):
    G2.STAMP_CYC[0] = False
    if dbg: G2.DBG_MODE[0] = (0, 2); stamps = True
    kw.setdefault("oflags", "sc1"); kw.setdefault("inv", False); kw.setdefault("oloadflags", "sc1")
    k = gen_k1(KNAME, stamps=stamps, fused=True, **kw)
    t, n = finalize(k, KNAME)
    s = HEADER
    s += "; @launch grid=(256,1,1) block=(256,1,1) lds=163840\n"
    s += DOC
    s += '.amdgcn_target "amdgcn-amd-amdhsa--gfx950"\n.text\n'
    s += t + kd(KNAME)
    open(out, "w").write(s)
    G2.STAMP_CYC[0] = True
    G2.DBG_MODE[0] = None
    print(out, "nops", n, "bytes", len(s))
FINAL = dict(regpf=True, lead=4, pbf16=True, early4=True, codewarm=True, ldsown=True, oobtail=True, trim=True, prepoll=True)
if __name__ == "__main__":
    build_fused("concat_heads__gqa_block_cached__mha_block_cached__near_ridge.s", **FINAL)
```

```python
from asmlib import *
from gen_k2 import stamp, stamp_flush, kd, finalize
import struct

def fbits(x): return struct.unpack("<I", struct.pack("<f", x))[0]
CSCALE = 1.4426950408889634 / (128 ** 0.5)
L_LO = 2.0 ** -64
L_HI = 2.0 ** 16

XS = [0, 18432]
WS0 = 36864
SLOT = 32768
QX = 106496
KM1 = 16384

OS0 = 98304
OB0 = 65536
FLAG1 = 0x1400000
FLAG2 = FLAG1 + 8192
PART0 = 0x1600000
V_DO = [19, 23, 24, 25]; V_DOO = 20; V_AO = 21; V_AO1 = 18; V_BO = [22, 26]
OWN = [[0, 1, 2], [3, 4], [5, 6], [7, 8]]
STG = [f"a[{80+4*i}:{83+4*i}]" for i in range(12)] + [f"a[{232+4*i}:{235+4*i}]" for i in range(6)] + [f"v[{212+4*i}:{215+4*i}]" for i in range(6)]
V_DK = [1, 2]; V_DV = [3, 4]
V_KA = [5, 6, 7, 8]
V_VA = list(range(9, 17))
V_DW = [205, 206, 207, 208]; V_DX = [200, 201, 202, 203, 204]
V_XA = [19, 20]; V_XT = [21, 22]
V_WA = [23, 24, 25, 26]
V_ONES = 28
V_O = 32
V_OT = 160
V_S = 192; V_P = 216; V_NM = 236
def vq(b, n=4): return f"v[{b}:{b+n-1}]"
def aq(b, n=4): return f"a[{b}:{b+n-1}]"
def O_(T, qt): return V_O + (T * 4 + qt) * 4 if qt < 4 else V_OT + T * 4
def S_(buf, kt): return V_S + buf * 8 + kt * 4
def P_(qt): return V_P + qt * 4
def NM_(qt): return V_NM + qt * 4
A_Q = 0
def Q_(qt, u): return A_Q + (qt * 4 + u) * 4 if qt < 4 else 64 + u * 4
A_L = 80
def L_(qt): return A_L + qt * 4
A_K = 100
def K_(buf, kt, u): return A_K + buf * 32 + (kt * 4 + u) * 4
A_V = 164
def Vf(buf, T): return A_V + buf * 32 + T * 4
A_FR = 128
def FA(buf, T): return A_FR + buf * 52 + T * 4
def FB(buf, qt): return A_FR + buf * 52 + 32 + qt * 4

S_X = "s[4:7]"; S_WQ = "s[8:11]"; S_K = "s[12:15]"; S_V = "s[16:19]"; S_OW = "s[20:23]"

class K1:
    def __init__(self, name, mapping="M1", kvflags="nt", wflags="", oflags="", stamps=False, rot=4, lead=2, bursts=(2, 4), exp="", fused=False, inv=True, oloadflags="", woflags="", touch=False, regpf=False, skips=(5, 9), readback=False, wavex=False, pbf16=False, ownfirst=False, early4=False, codewarm=False, ldsown=False, wonat=False, outflags="", oobtail=False, trim=False, throttle=None):
        self.throttle = throttle
        self.oobtail = oobtail; self.trim = trim
        self.outflags = outflags
        self.wonat = wonat
        self.ldsown = ldsown
        if ldsown: ownfirst = True
        self.codewarm = codewarm
        self.early4 = early4
        self.pbf16 = pbf16; self.ownfirst = ownfirst or ldsown
        self.readback = readback; self.wavex = wavex
        self.touch = touch; self.regpf = regpf; self.skips = skips
        self.exp = exp; self.fused = fused; self.inv = inv; self.oloadflags = oloadflags; self.woflags = woflags
        self.name = name; self.mapping = mapping; self.kvflags = kvflags; self.wflags = wflags; self.oflags = oflags
        self.stamps = stamps; self.rot = rot; self.lead = lead; self.bursts = bursts
        self.p = Prog(); self.uid = 0
    def lab(self, t):
        self.uid += 1
        return f"{self.name}_{t}{self.uid}"
    def g_W(self, slot):
        gs = [mk(f"s_add_u32 m0, s38, {WS0 + slot*16384}")
              + mk(f"buffer_load_dwordx4 v{V_DW[0]}, {S_WQ}, s44 offen {self.wflags} lds")]
        gs[0].insert(1, mk("s_nop 0")[0])
        for k in range(1, 4):
            gs.append(mk(f"buffer_load_dwordx4 v{V_DW[k]}, {S_WQ}, s44 offen offset:{k*1024} {self.wflags} lds"))
        gs[-1] = gs[-1] + mk("s_add_u32 s44, s44, 0x40000\ns_and_b32 s44, s44, 0x3fffff")
        return gs
    def g_X(self, slot):
        gs = [mk(f"s_add_u32 m0, s45, {XS[slot]}\ns_nop 0\nbuffer_load_dwordx4 v{V_DX[0]}, {S_X}, s46 offen {self.wflags} lds")]
        for k in range(1, 4):
            gs.append(mk(f"buffer_load_dwordx4 v{V_DX[k]}, {S_X}, s46 offen offset:{k*1024} {self.wflags} lds"))
        l = self.lab("x5")
        gs.append(mk(f"s_cbranch_vccz {l}\ns_add_u32 m0, s45, {XS[slot] + 4096}\ns_nop 0\n"
                     f"buffer_load_dwordx4 v{V_DX[4]}, {S_X}, s46 offen {self.wflags} lds\n{l}:\n"
                     f"s_add_u32 s46, s46, 128\ns_and_b32 s46, s46, 1023"))
        return gs
    def g_KV(self, region, slot_expr, tile_expr):
        isK = region < 2
        srd = S_K if isK else S_V
        vo = V_DK if isK else V_DV
        return mk(f"s_add_u32 m0, {slot_expr[0]}, {slot_expr[1] + region*8192}\n"
                  f"s_add_u32 s37, {tile_expr[0]}, {tile_expr[1] + (region & 1)*131072}\n"
                  f"buffer_load_dwordx4 v{vo[0]}, {srd}, s37 offen {self.kvflags} lds\n"
                  f"buffer_load_dwordx4 v{vo[1]}, {srd}, s37 offen offset:1024 {self.kvflags} lds")
    def guard(self, group, cmp):
        l = self.lab("g")
        return mk(f"{cmp}\ns_cbranch_scc0 {l}") + group + mk(f"{l}:")
    def bundle_static(self, j, parts="KV"):
        gs = []
        slot = ((j + 4) % 5) * SLOT + (KM1 if j == -1 else 0)
        if "K" in parts and j + 1 <= 15:
            gs += [self.g_KV(r, ("s39", slot), ("s40", (j + 1) * 8192)) for r in (0, 1)]
        if "V" in parts and j >= 0:
            gs += [self.g_KV(r, ("s39", slot), ("s40", j * 8192)) for r in (2, 3)]
        return gs

    def stage_loads(self, jb):
        gs = []
        for r in range(4):
            isK = r < 2
            srd = S_K if isK else S_V
            vo = V_DK if isK else V_DV
            tile = jb + 1 if isK else jb
            q0 = STG[(jb - 1) * 8 + r * 2]; q1 = STG[(jb - 1) * 8 + r * 2 + 1]
            gs.append(mk(f"s_add_u32 s37, s40, {tile*8192 + (r & 1)*131072}\n"
                         f"buffer_load_dwordx4 {q0}, v{vo[0]}, {srd}, s37 offen {self.kvflags}"))
            gs.append(mk(f"buffer_load_dwordx4 {q1}, v{vo[1]}, {srd}, s37 offen offset:1024 {self.kvflags}"))
        return gs
    def stage_writes(self):
        gs = []
        for jb in (1, 2, 3):
            slot = (jb + 4) % 5
            for r in range(4):
                for ii in range(2):
                    off = slot * SLOT + r * 8192 + ii * 1024
                    base = 28 if off < 65536 else 29
                    gs.append(mk(f"ds_write_b128 v{base}, {STG[(jb-1)*8 + r*2 + ii]} offset:{off % 65536}")[0])
        return gs
    def gen(self):
        p = self.p; e = p.e; L = self.name; stamps = self.stamps; rot = self.rot; lead = self.lead
        e("s_cmp_ge_u32 s2, 256")
        e(f"s_cbranch_scc1 {L}_done")
        if "perm" in self.exp:
            e("s_and_b32 s3, s2, 7\ns_lshl_b32 s3, s3, 5\ns_lshr_b32 s2, s2, 3\ns_or_b32 s2, s2, s3")
        stamp(p, 0, stamps)
        e("s_load_dwordx8 s[36:43], s[0:1], 0")
        e("s_load_dwordx8 s[44:51], s[0:1], 40")
        e("s_load_dwordx2 s[54:55], s[0:1], 96")
        if self.fused:
            e("s_load_dwordx2 s[98:99], s[0:1], 32")
            e("s_load_dwordx2 s[100:101], s[0:1], 72")
            e("s_load_dwordx4 s[84:87], s[0:1], 80")
        if self.codewarm:
            e("s_getpc_b64 s[90:91]")
            e(f"{L}_pc:")
            e("s_lshr_b32 s92, s2, 3\ns_lshl_b32 s92, s92, 12")
            e("v_lshlrev_b32 v28, 4, v0\nv_add_u32 v28, s92, v28")
            e("v_and_b32 v28, 0x7fff, v28")
            e(f"v_min_u32 v28, {L}_done-{L}_pc-16, v28")
            e("global_load_dwordx4 v[252:255], v28, s[90:91]")
        e("v_lshrrev_b32 v27, 6, v0")
        e("v_and_b32 v0, 63, v0")
        e("v_readfirstlane_b32 s3, v27")
        e("s_and_b32 s52, s2, 7")
        e("s_lshr_b32 s27, s52, 2")
        if self.mapping == "M1":
            e("s_lshr_b32 s28, s2, 5")
            e("s_bfe_u32 s53, s2, 0x20003")
            e("s_and_b32 s52, s52, 3")
            if "swapoct" in self.exp:
                e("s_and_b32 s57, s52, 1\ns_lshl_b32 s57, s57, 1\ns_lshr_b32 s52, s52, 1\ns_or_b32 s52, s52, s57")
            e("s_lshl_b32 s29, s52, 3")
            e("s_lshl_b32 s56, s53, 1")
            e("s_add_u32 s29, s29, s56")
            e("s_mov_b32 s56, s28")
        elif self.mapping == "M4":
            e("s_lshr_b32 s56, s2, 3")
            e("s_and_b32 s53, s56, 7")
            e("s_lshr_b32 s56, s56, 3")
            e("s_and_b32 s57, s52, 1")
            e("s_lshl_b32 s28, s57, 2")
            e("s_add_u32 s28, s28, s56")
            e("s_bfe_u32 s57, s52, 0x10001")
            e("s_lshl_b32 s29, s57, 4")
            e("s_lshl_b32 s57, s53, 1")
            e("s_add_u32 s29, s29, s57")
        elif self.mapping == "M2":
            e("s_lshr_b32 s56, s2, 3")
            e("s_and_b32 s53, s56, 15")
            e("s_lshr_b32 s56, s56, 4")
            e("s_and_b32 s57, s52, 3")
            e("s_lshl_b32 s28, s57, 1")
            e("s_add_u32 s28, s28, s56")
            e("s_lshl_b32 s29, s53, 1")
        if rot == 8:
            e("s_lshl_b32 s26, s56, 1\ns_lshl_b32 s57, s53, 2\ns_add_u32 s26, s26, s57\ns_and_b32 s26, s26, 14")
        elif rot == 4:
            e("s_add_u32 s26, s56, s53\ns_and_b32 s26, s26, 3\ns_lshl_b32 s26, s26, 2")
        elif rot == 44:
            e("s_and_b32 s26, s56, 3\ns_lshl_b32 s26, s26, 2")
        elif rot == 45:
            e("s_and_b32 s26, s53, 3\ns_lshl_b32 s26, s26, 2")
        elif rot == 2:
            e("s_add_u32 s26, s56, s53\ns_and_b32 s26, s26, 1\ns_lshl_b32 s26, s26, 3")
        else:
            e("s_mov_b32 s26, 0")
        e("s_and_b32 s24, s3, 1")
        e("s_lshr_b32 s25, s3, 1")
        e("v_lshrrev_b32 v27, 5, v0")
        e("s_lshl_b32 s52, s3, 3")
        e("v_add_u32 v27, s52, v27")
        e("v_and_b32 v30, 31, v0")
        for k in range(4):
            e(f"v_add_u32 v28, {2*k}, v27")
            e("v_and_b32 v29, 3, v28")
            e("v_lshlrev_b32 v29, 2, v29")
            e("v_xor_b32 v29, v29, v30")
            e("v_lshlrev_b32 v29, 4, v29")
            e(f"v_lshl_add_u32 v{V_DW[k]}, v28, 13, v29")
            if k: e(f"v_subrev_u32 v{V_DW[k]}, {k*1024}, v{V_DW[k]}")
        e("s_mul_i32 s52, s3, 5\ns_cmp_eq_u32 s3, 3\ns_cselect_b32 s53, 1, 0\ns_sub_u32 s52, s52, s53")
        e("s_lshl_b32 s57, s52, 10")
        e("s_lshl_b32 s52, s52, 3")
        e("v_lshrrev_b32 v27, 3, v0")
        e("v_add_u32 v27, s52, v27")
        e("v_and_b32 v30, 7, v0")
        for k in range(5):
            e(f"v_add_u32 v28, {8*k}, v27")
            e("v_lshrrev_b32 v29, 1, v28")
            e("v_and_b32 v29, 7, v29")
            e("v_xor_b32 v29, v29, v30")
            e("v_lshlrev_b32 v29, 4, v29")
            e(f"v_lshl_add_u32 v{V_DX[k]}, v28, 10, v29")
            if 0 < k < 4: e(f"v_subrev_u32 v{V_DX[k]}, {k*1024}, v{V_DX[k]}")
        e("s_cmp_lt_u32 s3, 2")
        e("s_cselect_b64 vcc, -1, 0")
        e("s_waitcnt lgkmcnt(0)")
        e("s_cmp_eq_u32 s27, 0")
        e("s_cselect_b32 s4, s36, s44\ns_cselect_b32 s5, s37, s45")
        e("s_cselect_b32 s12, s38, s46\ns_cselect_b32 s13, s39, s47")
        e("s_cselect_b32 s16, s40, s48\ns_cselect_b32 s17, s41, s49")
        e("s_cselect_b32 s8, s42, s50\ns_cselect_b32 s9, s43, s51")
        if self.fused: e("s_cselect_b32 s98, s98, s100\ns_cselect_b32 s99, s99, s101")
        e("s_lshl_b32 s39, s3, 11\ns_lshl_b32 s40, s25, 12")
        e("s_mul_i32 s52, s28, 147456")
        e("s_add_u32 s4, s4, s52\ns_addc_u32 s5, s5, 0\ns_mov_b32 s6, 147456\ns_mov_b32 s7, 0x20000")
        e("s_lshl_b32 s52, s29, 8")
        e("s_add_u32 s8, s8, s52\ns_addc_u32 s9, s9, 0\ns_sub_u32 s10, 0x400000, s52\ns_mov_b32 s11, 0x20000")
        e("s_lshl_b32 s38, s3, 12")
        e("s_mov_b32 s45, s57")
        e("s_lshl_b32 s46, s26, 6")
        e("s_lshl_b32 s44, s26, 18")
        for g in self.g_X(0): p.extend(g)
        for g in self.g_W(0): p.extend(g)
        stamp(p, 1, stamps)
        e("s_lshl_b32 s52, s28, 5\ns_add_u32 s52, s52, s29")
        e("s_lshr_b32 s53, s52, 15\ns_lshl_b32 s52, s52, 17")
        e("s_add_u32 s12, s12, s52\ns_addc_u32 s13, s13, s53\ns_mov_b32 s14, 262144\ns_mov_b32 s15, 0x20000")
        e("s_add_u32 s16, s16, s52\ns_addc_u32 s17, s17, s53\ns_mov_b32 s18, 262144\ns_mov_b32 s19, 0x20000")
        e("s_lshl_b32 s52, s27, 3\ns_add_u32 s52, s52, s28\ns_mul_i32 s52, s52, 1179648")
        e("s_add_u32 s20, s54, s52\ns_addc_u32 s21, s55, 0\ns_mov_b32 s22, 1179648\ns_mov_b32 s23, 0x20000")
        e("v_lshrrev_b32 v27, 4, v0")
        e("s_lshl_b32 s52, s24, 3")
        e("v_add_u32 v27, s52, v27")
        e("v_and_b32 v30, 15, v0")
        for ii in range(2):
            e(f"v_add_u32 v29, {4*ii}, v27")
            e(f"v_xor_b32 v31, v29, v30")
            e(f"v_lshlrev_b32 v31, 4, v31")
            e(f"v_lshl_add_u32 v{V_DK[ii]}, v27, 8, v31")
            e(f"v_and_b32 v29, 7, v29")
            e(f"v_lshlrev_b32 v29, 1, v29")
            e(f"v_xor_b32 v31, v29, v30")
            e(f"v_lshlrev_b32 v31, 4, v31")
            e(f"v_lshl_add_u32 v{V_DV[ii]}, v27, 8, v31")
        e("v_and_b32 v27, 15, v0")
        e("v_lshrrev_b32 v28, 4, v0")
        e("v_lshrrev_b32 v29, 1, v27")
        e("v_xor_b32 v29, v29, v28")
        e("s_lshl_b32 s52, s24, 13")
        e("v_lshlrev_b32 v30, 7, v27")
        e("v_add_u32 v30, s52, v30")
        for sp in range(2):
            e(f"v_xor_b32 v31, {4*sp}, v29")
            e(f"v_lshl_add_u32 v{V_XA[sp]}, v31, 4, v30")
        e("s_sub_u32 s52, 16384, s52")
        for sp in range(2):
            e(f"v_add_u32 v{V_XT[sp]}, s52, v{V_XA[sp]}")
        e("v_bfe_u32 v29, v0, 2, 2")
        e("v_lshl_add_u32 v30, v28, 3, v29")
        e("v_lshlrev_b32 v30, 9, v30")
        e(f"v_add_u32 v30, {WS0}, v30")
        e("v_lshlrev_b32 v29, 2, v29")
        e("v_and_b32 v31, 3, v0")
        e("v_xor_b32 v29, v29, v31")
        e("s_lshl_b32 s52, s25, 4\ns_lshl_b32 s53, s24, 3\ns_or_b32 s52, s52, s53")
        e("v_xor_b32 v29, s52, v29")
        for u in range(4):
            e(f"v_xor_b32 v31, {4*u}, v29")
            e(f"v_lshl_add_u32 v{V_WA[u]}, v31, 4, v30")
        e("v_xor_b32 v29, v27, v28")
        e("s_lshl_b32 s53, s24, 3")
        e("v_xor_b32 v29, s53, v29")
        e("s_lshl_b32 s52, s25, 13")
        e(f"s_add_u32 s52, s52, {3*SLOT}")
        e("v_lshlrev_b32 v30, 8, v27")
        e("v_add_u32 v30, s52, v30")
        for u in range(4):
            e(f"v_xor_b32 v31, {4*u}, v29")
            e(f"v_lshl_add_u32 v{V_KA[u]}, v31, 4, v30")
        e("v_bfe_u32 v29, v0, 2, 2")
        e("v_lshl_add_u32 v29, v28, 2, v29")
        e("v_lshlrev_b32 v30, 8, v29")
        e("v_and_b32 v31, 1, v0")
        e("v_lshl_add_u32 v30, v31, 3, v30")
        e("s_lshl_b32 s52, s25, 13")
        e(f"s_add_u32 s52, s52, {3*SLOT + 16384}")
        e("v_add_u32 v30, s52, v30")
        e("v_and_b32 v29, 7, v29")
        e("v_lshlrev_b32 v29, 1, v29")
        e("v_bfe_u32 v31, v0, 1, 1")
        e("v_xor_b32 v29, v29, v31")
        e("s_lshl_b32 s53, s24, 3")
        e("v_xor_b32 v29, s53, v29")
        for T in range(8):
            e(f"v_xor_b32 v31, {2*T}, v29")
            e(f"v_lshl_add_u32 v{V_VA[T]}, v31, 4, v30")
        for r in range(V_O, V_O + 144):
            e(f"v_mov_b32 v{r}, 0")
        for g in self.g_W(1): p.extend(g)

        def rdQ(buf, ks):
            q = []
            wo = (ks % 4) * 16384
            xo = XS[(ks // 2) % 2]
            sp = ks & 1
            for T in range(8):
                u = T >> 1
                q.append(f"ds_read_b64_tr_b16 {aq(FA(buf,T),2)}, v{V_WA[u]} offset:{wo + 8*(T&1)}")
                q.append(f"ds_read_b64_tr_b16 {aq(FA(buf,T)+2,2)}, v{V_WA[u]} offset:{wo + 8*(T&1)+2048}")
            for qt in range(4):
                q.append(f"ds_read_b128 {aq(FB(buf,qt))}, v{V_XA[sp]} offset:{xo + qt*2048}")
            q.append(f"ds_read_b128 {aq(FB(buf,4))}, v{V_XT[sp]} offset:{xo}")
            return mk("\n".join(q))
        def mmQ(buf):
            q = []
            for T in range(8):
                for qt in range(4):
                    q.append(f"v_mfma_f32_16x16x32_bf16 {vq(O_(T,qt))}, {aq(FA(buf,T))}, {aq(FB(buf,qt))}, {vq(O_(T,qt))}")
                if T < 4:
                    q.append(f"v_mfma_f32_16x16x32_bf16 {vq(V_OT+T*4)}, {aq(FA(buf,T))}, {aq(FB(buf,4))}, {vq(V_OT+T*4)}")
            return mk("\n".join(q))
        X = self.exp
        def qbody(s_, wait, dmas):
            if "trQ" in X: e("s_memtime s[92:93]")
            if wait is not None: e(f"s_waitcnt vmcnt({wait}) lgkmcnt(0)")
            else: e("s_waitcnt lgkmcnt(0)")
            if "trQ" in X:
                e("s_memtime s[94:95]")
            e("s_barrier")
            if "trQ" in X:
                e("s_waitcnt lgkmcnt(0)")
                e("s_mov_b32 m0, s96\ns_nop 3\nv_writelane_b32 v17, s92, m0\ns_add_u32 m0, s96, 1\ns_nop 3\nv_writelane_b32 v17, s94, m0\ns_add_u32 s96, s96, 2")
            rd = rdQ((s_ + 1) & 1, (s_ + 1) % 4 + (4 if (s_ + 1) % 4 < 0 else 0)) if (s_ < 15 and "noread" not in X) else []
            if "nodma" in X: dmas = []
            fill = merge_fills(rd, dmas)
            p.extend(interleave(mmQ(s_ & 1) if "nomfma" not in X else mk("s_nop 0"), fill, 0, 27))
        e("s_waitcnt vmcnt(4)")
        e("s_barrier")
        p.extend(rdQ(0, 0))
        for g in self.g_X(1) + self.g_W(2) + self.g_W(3): p.extend(g)
        stamp(p, 2, stamps)
        e("s_mov_b32 s30, 0")
        if "trQ" in X: e("s_mov_b32 s96, 0\nv_mov_b32 v17, 0")
        if "shq" in self.exp: e("s_nop 0")
        if "alq" in self.exp: e(".p2align 6")
        e(f"{L}_qloop:")
        if not self.regpf:
            waits = [12, 4, 12, 4]
            for k in range(4):
                d = self.g_W(k)
                if k & 1: d = d + self.g_X(((k - 1) // 2) % 2)
                qbody(k, waits[k] if "nodma" not in X else None, d)
        else:
            l24 = self.lab("q24"); ld = self.lab("qd")
            e(f"s_cmp_eq_u32 s30, 0\ns_cbranch_scc0 {l24}\ns_waitcnt vmcnt(12)\ns_branch {ld}\n{l24}:\ns_waitcnt vmcnt(24)\n{ld}:")
            qbody(0, None, self.g_W(0))
            lv = [self.lab("qv") for _ in range(3)]; lj = self.lab("qj")
            e(f"s_cmp_eq_u32 s30, 1\ns_cbranch_scc1 {lv[1]}\ns_cmp_eq_u32 s30, 2\ns_cbranch_scc1 {lv[2]}")
            for it in range(3):
                e(f"{lv[it]}:")
                qbody(1, 4, self.g_W(1) + self.g_X(0) + self.stage_loads(it + 1))
                if it < 2: e(f"s_branch {lj}")
            e(f"{lj}:")
            qbody(2, 20, self.g_W(2))
            qbody(3, 12, self.g_W(3) + self.g_X(1))
        e("s_add_u32 s30, s30, 1")
        e("s_cmp_lt_u32 s30, 3")
        e(f"s_cbranch_scc1 {L}_qloop")
        if not self.regpf:
            qbody(12, 16, self.bundle_static(-1))
            qbody(13, 4, self.bundle_static(0))
            qbody(14, 16, self.pretouch() if (self.fused and self.touch) else [])
            qbody(15, None, self.bundle_static(1))
        else:
            qbody(12, 24, self.bundle_static(-1))
            qbody(13, 4, self.bundle_static(0))
            qbody(14, 16, self.pretouch() if (self.fused and self.touch) else [])
            e("v_lshlrev_b32 v28, 4, v0\nv_add_u32 v28, s39, v28\nv_add_u32 v29, 0x10000, v28")
            qbody(15, None, self.stage_writes())
        e("s_waitcnt lgkmcnt(0)")
        stamp(p, 3, stamps)

        def rdK(buf, extra=0):
            return mk("\n".join(f"ds_read_b128 {aq(K_(buf,kt,u))}, v{V_KA[u]} offset:{kt*4096 + extra}" for kt in range(2) for u in range(4)))
        def read_k0():
            l1 = self.lab("k0p"); l2 = self.lab("k0d")
            e("s_cmp_eq_u32 s24, 0")
            e(f"s_cbranch_scc0 {l1}")
            p.extend(rdK(0, KM1))
            e(f"s_branch {l2}")
            e(f"{l1}:")
            p.extend(rdK(1, KM1))
            e(f"{l2}:")
        self.read_k0 = read_k0
        e(f"s_mov_b32 s48, {fbits(CSCALE):#x}\ns_mov_b32 s49, {fbits(CSCALE):#x}")
        T0 = 176
        k = 0
        for qt in (4, 0, 1, 2, 3):
            for u in range(4 if qt < 4 else 2):
                t = T0 + (k % 4) * 4; k += 1
                for h in range(2):
                    src = O_(2*u+h, qt) if qt < 4 else V_OT + (2*u+h)*4
                    e(f"v_pk_mul_f32 {vq(src,2)}, {vq(src,2)}, s[48:49]")
                    e(f"v_pk_mul_f32 {vq(src+2,2)}, {vq(src+2,2)}, s[48:49]")
                    e(f"v_cvt_pk_bf16_f32 v{t+2*h}, v{src}, v{src+1}")
                    e(f"v_cvt_pk_bf16_f32 v{t+2*h+1}, v{src+2}, v{src+3}")
                for r in range(4): e(f"v_accvgpr_write_b32 a{Q_(qt,u)+r}, v{t+r}")
                if qt == 4:
                    if u == 0:
                        e(f"s_add_u32 s52, s39, {QX}")
                        e(f"v_lshlrev_b32 v27, 4, v0")
                        e(f"v_add_u32 v27, s52, v27")
                    e(f"ds_write_b128 v27, {vq(t)} offset:{u*1024}")
            if qt == 4 and self.early4:
                e("s_waitcnt vmcnt(8) lgkmcnt(0)")
                e("s_barrier")
                e("v_xor_b32 v27, 0x800, v27")
                e(f"ds_read_b128 {aq(Q_(4,2))}, v27")
                e(f"ds_read_b128 {aq(Q_(4,3))}, v27 offset:1024")
                read_k0()
                e("s_waitcnt lgkmcnt(0)")
                e("s_barrier")
                for g in self.bundle_static(4): p.extend(g)
            if lead >= 3 and qt == 1 and not self.regpf:
                for g in self.bundle_static(2): p.extend(g)
            if lead >= 4 and qt == 3 and not self.regpf:
                for g in self.bundle_static(3): p.extend(g)
        if not self.early4:
            e("s_waitcnt lgkmcnt(0)")
            e("s_barrier")
            e("v_xor_b32 v27, 0x800, v27")
            e(f"ds_read_b128 {aq(Q_(4,2))}, v27")
            e(f"ds_read_b128 {aq(Q_(4,3))}, v27 offset:1024")
        for r in range(20): e(f"v_mov_b32 v{V_NM+r}, 0")
        if self.fused: self.fused_setup()
        e("s_mov_b32 s51, 0")
        e(f"{L}_attn:")
        for r in range(4): e(f"v_mov_b32 v{V_ONES+r}, 0x3f803f80")
        for r in range(V_O, V_O + 160): e(f"v_mov_b32 v{r}, 0")
        for r in range(20): e(f"v_mov_b32 v{V_P+r}, 0")
        for r in range(20): e(f"v_accvgpr_write_b32 a{A_L+r}, 0")
        if self.trim:
            lz = self.lab("vz"); lzd = self.lab("vzd")
            e(f"s_cmp_eq_u32 s24, 0\ns_cbranch_scc0 {lz}")
            for r in range(32): e(f"v_accvgpr_write_b32 a{A_V+32+r}, 0")
            e(f"s_branch {lzd}\n{lz}:")
            for r in range(32): e(f"v_accvgpr_write_b32 a{A_V+r}, 0")
            e(f"{lzd}:")
            for r in range(8): e(f"v_mov_b32 v{V_S+8+r}, 0xff800000")
        else:
            for r in range(64): e(f"v_accvgpr_write_b32 a{A_V+r}, 0")
            for r in range(24): e(f"v_mov_b32 v{V_S+r}, 0xff800000")
        stamp(p, 4, stamps)

        def rdV(buf):
            q = []
            for T in range(8):
                q.append(f"ds_read_b64_tr_b16 {aq(Vf(buf,T),2)}, v{V_VA[T]}")
                q.append(f"ds_read_b64_tr_b16 {aq(Vf(buf,T)+2,2)}, v{V_VA[T]} offset:4096")
            return mk("\n".join(q))
        if not self.early4:
            e(f"s_waitcnt vmcnt({8 if self.regpf else 8*lead}) lgkmcnt(0)")
            e("s_barrier")
            read_k0()
        e("s_mov_b32 s30, 0")
        if "trA" in self.exp: e("s_mov_b32 s96, 0")
        e("s_mov_b32 s35, 3")
        if self.fused: e("s_lshl_b32 s41, s26, 16\ns_lshl_b32 s42, s3, 12")
        if self.regpf:
            issue = []; nb = 5 if self.early4 else 4
            for j in range(16):
                if j in self.skips or nb > 15 or (self.early4 and j == 0): continue
                issue.append((j, nb)); nb += 1
            assert nb == 16, issue
            self.issue = issue
            mV = sum(1 << j for j, n in issue); mK = sum(1 << j for j, n in issue if n < 15)
            e(f"s_mov_b32 s43, {mV}\ns_mov_b32 s44, {mK}")
        nb0 = lead + (1 if self.early4 else 0)
        e(f"s_add_u32 s31, s39, {((nb0+4)%5)*SLOT}")
        e(f"s_add_u32 s32, s40, {(nb0+1)*8192}")
        e(f"s_add_u32 s33, s40, {nb0*8192}")
        e("s_cmp_eq_u32 s24, 0")
        e(f"s_cbranch_scc0 {L}_bodyB")

        def ladder(vals, tag):
            runs = []
            for j, v in enumerate(vals):
                if runs and runs[-1][2] == v: runs[-1][1] = j
                else: runs.append([j, j, v])
            done = self.lab(tag + "d")
            if len(runs) == 1:
                e(f"s_waitcnt vmcnt({vals[0]})"); return
            big = max(runs, key=lambda r: r[1] - r[0])
            labs = []
            lb = self.lab(tag)
            if big[0] == 0: e(f"s_cmp_le_u32 s30, {big[1]}\ns_cbranch_scc1 {lb}")
            else: e(f"s_sub_u32 s48, s30, {big[0]}\ns_cmp_le_u32 s48, {big[1]-big[0]}\ns_cbranch_scc1 {lb}")
            labs.append((lb, big[2]))
            rest = [r for r in runs if r is not big]
            for r in rest[:-1]:
                l = self.lab(tag); labs.append((l, r[2]))
                e(f"s_cmp_le_u32 s30, {r[1]}\ns_cbranch_scc1 {l}")
            e(f"s_waitcnt vmcnt({rest[-1][2]})")
            e(f"s_branch {done}")
            for k, (l, n) in enumerate(labs):
                e(f"{l}:\ns_waitcnt vmcnt({n})")
                if k + 1 < len(labs): e(f"s_branch {done}")
            e(f"{done}:")
        def nwait(j):
            if self.regpf:
                if j in (1, 2, 3): return 48
                if j == 0: return 8 if self.early4 else 0
                n = 0
                for (jj, nb) in self.issue:
                    if jj < j and nb > j: n += (4 if nb == 15 else 8)
                if self.fused and j == 15: n += 8
                if self.fused and self.ownfirst and "nowarm" not in self.exp and j in (14, 15): n += 6
                return n
            if self.fused and j == 15: return 8
            return sum((4 if i == 15 else 8) for i in range(j + 1, min(j + lead - 1, 15) + 1))
        def top(tag):
            vals = [nwait(j) for j in range(16)]
            if "trA" in self.exp: e("s_memtime s[92:93]")
            ladder(vals, tag)
            e("s_waitcnt lgkmcnt(0)")
            if "trA" in self.exp: e("s_memtime s[94:95]")
            e("s_barrier")
            if "trA" in self.exp:
                e("s_waitcnt lgkmcnt(0)")
                e("s_mov_b32 m0, s96\ns_nop 3\nv_writelane_b32 v18, s92, m0\ns_add_u32 m0, s96, 1\ns_nop 3\nv_writelane_b32 v18, s94, m0\ns_add_u32 s96, s96, 2")
        def dma_groups():
            limV = 16 - lead
            limK = 15 - lead
            cV = "s_bitcmp1_b32 s43, s30" if self.regpf else f"s_cmp_lt_u32 s30, {limV}"
            cK = "s_bitcmp1_b32 s44, s30" if self.regpf else f"s_cmp_lt_u32 s30, {limK}"
            post = mk(f"s_add_u32 s32, s32, 8192\ns_add_u32 s33, s33, 8192\ns_add_u32 s31, s31, 32768\n"
                      f"s_add_u32 s48, s39, {5*SLOT}\ns_cmp_ge_u32 s31, s48\ns_cselect_b32 s48, {5*SLOT}, 0\ns_sub_u32 s31, s31, s48")
            def thr():
                if self.throttle is None: return []
                par, n = self.throttle
                l = self.lab("th")
                return mk(f"s_cmp_eq_u32 s100, {par}\ns_cbranch_scc0 {l}\ns_waitcnt vmcnt({n})\n{l}:")
            gs = [self.guard(thr() + self.g_KV(r, ("s31", 0), ("s32", 0)), cK) for r in (0, 1)]
            gs += [self.guard(thr() + self.g_KV(2, ("s31", 0), ("s33", 0)), cV), self.guard(thr() + self.g_KV(3, ("s31", 0), ("s33", 0)) + post, cV)]
            return gs
        def adv_read():
            q = ["s_add_u32 s35, s35, 1", "s_cmp_eq_u32 s35, 5", f"s_mov_b32 s34, {SLOT}", f"s_cmov_b32 s34, {-4*SLOT}", "s_cselect_b32 s35, 0, s35"]
            g = [mk("\n".join(q))]
            for r in V_KA + V_VA:
                g.append(mk(f"v_add_u32 v{r}, s34, v{r}")[0])
            return g
        def QK(ebuf, qt, sb):
            q = []
            for u in range(4):
                for kt in range(2):
                    c = vq(NM_(qt)) if u == 0 else vq(S_(sb, kt))
                    q.append(f"v_mfma_f32_16x16x32_bf16 {vq(S_(sb,kt))}, {aq(K_(ebuf,kt,u))}, {aq(Q_(qt,u))}, {c}")
            return mk("\n".join(q))
        def SM(qt, sb):
            q = []
            for kt in range(2):
                b = S_(sb, kt)
                for r in range(4): q.append(f"v_exp_f32 v{b+r}, v{b+r}")
            for kt in range(2):
                b = S_(sb, kt)
                q.append(f"v_cvt_pk_bf16_f32 v{P_(qt)+2*kt}, v{b}, v{b+1}")
                q.append(f"v_cvt_pk_bf16_f32 v{P_(qt)+2*kt+1}, v{b+2}, v{b+3}")
            return mk("\n".join(q))
        def PV(vbuf, qt):
            q = []
            for T in range(8):
                q.append(f"v_mfma_f32_16x16x32_bf16 {vq(O_(T,qt))}, {aq(Vf(vbuf,T))}, {vq(P_(qt))}, {vq(O_(T,qt))}")
            q.append(f"v_mfma_f32_16x16x32_bf16 {aq(L_(qt))}, {vq(V_ONES)}, {vq(P_(qt))}, {aq(L_(qt))}")
            return mk("\n".join(q))
        def body(typ, do_qk=True):
            ebuf = 0 if typ == "A" else 1
            if typ == "A":
                qk = [0, 1, 2, 3, 4]; sb = [0, 1, 2, 0, 1]; pv = [0, 1, 2, 3]; carried = None
            else:
                qk = [0, 1, 2, 3]; sb = [2, 0, 1, 2]; pv = [0, 1, 2, 3, 4]; carried = (4, 1)
            reads = (rdK(ebuf ^ 1) + rdV(ebuf)) if do_qk else []
            dmas = dma_groups() if do_qk else []
            if self.fused:
                if do_qk:
                    pre = []
                    for c in range(2):
                        pre += mk(f"s_add_u32 m0, s42, {c*16384}\ns_add_u32 s36, s41, {c*65536}\n"
                                  f"buffer_load_dwordx4 v{V_DO[0]}, {S_WQ}, s36 offen {self.woflags} lds")
                        for k in range(1, 4):
                            pre += mk(f"buffer_load_dwordx4 v{V_DO[k]}, {S_WQ}, s36 offen offset:{1024*k} {self.woflags} lds")
                    pre += mk("s_add_u32 s41, s41, 131072\ns_add_u32 s42, s42, 32768")
                    grp = self.guard(pre, "s_cmp_ge_u32 s30, 14")
                    if self.ownfirst and "nowarm" not in self.exp:
                        wm = mk("s_add_u32 s36, s26, 4\ns_add_u32 s36, s36, s28\ns_and_b32 s36, s36, 15\ns_lshl_b32 s36, s36, 16")
                        for k in range(4):
                            wm += mk(f"buffer_load_dwordx4 a[{228+4*k}:{231+4*k}], v{V_DO[k]}, {S_WQ}, s36 offen offset:{1024*k} {self.woflags}")
                        wm += mk("s_lshr_b32 s36, s28, 1\ns_add_u32 s36, s36, s26\ns_add_u32 s36, s36, 12\ns_and_b32 s36, s36, 15\ns_lshl_b32 s36, s36, 16\n"
                                 "s_and_b32 s37, s28, 1\ns_lshl_b32 s37, s37, 13\ns_add_u32 s36, s36, s37")
                        for k in range(2):
                            wm += mk(f"buffer_load_dwordx4 a[{244+4*k}:{247+4*k}], v{V_DO[k]}, {S_WQ}, s36 offen offset:{1024*k} {self.woflags}")
                        grp = self.guard(wm, "s_cmp_eq_u32 s30, 13") + grp
                    if "nopre" not in self.exp: dmas = dmas + [grp]
            nslots = 5
            per = (len(reads) + nslots - 1) // nslots
            for k in range(nslots):
                main = []
                if do_qk and k < len(qk): main += QK(ebuf, qk[k], sb[k])
                if k < len(pv): main += PV(ebuf ^ 1, pv[k])
                fill = []
                if k == 0:
                    if carried: fill += SM(*carried)
                    if do_qk: fill = adv_read() + fill
                elif do_qk:
                    fill += SM(qk[k-1], sb[k-1])
                rd = reads[k*per:(k+1)*per]
                dm = [dmas[k]] if k < len(dmas) else []
                if k == 0:
                    fill = dm + fill + rd
                else:
                    fill = merge_fills(fill, rd, dm)
                p.extend(interleave(main, fill) if main else _flat(fill))
        from asmlib import _flat
        if "sha" in self.exp: e("s_nop 0\ns_nop 0\ns_nop 0") if False else None
        e(f"{L}_bodyA:")
        top("A"); body("A")
        e("s_add_u32 s30, s30, 1\ns_cmp_eq_u32 s30, 16")
        e(f"s_cbranch_scc1 {L}_endB")
        e(f"{L}_bodyB:")
        top("B"); body("B")
        e("s_add_u32 s30, s30, 1\ns_cmp_eq_u32 s30, 16")
        e(f"s_cbranch_scc0 {L}_bodyA")
        e("s_waitcnt lgkmcnt(0)")
        if self.ldsown: e("s_barrier")
        body("A", do_qk=False)
        e(f"s_branch {L}_epi")
        e(f"{L}_endB:")
        e("s_waitcnt lgkmcnt(0)")
        if self.ldsown: e("s_barrier")
        body("B", do_qk=False)
        e(f"{L}_epi:")
        stamp(p, 5, stamps)

        MA = 139264 if self.ldsown else 65536
        e(f"s_mul_i32 s52, s3, 5120\ns_add_u32 s52, s52, {MA}")
        e("v_lshlrev_b32 v17, 4, v0")
        e("v_add_u32 v27, s52, v17")
        for i in range(4):
            e(f"ds_write_b128 v27, {vq(O_(4+i,4))} offset:{i*1024}")
        e(f"ds_write_b128 v27, {aq(L_(4))} offset:4096")
        if self.fused: self.fused_early()
        for qt in range(5):
            e(f"v_accvgpr_read_b32 v{V_S+qt}, a{L_(qt)}")
        e(f"s_mov_b32 s52, {fbits(L_LO):#x}\ns_mov_b32 s53, {fbits(L_HI):#x}")
        self.store_O_setup()
        e("s_mov_b64 s[56:57], exec")
        for qt in range(4):
            e(f"v_cmp_le_f32 vcc, s52, v{V_S+qt}")
            e(f"v_cmp_ge_f32 s[58:59], s53, v{V_S+qt}")
            e(f"v_rcp_f32 v{V_S+qt}, v{V_S+qt}")
            e("s_and_b64 s[56:57], s[56:57], vcc")
            e("s_and_b64 s[56:57], s[56:57], s[58:59]")
        if "epi" in self.exp: stamp(p, 11, stamps)
        for qt in range(4): self.store_O_tile(qt)
        e("s_waitcnt lgkmcnt(0)")
        e("s_barrier")
        e(f"s_xor_b32 s48, s3, 1\ns_mul_i32 s48, s48, 5120\ns_add_u32 s48, s48, {MA}")
        e("v_add_u32 v27, s48, v17")
        for i in range(4):
            e(f"ds_read_b128 {vq(V_P+i*4)}, v27 offset:{i*1024}")
        e(f"ds_read_b128 {vq(V_S+12)}, v27 offset:4096")
        for i in range(4):
            for r in range(4):
                e(f"v_add_f32 v{O_(i,4)+r}, v{O_(i,4)+r}, v{V_P+i*4+r}")
        e(f"v_add_f32 v{V_S+4}, v{V_S+4}, v{V_S+12}")
        e(f"v_cmp_le_f32 vcc, s52, v{V_S+4}")
        e(f"v_cmp_ge_f32 s[58:59], s53, v{V_S+4}")
        e(f"v_rcp_f32 v{V_S+4}, v{V_S+4}")
        e("s_and_b64 s[56:57], s[56:57], vcc")
        e("s_and_b64 s[56:57], s[56:57], s[58:59]")
        e("s_cmp_eq_u64 s[56:57], exec")
        e("s_cselect_b32 s48, 0, 1")
        e("v_mov_b32 v27, s48")
        e(f"s_lshl_b32 s48, s3, 2\ns_add_u32 s48, s48, {MA + 20480}")
        e("v_mov_b32 v28, s48")
        e("ds_write_b32 v28, v27")
        self.store_O_tile(4)
        if "epi" in self.exp: stamp(p, 12, stamps)
        e("s_waitcnt vmcnt(0) lgkmcnt(0)")
        if "epi" in self.exp: stamp(p, 13, stamps)
        e("s_barrier")
        e(f"v_mov_b32 v28, {MA + 20480}")
        e(f"ds_read_b128 {vq(V_S+12)}, v28")
        e(f"v_or_b32 v27, v{V_S+12}, v{V_S+13}")
        e(f"v_or_b32 v28, v{V_S+14}, v{V_S+15}")
        e("v_or_b32 v27, v27, v28")
        e("v_readfirstlane_b32 s48, v27")
        e("s_cmp_eq_u32 s51, 0")
        e("s_cselect_b32 s48, s48, 0")
        e("s_cmp_eq_u32 s48, 0")
        e(f"s_cbranch_scc0 {L}_fallback")
        if self.fused:
            self.fused_tail()
        else:
            stamp(p, 6, stamps)
            stamp_flush(p, 7, stamps and f"{L}_stf", "s[54:55]")
        if "trQ" in self.exp or "trA" in self.exp:
            tv = 18 if "trA" in self.exp else 17
            l = self.lab("tr")
            e(f"s_cmp_eq_u32 s3, 0\ns_cbranch_scc0 {l}")
            e(f"s_lshl_b32 s58, s2, 8\ns_add_u32 s58, s58, {65*1024*1024}")
            e("v_lshlrev_b32 v251, 2, v0\nv_add_u32 v251, s58, v251")
            e(f"global_store_dword v251, v{tv}, s[54:55]\ns_waitcnt vmcnt(0)")
            e(f"{l}:")
        e(f"s_branch {L}_done")

        e(f"{L}_fallback:")
        e("s_mov_b32 s51, 1")
        e("s_waitcnt vmcnt(0)")
        e("s_barrier")
        e(f"s_mul_i32 s48, s35, {SLOT}")
        for r in V_KA + V_VA:
            e(f"v_subrev_u32 v{r}, s48, v{r}")
        for qt in range(5):
            e(f"v_mov_b32 v{V_P+qt}, 0xff800000")
        e("s_mov_b32 s30, 0")
        e("s_mov_b32 s32, s40")
        e(f"{L}_mx:")
        for r in (0, 1): p.extend(self.g_KV(r, ("s39", 0), ("s32", 0)))
        e("s_waitcnt vmcnt(0)\ns_barrier")
        p.extend(rdK(0))
        for qt in range(5):
            for u in range(4):
                for kt in range(2):
                    c = "0" if u == 0 else vq(S_(0, kt))
                    e(f"v_mfma_f32_16x16x32_bf16 {vq(S_(0,kt))}, {aq(K_(0,kt,u))}, {aq(Q_(qt,u))}, {c}")
            for r in range(0, 8, 2):
                e(f"v_max3_f32 v{V_P+qt}, v{V_S+r}, v{V_S+r+1}, v{V_P+qt}")
        e("s_waitcnt lgkmcnt(0)\ns_barrier")
        e("s_add_u32 s32, s32, 8192\ns_add_u32 s30, s30, 1\ns_cmp_lt_u32 s30, 16")
        e(f"s_cbranch_scc1 {L}_mx")
        e("v_xor_b32 v27, 16, v0\nv_lshlrev_b32 v27, 2, v27")
        e("v_xor_b32 v28, 32, v0\nv_lshlrev_b32 v28, 2, v28")
        for qt in range(5):
            e(f"ds_bpermute_b32 v{V_S}, v27, v{V_P+qt}")
            e(f"v_max_f32 v{V_P+qt}, v{V_P+qt}, v{V_S}")
            e(f"ds_bpermute_b32 v{V_S}, v28, v{V_P+qt}")
            e(f"v_max_f32 v{V_P+qt}, v{V_P+qt}, v{V_S}")
            for r in range(4):
                e(f"v_sub_f32 v{NM_(qt)+r}, 0, v{V_P+qt}")
        for r in V_KA + V_VA:
            e(f"v_add_u32 v{r}, {3*SLOT}, v{r}")
        for j in range(-1, lead):
            for g in self.bundle_static(j): p.extend(g)
        e("s_waitcnt vmcnt(0)")
        if self.early4:
            e("s_barrier")
            self.read_k0()
            e("s_waitcnt lgkmcnt(0)")
            e("s_barrier")
            for g in self.bundle_static(4): p.extend(g)
        e(f"s_branch {L}_attn")
        e(f"{L}_done:")
        e("s_endpgm")
        return p

    def g_Wo(self, slot, kimm):
        gs = [mk(f"s_add_u32 m0, s38, {slot*16384}\ns_add_u32 s36, s41, {kimm*65536}\n"
                 f"buffer_load_dwordx4 v{V_DO[0]}, {S_WQ}, s36 offen {self.woflags} lds")]
        for k in range(1, 4):
            gs.append(mk(f"buffer_load_dwordx4 v{V_DO[k]}, {S_WQ}, s36 offen offset:{1024*k} {self.woflags} lds"))
        return gs
    def pretouch(self):
        q = []
        q.append("s_lshl_b32 s52, s27, 3\ns_add_u32 s52, s52, s28\ns_mul_i32 s53, s52, 1179648")
        q.append("s_bfe_u32 s48, s2, 0x20003\ns_lshl_b32 s52, s52, 2\ns_add_u32 s52, s52, s48\ns_mul_i32 s52, s52, 294912")
        q.append(f"s_add_u32 s52, s52, {PART0}")
        q.append("v_mov_b32 v209, s53")
        q.append("s_add_u32 s53, s53, 0x100000\nv_writelane_b32 v209, s53, 1")
        q.append(f"s_mov_b32 s53, {FLAG1}\nv_writelane_b32 v209, s53, 2")
        q.append("v_writelane_b32 v209, s52, 3\ns_add_u32 s52, s52, 0x47ffc\nv_writelane_b32 v209, s52, 4")
        q.append("global_load_dword v210, v209, s[54:55]")
        q.append("s_mul_i32 s52, s28, 294912\nv_mov_b32 v209, s52\ns_add_u32 s52, s52, 0x47ffc\nv_writelane_b32 v209, s52, 1")
        q.append("global_load_dword v211, v209, s[84:85]")
        q.append("s_and_b32 s52, s2, 3\ns_lshl_b32 s52, s52, 20\nv_mov_b32 v209, s52\ns_add_u32 s52, s52, 0xffffc\nv_writelane_b32 v209, s52, 1")
        q.append("global_load_dword v199, v209, s[98:99]")
        l = self.lab("pt")
        return [mk(f"s_cmp_eq_u32 s3, 3\ns_cbranch_scc0 {l}") + mk("\n".join(q)) + mk(f"{l}:")]
    def fused_setup(self):
        e = self.p.e
        e("s_and_b32 s46, s2, 3\ns_bfe_u32 s47, s2, 0x20003")
        if self.ownfirst: e("s_lshl_b32 s26, s47, 2")
        if self.throttle is not None:
            e("s_getreg_b32 s100, hwreg(HW_REG_XCC_ID)\ns_and_b32 s100, s100, 1")
        e("s_lshl_b32 s52, s46, 20\ns_lshl_b32 s53, s47, 8\ns_add_u32 s52, s52, s53")
        e("s_add_u32 s8, s98, s52\ns_addc_u32 s9, s99, 0\ns_sub_u32 s10, 0x400000, s52\ns_mov_b32 s11, 0x20000")
        if self.wonat:
            e("v_and_b32 v29, 15, v0")
            for k in range(2):
                e(f"v_lshrrev_b32 v27, 4, v0\nv_add_u32 v27, {4*k}, v27")
                e("v_lshlrev_b32 v28, 1, v27\nv_xor_b32 v28, v28, v29\nv_lshlrev_b32 v28, 4, v28")
                e("s_lshl_b32 s52, s3, 4\nv_add_u32 v27, s52, v27")
                e(f"v_lshl_add_u32 v{V_DO[k]}, v27, 10, v28")
                if k: e(f"v_subrev_u32 v{V_DO[k]}, 1024, v{V_DO[k]}")
            for k in range(2, 4): e(f"v_add_u32 v{V_DO[k]}, {8192 - 2048}, v{V_DO[k-2]}")
        else:
            e("v_lshrrev_b32 v27, 4, v0")
            e("v_lshlrev_b32 v28, 2, v27")
            e("v_and_b32 v29, 15, v0")
            e("v_xor_b32 v28, v28, v29")
            e("v_lshlrev_b32 v28, 4, v28")
            e("s_lshl_b32 s52, s3, 4")
            e("v_add_u32 v27, s52, v27")
            e(f"v_lshl_add_u32 v{V_DO[0]}, v27, 10, v28")
            for k in range(1, 4): e(f"v_add_u32 v{V_DO[k]}, {3072*k}, v{V_DO[0]}")
        e("v_lshlrev_b32 v27, 4, v0")
        e(f"v_add_u32 v{V_DOO}, s45, v27")
        e(f"v_add_u32 v{V_BO[0]}, {OB0}, v27")
        e(f"v_add_u32 v{V_BO[1]}, {OB0 + 2*18432}, v27")
        if self.wonat:
            e("v_lshrrev_b32 v27, 4, v0\nv_bfe_u32 v28, v0, 2, 2\nv_lshl_add_u32 v27, v27, 2, v28")
            e("v_and_b32 v28, 7, v27\nv_lshlrev_b32 v28, 1, v28")
            e("v_bfe_u32 v29, v0, 1, 1\ns_lshl_b32 s52, s3, 2\nv_add_u32 v29, s52, v29\nv_xor_b32 v28, v28, v29")
            e("v_and_b32 v29, 1, v0\nv_lshlrev_b32 v29, 3, v29\nv_lshl_add_u32 v27, v27, 8, v29")
            e(f"v_lshl_add_u32 v{V_AO}, v28, 4, v27")
            e(f"v_xor_b32 v28, 2, v28\nv_lshl_add_u32 v{V_AO1}, v28, 4, v27")
        else:
            e("v_lshrrev_b32 v27, 4, v0")
            e("v_bfe_u32 v28, v0, 2, 2")
            e("v_lshl_add_u32 v27, v27, 2, v28")
            e("v_lshlrev_b32 v28, 2, v28")
            e("v_and_b32 v29, 3, v0")
            e("s_lshl_b32 s52, s3, 2")
            e("v_add_u32 v29, s52, v29")
            e("v_xor_b32 v28, v28, v29")
            e("v_lshlrev_b32 v28, 4, v28")
            e(f"v_lshl_add_u32 v{V_AO}, v27, 8, v28")
        l = self.lab("nonce")
        e(f"s_cmp_eq_u32 s2, 0\ns_cbranch_scc0 {l}\ns_cmp_eq_u32 s3, 0\ns_cbranch_scc0 {l}")
        e("s_memrealtime s[88:89]\ns_waitcnt lgkmcnt(0)\ns_or_b32 s88, s88, 1")
        e("v_mov_b32 v30, s88\nv_mov_b32 v31, s89\nv_mov_b32 v29, 0")
        e("s_mov_b64 exec, 1\ns_nop 4")
        e("global_store_dwordx2 v29, v[30:31], s[86:87] sc1")
        e("s_mov_b64 exec, -1")
        e(f"{l}:")
    def fused_early(self):
        e = self.p.e
        l = self.lab("early")
        if not self.wavex: e(f"s_cmp_eq_u32 s3, 0\ns_cbranch_scc0 {l}")
        e("v_mov_b32 v27, 0")
        e("global_load_dwordx2 v[240:241], v27, s[86:87] sc1")
        if self.inv: e("buffer_inv sc1")
        e(f"{l}:")
    def poll(self, base_sreg, tag, stride_shift=3):
        e = self.p.e
        lp = self.lab(tag + "p"); dn = self.lab(tag + "d")
        e("s_mov_b64 exec, 15\ns_nop 4")
        e(f"v_lshlrev_b32 v27, {stride_shift}, v0\nv_add_u32 v27, {base_sreg}, v27")
        e("s_mov_b32 s97, 0")
        e(f"{lp}:")
        e("global_load_dwordx2 v[30:31], v27, s[54:55] sc1")
        e("s_waitcnt vmcnt(0)")
        e("v_cmp_eq_u32 vcc, s88, v30\nv_cmp_eq_u32 s[56:57], s89, v31")
        e("s_nop 3\ns_and_b64 s[56:57], s[56:57], vcc\ns_cmp_eq_u64 s[56:57], exec")
        e(f"s_cbranch_scc1 {dn}")
        e(f"s_sleep 1\ns_add_u32 s97, s97, 1\ns_cmp_lt_u32 s97, 0x40000\ns_cbranch_scc1 {lp}")
        e(f"{dn}:")
        e("s_mov_b64 exec, -1")
    def signal(self, base_sreg, member_sreg):
        e = self.p.e
        e(f"s_lshl_b32 s48, {member_sreg}, 3\ns_add_u32 s48, s48, {base_sreg}")
        e("v_mov_b32 v27, s48\nv_mov_b32 v30, s88\nv_mov_b32 v31, s89")
        e("s_mov_b64 exec, 1\ns_nop 4")
        e("global_store_dwordx2 v27, v[30:31], s[54:55] sc1")
        e("s_mov_b64 exec, -1")
    def fused_tail(self):
        p = self.p; e = p.e; L = self.name; stamps = self.stamps
        stamp(p, 6, stamps)
        e("s_and_b32 s46, s2, 3\ns_bfe_u32 s47, s2, 0x20003")
        e("s_lshl_b32 s52, s27, 2\ns_add_u32 s52, s52, s46\ns_lshl_b32 s52, s52, 3\ns_add_u32 s52, s52, s28")
        e(f"s_lshl_b32 s52, s52, 7\ns_add_u32 s43, s52, {FLAG1}")
        e("s_lshl_b32 s52, s27, 3\ns_add_u32 s52, s52, s28\ns_lshl_b32 s52, s52, 2\ns_add_u32 s52, s52, s47")
        e(f"s_mul_i32 s53, s52, 294912\ns_add_u32 s53, s53, {PART0}")
        e(f"s_lshl_b32 s52, s52, 7\ns_add_u32 s44, s52, {FLAG2}")
        e("s_add_u32 s4, s54, s53\ns_addc_u32 s5, s55, 0\ns_mov_b32 s6, 294912\ns_mov_b32 s7, 0x20000")
        e("s_mov_b32 s12, s84\ns_mov_b32 s13, s85\ns_mov_b32 s14, 2359296\ns_mov_b32 s15, 0x20000")
        e("s_mul_i32 s45, s3, 5\ns_cmp_eq_u32 s3, 3\ns_cselect_b32 s53, 1, 0\ns_sub_u32 s45, s45, s53\ns_lshl_b32 s45, s45, 10")
        def g_O(slot, kimm):
            fl = self.oloadflags
            gs = [mk(f"s_add_u32 m0, s45, {OB0 + slot*18432}\ns_add_u32 s37, s50, {kimm*18432}\n"
                     f"buffer_load_dwordx4 v{V_DOO}, {S_OW}, s37 offen {fl} lds")]
            for k in range(1, 4):
                gs.append(mk(f"buffer_load_dwordx4 v{V_DOO}, {S_OW}, s37 offen offset:{k*1024} {fl} lds"))
            l = self.lab("o5")
            gs.append(mk(f"s_cbranch_vccz {l}\ns_add_u32 m0, s45, {OB0 + slot*18432 + 4096}\ns_add_u32 s37, s37, 4096\n"
                         f"buffer_load_dwordx4 v{V_DOO}, {S_OW}, s37 offen {fl} lds\n{l}:"))
            return gs
        def get_tag():
            lp = self.lab("np"); dn = self.lab("nd")
            e("s_mov_b32 s97, 0\nv_mov_b32 v27, 0")
            e("v_readfirstlane_b32 s88, v240\nv_readfirstlane_b32 s89, v241")
            e(f"s_nop 3\ns_cmp_lg_u32 s88, 0\ns_cbranch_scc1 {dn}")
            e(f"{lp}:")
            e("global_load_dwordx2 v[30:31], v27, s[86:87] sc1\ns_waitcnt vmcnt(0)")
            e("v_readfirstlane_b32 s88, v30\nv_readfirstlane_b32 s89, v31")
            e(f"s_nop 3\ns_cmp_lg_u32 s88, 0\ns_cbranch_scc1 {dn}")
            e(f"s_sleep 1\ns_add_u32 s97, s97, 1\ns_cmp_lt_u32 s97, 0x40000\ns_cbranch_scc1 {lp}")
            e(f"{dn}:")
        if self.wavex: get_tag()
        lw = self.lab("w0")
        e(f"s_cmp_eq_u32 s3, 0\ns_cbranch_scc0 {lw}")
        if not self.wavex: get_tag()
        self.signal("s43", "s47")
        e(f"{lw}:")
        e("s_lshl_b32 s38, s3, 12")
        e(f"s_mul_i32 s33, s46, 294912")
        def FAo(buf, ks, ee): return buf * 88 + ks * 8 + ee * 4
        def FBo(buf, ks, qt): return buf * 88 + 16 + (ks * 9 + qt) * 4
        def acc(ee, qt): return 32 + (ee * 9 + qt) * 4
        def rdO(buf, slot):
            q = []
            for ks in range(2):
                for ee in range(2):
                    for hf in range(2):
                        if self.wonat:
                            q.append(f"ds_read_b64_tr_b16 {aq(FAo(buf,ks,ee)+2*hf,2)}, v{V_AO1 if ee else V_AO} offset:{slot*16384 + ks*8192 + hf*4096}")
                        else:
                            q.append(f"ds_read_b64_tr_b16 {aq(FAo(buf,ks,ee)+2*hf,2)}, v{V_AO} offset:{slot*16384 + ks*8192 + hf*4096 + 8*ee}")
                for qt in range(9):
                    q.append(f"ds_read_b128 {aq(FBo(buf,ks,qt))}, v{V_BO[slot >> 1]} offset:{(slot & 1)*18432 + (ks*9+qt)*1024}")
            return mk("\n".join(q))
        def mmO(buf):
            q = []
            for ks in range(2):
                for ee in range(2):
                    for qt in range(9):
                        q.append(f"v_mfma_f32_16x16x32_bf16 {vq(acc(ee,qt))}, {aq(FAo(buf,ks,ee))}, {aq(FBo(buf,ks,qt))}, {vq(acc(ee,qt))}")
            return mk("\n".join(q))
        X = self.exp
        if self.ldsown:
            e("s_cmp_lt_u32 s3, 2\ns_cselect_b64 vcc, -1, 0")
            for r in range(32, 104): e(f"v_mov_b32 v{r}, 0")
            stamp(p, 7, stamps)
        elif self.ownfirst:
            e("s_cmp_lt_u32 s3, 2\ns_cselect_b64 vcc, -1, 0")
            e("s_mul_i32 s48, s26, 18432\ns_add_u32 s50, s33, s48")
            for g in g_O(0, 0) + g_O(1, 1): p.extend(g)
            for r in range(32, 104): e(f"v_mov_b32 v{r}, 0")
            lw = self.lab("w0b")
            e(f"s_cmp_eq_u32 s3, 0\ns_cbranch_scc0 {lw}")
            self.poll("s43", "f1")
            e("s_cmp_lt_u32 s3, 2\ns_cselect_b64 vcc, -1, 0")
            e(f"{lw}:")
            e("s_waitcnt vmcnt(4)")
            e("s_barrier")
            stamp(p, 7, stamps)
        else:
            if self.readback:
                e("s_cmp_lt_u32 s3, 2\ns_cselect_b64 vcc, -1, 0")
                e("s_mul_i32 s48, s47, 73728\ns_add_u32 s50, s33, s48")
                for sl in range(4):
                    for g in g_O(sl, sl): p.extend(g)
            for r in range(32, 104): e(f"v_mov_b32 v{r}, 0")
            lw = self.lab("w0b")
            e(f"s_cmp_eq_u32 s3, 0\ns_cbranch_scc0 {lw}")
            self.poll("s43", "f1")
            e(f"{lw}:")
            e("s_barrier")
            stamp(p, 7, stamps)
            e("s_cmp_lt_u32 s3, 2\ns_cselect_b64 vcc, -1, 0")
            e("s_mul_i32 s48, s26, 18432\ns_add_u32 s50, s33, s48")
            for g in g_O(0, 0) + g_O(1, 1): p.extend(g)
            e("s_waitcnt vmcnt(4)")
            e("s_barrier")
        p.extend(rdO(0, 0))
        if not self.ldsown:
            for g in g_O(2, 2) + g_O(3, 3): p.extend(g)
        e("s_add_u32 s34, s26, 4\ns_and_b32 s34, s34, 15")
        e("s_mul_i32 s48, s34, 18432\ns_add_u32 s50, s33, s48\ns_lshl_b32 s41, s34, 16")
        if self.ldsown:
            e("s_mov_b32 s32, s50\ns_mul_i32 s48, s26, 18432\ns_add_u32 s50, s33, s48")
        e("s_mov_b32 s30, 0")
        if "trO" in self.exp: e("s_mov_b32 s96, 0")
        if "olp" in self.exp: stamp(p, 11, stamps)
        if "sho" in self.exp: e("s_nop 0")
        if "alo" in self.exp: e(".p2align 6")
        e(f"{L}_oloop:")
        for k in range(4):
            if "trO" in X: e("s_memtime s[92:93]")
            if self.ldsown:
                if k < 3:
                    lc = self.lab("oc"); ld = self.lab("od")
                    e(f"s_cmp_eq_u32 s30, 0\ns_cbranch_scc1 {ld}\ns_waitcnt vmcnt(16)\n{ld}:")
                else:
                    e("s_waitcnt vmcnt(16)")
                if k == 1:
                    lp = self.lab("op")
                    e(f"s_cmp_eq_u32 s30, 0\ns_cbranch_scc0 {lp}\ns_cmp_eq_u32 s3, 0\ns_cbranch_scc0 {lp}")
                    self.poll("s43", "f1")
                    e("s_cmp_lt_u32 s3, 2\ns_cselect_b64 vcc, -1, 0")
                    e(f"{lp}:")
            elif k < 3:
                lc = self.lab("oc"); ld = self.lab("od")
                first = [8, 8, 16][k]
                if first != 16:
                    e(f"s_cmp_eq_u32 s30, 0\ns_cbranch_scc0 {lc}\ns_waitcnt vmcnt({[8, 12, 16][k]})\ns_branch {ld}\n{lc}:\ns_waitcnt vmcnt(16)\n{ld}:")
                else:
                    e("s_waitcnt vmcnt(16)")
            else:
                e("s_waitcnt vmcnt(16)")
            e("s_waitcnt lgkmcnt(0)")
            if "trO" in X: e("s_memtime s[94:95]")
            e("s_barrier")
            if "trO" in X:
                e("s_waitcnt lgkmcnt(0)")
                e("s_mov_b32 m0, s96\ns_nop 3\nv_writelane_b32 v18, s92, m0\ns_add_u32 m0, s96, 1\ns_nop 3\nv_writelane_b32 v18, s94, m0\ns_add_u32 s96, s96, 2")
            if self.ldsown and k == 1:
                lx = self.lab("ox")
                e(f"s_cmp_eq_u32 s30, 0\ns_cbranch_scc0 {lx}\ns_mov_b32 s50, s32")
                for g in g_O(0, 0): p.extend(g)
                e(f"{lx}:")
            dm = ([] if "onoO" in X else g_O(k, k)) + ([] if "onoW" in X else self.g_Wo(k, k))
            fill = merge_fills(rdO((k + 1) & 1, (k + 1) & 3) if "onord" not in X else [], dm)
            p.extend(interleave(mmO(k & 1) if "onomm" not in X else mk("s_nop 0"), fill, 0, 29))
        e("s_add_u32 s34, s34, 4\ns_and_b32 s34, s34, 15")
        e("s_mul_i32 s48, s34, 18432\ns_add_u32 s50, s33, s48\ns_lshl_b32 s41, s34, 16")
        if self.oobtail:
            e("s_cmp_eq_u32 s30, 2\ns_cselect_b32 s50, 0x7f000000, s50\ns_cselect_b32 s41, 0x7f000000, s41")
        e("s_add_u32 s30, s30, 1\ns_cmp_lt_u32 s30, 4")
        e(f"s_cbranch_scc1 {L}_oloop")
        e("s_waitcnt lgkmcnt(0)")
        stamp(p, 8, stamps)
        e("v_lshlrev_b32 v27, 4, v0\ns_lshl_b32 s52, s3, 11\nv_add_u32 v26, s52, v27")
        e(f"v_and_b32 v25, 15, v0\nv_lshlrev_b32 v25, 11, v25\nv_lshrrev_b32 v24, 4, v0\nv_lshl_add_u32 v25, v24, {3 if self.wonat else 4}, v25")
        e("s_lshl_b32 s52, s3, 6\nv_add_u32 v25, s52, v25")
        e("s_mul_i32 s52, s28, 294912\ns_lshl_b32 s53, s27, 10\ns_add_u32 s52, s52, s53\ns_lshl_b32 s53, s47, 8\ns_add_u32 s45, s52, s53")
        e("s_mul_i32 s42, s46, 73728")
        labs = [self.lab(f"oc{o}") for o in range(4)]
        fin = self.lab("ofin")
        for o in range(1, 4):
            e(f"s_cmp_eq_u32 s46, {o}\ns_cbranch_scc1 {labs[o]}")
        for o in range(4):
            e(f"{labs[o]}:")
            for qt in range(9):
                if qt in OWN[o]: continue
                if self.pbf16:
                    a0, a1 = acc(0, qt), acc(1, qt)
                    e(f"v_cvt_pk_bf16_f32 v{a0}, v{a0}, v{a0+1}\nv_cvt_pk_bf16_f32 v{a0+1}, v{a0+2}, v{a0+3}")
                    e(f"v_cvt_pk_bf16_f32 v{a0+2}, v{a1}, v{a1+1}\nv_cvt_pk_bf16_f32 v{a0+3}, v{a1+2}, v{a1+3}")
                    e(f"s_add_u32 s48, s42, {qt*8192}")
                    e(f"buffer_store_dwordx4 {vq(a0)}, v26, s[4:7], s48 offen sc1")
                    continue
                e(f"s_add_u32 s48, s42, {qt*8192}")
                for ee in range(2):
                    e(f"buffer_store_dwordx4 {vq(acc(ee,qt))}, v26, s[4:7], s48 offen offset:{ee*1024} sc1")
            if self.wavex:
                e("s_waitcnt vmcnt(0)")
                e("s_lshl_b32 s48, s46, 2\ns_add_u32 s49, s48, s3")
                self.signal("s44", "s49")
                e("s_lshl_b32 s48, s3, 3\ns_add_u32 s49, s44, s48")
                self.poll("s49", "f2", stride_shift=5)
            else:
                e("s_waitcnt vmcnt(0)\ns_barrier")
                lw = self.lab("w1")
                e(f"s_cmp_eq_u32 s3, 0\ns_cbranch_scc0 {lw}")
                self.signal("s44", "s46")
                self.poll("s44", "f2")
                e(f"{lw}:")
                e("s_barrier")
            stamp(p, 9, stamps)
            T = 112
            k = 0
            for d in range(1, 4):
                src = (o + d) & 3
                for qt in OWN[o]:
                    e(f"s_mov_b32 s48, {src*73728 + qt*8192}")
                    for ee in range(1 if self.pbf16 else 2):
                        e(f"buffer_load_dwordx4 {vq(T + k*4)}, v26, s[4:7], s48 offen offset:{ee*1024} sc1"); k += 1
            nl = k
            k = 0
            for d in range(1, 4):
                for qt in OWN[o]:
                    if self.pbf16:
                        e(f"s_waitcnt vmcnt({nl - 1 - k})")
                        t = T + k * 4
                        for r in range(4):
                            ee, i = r >> 1, (r & 1) * 2
                            e(f"v_lshlrev_b32 v106, 16, v{t+r}\nv_and_b32 v107, 0xffff0000, v{t+r}")
                            e(f"v_add_f32 v{acc(ee,qt)+i}, v{acc(ee,qt)+i}, v106\nv_add_f32 v{acc(ee,qt)+i+1}, v{acc(ee,qt)+i+1}, v107")
                        k += 1
                        continue
                    for ee in range(2):
                        e(f"s_waitcnt vmcnt({nl - 1 - k})")
                        for r in range(4):
                            e(f"v_add_f32 v{acc(ee,qt)+r}, v{acc(ee,qt)+r}, v{T + k*4 + r}")
                        k += 1
            for qt in OWN[o]:
                a0, a1 = acc(0, qt), acc(1, qt)
                e(f"v_cvt_pk_bf16_f32 v{a0}, v{a0}, v{a0+1}\nv_cvt_pk_bf16_f32 v{a0+1}, v{a0+2}, v{a0+3}")
                e(f"v_cvt_pk_bf16_f32 v{a0+2}, v{a1}, v{a1+1}\nv_cvt_pk_bf16_f32 v{a0+3}, v{a1+2}, v{a1+3}")
                e(f"s_add_u32 s48, s45, {qt*32768}")
                if self.wonat:
                    e(f"buffer_store_dwordx2 {vq(a0,2)}, v25, s[12:15], s48 offen")
                    e(f"buffer_store_dwordx2 {vq(a0+2,2)}, v25, s[12:15], s48 offen offset:32")
                else:
                    e(f"buffer_store_dwordx4 {vq(a0)}, v25, s[12:15], s48 offen {self.outflags}")
            if o < 3: e(f"s_branch {fin}")
        e(f"{fin}:")
        e("s_waitcnt vmcnt(0)")
        stamp(p, 10, stamps)
        if stamps and "xcc" in self.exp: e("s_getreg_b32 s71, hwreg(HW_REG_XCC_ID)")
        stamp_flush(p, 12 if "xcc" in self.exp else 14 if ("epi" in self.exp or "olp" in self.exp) else 11, stamps and f"{L}_stf", "s[54:55]")
        if "trO" in self.exp:
            l = self.lab("tr")
            e(f"s_cmp_eq_u32 s3, 0\ns_cbranch_scc0 {l}")
            e(f"s_lshl_b32 s58, s2, 8\ns_add_u32 s58, s58, {65*1024*1024}")
            e("v_lshlrev_b32 v251, 2, v0\nv_add_u32 v251, s58, v251")
            e(f"global_store_dword v251, v18, s[54:55]\ns_waitcnt vmcnt(0)")
            e(f"{l}:")
    def store_O_setup(self):
        e = self.p.e
        if self.ldsown:
            e("s_lshl_b32 s36, s25, 1\ns_add_u32 s37, s36, s24\ns_mul_i32 s37, s37, 18432")
            e("s_xor_b32 s48, s24, 1\ns_add_u32 s48, s48, s36\ns_mul_i32 s48, s48, 18432")
            e(f"s_add_u32 s37, s37, {OB0}\ns_add_u32 s48, s48, {OB0}\ns_lshl_b32 s36, s24, 12")
            e("v_add_u32 v31, s37, v17")
            e("v_add_u32 v29, s36, v31")
            e("s_add_u32 s48, s48, s36\nv_add_u32 v30, s48, v17")
        e("s_add_u32 s36, s29, s25")
        e("s_lshl_b32 s36, s36, 2")
        e("s_lshl_b32 s37, s24, 1")
        for u in range(4):
            e(f"s_xor_b32 s48, s37, {u}")
            e("s_add_u32 s48, s48, s36")
            e("s_mul_i32 s48, s48, 9216")
            e("s_lshl_b32 s49, s24, 12")
            e(f"s_add_u32 s{42+u}, s48, s49")
            if u < 2: e(f"s_add_u32 s{46+u}, s48, 8192")
    def store_O_tile(self, qt):
        e = self.p.e
        rc = V_S + qt
        e(f"v_mov_b32 v{V_S+9}, v{rc}\nv_mov_b32 v{V_S+8}, v{rc}")
        for u in range(4 if qt < 4 else 2):
            a, b = O_(2*u, qt), O_(2*u+1, qt)
            for x in (a, a+2, b, b+2):
                e(f"v_pk_mul_f32 {vq(x,2)}, {vq(x,2)}, {vq(V_S+8,2)}")
            e(f"v_cvt_pk_bf16_f32 v{a}, v{a}, v{a+1}")
            e(f"v_cvt_pk_bf16_f32 v{a+1}, v{a+2}, v{a+3}")
            e(f"v_cvt_pk_bf16_f32 v{a+2}, v{b}, v{b+1}")
            e(f"v_cvt_pk_bf16_f32 v{a+3}, v{b+2}, v{b+3}")
            if qt < 4:
                e(f"buffer_store_dwordx4 {vq(a)}, v17, {S_OW}, s{42+u} offen offset:{qt*1024} {self.oflags}")
                if self.ldsown: e(f"ds_write_b128 v{29 if u < 2 else 30}, {vq(a)} offset:{((u & 1)*9 + qt)*1024}")
            else:
                e(f"buffer_store_dwordx4 {vq(a)}, v17, {S_OW}, s{46+u} offen {self.oflags}")
                if self.ldsown: e(f"ds_write_b128 v31, {vq(a)} offset:{((u & 1)*9 + 8)*1024}")

def gen_k1(name, **kw):
    return K1(name, **kw).gen()

if __name__ == "__main__":
    import sys
    st = len(sys.argv) > 1
    def out(fn, **kw):
        p = gen_k1("k1_kernel", stamps=st, **kw)
        txt, n = finalize(p, "k1_kernel")
        print(fn, "nops inserted", n, "instrs", len(p))
        open(fn, "w").write("; @launch kernel=k1_kernel grid=(256,1,1) block=(256,1,1) lds=163840\n.amdgcn_target \"amdgcn-amd-amdhsa--gfx950\"\n.text\n" + txt + kd("k1_kernel"))
    out("k1_only.s")
    for x in sys.argv[2:]:
        if x.startswith("rot"): out(f"k1_{x}.s", rot=int(x[3:]))
        elif x == "regpf": out(f"k1_{x}.s", regpf=True, lead=4)
        elif x.startswith("lead"): out(f"k1_{x}.s", lead=int(x[4:]))
        elif x.startswith("M"): out(f"k1_{x}.s", mapping=x)
        elif x.startswith("fused"): out(f"k1_{x}.s", fused=True, oflags="sc1", inv=("noinv" not in x), oloadflags=("sc1" if "osc1" in x else ""))
        elif x.startswith("o_"): out(f"k1_{x}.s", oflags=x[2:].replace("_", " "))
        elif x == "wnt": out(f"k1_{x}.s", wflags="nt")
        elif x == "kvdef": out(f"k1_{x}.s", kvflags="")
        else: out(f"k1_{x}.s", exp=x)
```

```python
from asmlib import *
from gen_k2 import stamp, stamp_flush, kd, finalize
import struct

def fbits(x): return struct.unpack("<I", struct.pack("<f", x))[0]
CSCALE = 1.4426950408889634 / (128 ** 0.5)
L_LO = 2.0 ** -64
L_HI = 2.0 ** 16

XS = [0, 18432]
WS0 = 36864
SLOT = 32768
QX = 106496
KM1 = 16384

OS0 = 98304
OB0 = 65536
FLAG1 = 0x1400000
FLAG2 = FLAG1 + 8192
PART0 = 0x1600000
V_DO = [19, 23, 24, 25]; V_DOO = 20; V_AO = 21; V_AO1 = 18; V_BO = [22, 26]
OWN = [[0, 1, 2], [3, 4], [5, 6], [7, 8]]
STG = [f"a[{80+4*i}:{83+4*i}]" for i in range(12)] + [f"a[{232+4*i}:{235+4*i}]" for i in range(6)] + [f"v[{212+4*i}:{215+4*i}]" for i in range(6)]
V_DK = [1, 2]; V_DV = [3, 4]
V_KA = [5, 6, 7, 8]
V_VA = list(range(9, 17))
V_DW = [205, 206, 207, 208]; V_DX = [200, 201, 202, 203, 204]
V_XA = [19, 20]; V_XT = [21, 22]
V_WA = [23, 24, 25, 26]
V_ONES = 28
V_O = 32
V_OT = 160
V_S = 192; V_P = 216; V_NM = 236
def vq(b, n=4): return f"v[{b}:{b+n-1}]"
def aq(b, n=4): return f"a[{b}:{b+n-1}]"
def O_(T, qt): return V_O + (T * 4 + qt) * 4 if qt < 4 else V_OT + T * 4
def S_(buf, kt): return V_S + buf * 8 + kt * 4
def P_(qt): return V_P + qt * 4
def NM_(qt): return V_NM + qt * 4
A_Q = 0
def Q_(qt, u): return A_Q + (qt * 4 + u) * 4 if qt < 4 else 64 + u * 4
A_L = 80
def L_(qt): return A_L + qt * 4
A_K = 100
def K_(buf, kt, u): return A_K + buf * 32 + (kt * 4 + u) * 4
A_V = 164
def Vf(buf, T): return A_V + buf * 32 + T * 4
A_FR = 128
def FA(buf, T): return A_FR + buf * 52 + T * 4
def FB(buf, qt): return A_FR + buf * 52 + 32 + qt * 4

S_X = "s[4:7]"; S_WQ = "s[8:11]"; S_K = "s[12:15]"; S_V = "s[16:19]"; S_OW = "s[20:23]"

class K1:
    def __init__(self, name, mapping="M1", kvflags="nt", wflags="", oflags="", stamps=False, rot=4, lead=2, bursts=(2, 4), exp="", fused=False, inv=True, oloadflags="", woflags="", touch=False, regpf=False, skips=(5, 9), readback=False, wavex=False, pbf16=False, ownfirst=False, early4=False, codewarm=False, ldsown=False, wonat=False, outflags="", oobtail=False, trim=False, throttle=None, prepoll=False):
        self.prepoll = prepoll
        self.throttle = throttle
        self.oobtail = oobtail; self.trim = trim
        self.outflags = outflags
        self.wonat = wonat
        self.ldsown = ldsown
        if ldsown: ownfirst = True
        self.codewarm = codewarm
        self.early4 = early4
        self.pbf16 = pbf16; self.ownfirst = ownfirst or ldsown
        self.readback = readback; self.wavex = wavex
        self.touch = touch; self.regpf = regpf; self.skips = skips
        self.exp = exp; self.fused = fused; self.inv = inv; self.oloadflags = oloadflags; self.woflags = woflags
        self.name = name; self.mapping = mapping; self.kvflags = kvflags; self.wflags = wflags; self.oflags = oflags
        self.stamps = stamps; self.rot = rot; self.lead = lead; self.bursts = bursts
        self.p = Prog(); self.uid = 0
    def lab(self, t):
        self.uid += 1
        return f"{self.name}_{t}{self.uid}"
    def g_W(self, slot):
        gs = [mk(f"s_add_u32 m0, s38, {WS0 + slot*16384}")
              + mk(f"buffer_load_dwordx4 v{V_DW[0]}, {S_WQ}, s44 offen {self.wflags} lds")]
        gs[0].insert(1, mk("s_nop 0")[0])
        for k in range(1, 4):
            gs.append(mk(f"buffer_load_dwordx4 v{V_DW[k]}, {S_WQ}, s44 offen offset:{k*1024} {self.wflags} lds"))
        gs[-1] = gs[-1] + mk("s_add_u32 s44, s44, 0x40000\ns_and_b32 s44, s44, 0x3fffff")
        return gs
    def g_X(self, slot):
        gs = [mk(f"s_add_u32 m0, s45, {XS[slot]}\ns_nop 0\nbuffer_load_dwordx4 v{V_DX[0]}, {S_X}, s46 offen {self.wflags} lds")]
        for k in range(1, 4):
            gs.append(mk(f"buffer_load_dwordx4 v{V_DX[k]}, {S_X}, s46 offen offset:{k*1024} {self.wflags} lds"))
        l = self.lab("x5")
        gs.append(mk(f"s_cbranch_vccz {l}\ns_add_u32 m0, s45, {XS[slot] + 4096}\ns_nop 0\n"
                     f"buffer_load_dwordx4 v{V_DX[4]}, {S_X}, s46 offen {self.wflags} lds\n{l}:\n"
                     f"s_add_u32 s46, s46, 128\ns_and_b32 s46, s46, 1023"))
        return gs
    def g_KV(self, region, slot_expr, tile_expr):
        isK = region < 2
        srd = S_K if isK else S_V
        vo = V_DK if isK else V_DV
        return mk(f"s_add_u32 m0, {slot_expr[0]}, {slot_expr[1] + region*8192}\n"
                  f"s_add_u32 s37, {tile_expr[0]}, {tile_expr[1] + (region & 1)*131072}\n"
                  f"buffer_load_dwordx4 v{vo[0]}, {srd}, s37 offen {self.kvflags} lds\n"
                  f"buffer_load_dwordx4 v{vo[1]}, {srd}, s37 offen offset:1024 {self.kvflags} lds")
    def guard(self, group, cmp):
        l = self.lab("g")
        return mk(f"{cmp}\ns_cbranch_scc0 {l}") + group + mk(f"{l}:")
    def bundle_static(self, j, parts="KV"):
        gs = []
        slot = ((j + 4) % 5) * SLOT + (KM1 if j == -1 else 0)
        if "K" in parts and j + 1 <= 15:
            gs += [self.g_KV(r, ("s39", slot), ("s40", (j + 1) * 8192)) for r in (0, 1)]
        if "V" in parts and j >= 0:
            gs += [self.g_KV(r, ("s39", slot), ("s40", j * 8192)) for r in (2, 3)]
        return gs

    def stage_loads(self, jb):
        gs = []
        for r in range(4):
            isK = r < 2
            srd = S_K if isK else S_V
            vo = V_DK if isK else V_DV
            tile = jb + 1 if isK else jb
            q0 = STG[(jb - 1) * 8 + r * 2]; q1 = STG[(jb - 1) * 8 + r * 2 + 1]
            gs.append(mk(f"s_add_u32 s37, s40, {tile*8192 + (r & 1)*131072}\n"
                         f"buffer_load_dwordx4 {q0}, v{vo[0]}, {srd}, s37 offen {self.kvflags}"))
            gs.append(mk(f"buffer_load_dwordx4 {q1}, v{vo[1]}, {srd}, s37 offen offset:1024 {self.kvflags}"))
        return gs
    def stage_writes(self):
        gs = []
        for jb in (1, 2, 3):
            slot = (jb + 4) % 5
            for r in range(4):
                for ii in range(2):
                    off = slot * SLOT + r * 8192 + ii * 1024
                    base = 28 if off < 65536 else 29
                    gs.append(mk(f"ds_write_b128 v{base}, {STG[(jb-1)*8 + r*2 + ii]} offset:{off % 65536}")[0])
        return gs
    def gen(self):
        p = self.p; e = p.e; L = self.name; stamps = self.stamps; rot = self.rot; lead = self.lead
        e("s_cmp_ge_u32 s2, 256")
        e(f"s_cbranch_scc1 {L}_done")
        if "perm" in self.exp:
            e("s_and_b32 s3, s2, 7\ns_lshl_b32 s3, s3, 5\ns_lshr_b32 s2, s2, 3\ns_or_b32 s2, s2, s3")
        stamp(p, 0, stamps)
        e("s_load_dwordx8 s[36:43], s[0:1], 0")
        e("s_load_dwordx8 s[44:51], s[0:1], 40")
        e("s_load_dwordx2 s[54:55], s[0:1], 96")
        if self.fused:
            e("s_load_dwordx2 s[98:99], s[0:1], 32")
            e("s_load_dwordx2 s[100:101], s[0:1], 72")
            e("s_load_dwordx4 s[84:87], s[0:1], 80")
        if self.codewarm:
            e("s_getpc_b64 s[90:91]")
            e(f"{L}_pc:")
            e("s_lshr_b32 s92, s2, 3\ns_lshl_b32 s92, s92, 12")
            e("v_lshlrev_b32 v28, 4, v0\nv_add_u32 v28, s92, v28")
            e("v_and_b32 v28, 0x7fff, v28")
            e(f"v_min_u32 v28, {L}_done-{L}_pc-16, v28")
            e("global_load_dwordx4 v[252:255], v28, s[90:91]")
        e("v_lshrrev_b32 v27, 6, v0")
        e("v_and_b32 v0, 63, v0")
        e("v_readfirstlane_b32 s3, v27")
        e("s_and_b32 s52, s2, 7")
        e("s_lshr_b32 s27, s52, 2")
        if self.mapping == "M1":
            e("s_lshr_b32 s28, s2, 5")
            e("s_bfe_u32 s53, s2, 0x20003")
            e("s_and_b32 s52, s52, 3")
            if "swapoct" in self.exp:
                e("s_and_b32 s57, s52, 1\ns_lshl_b32 s57, s57, 1\ns_lshr_b32 s52, s52, 1\ns_or_b32 s52, s52, s57")
            e("s_lshl_b32 s29, s52, 3")
            e("s_lshl_b32 s56, s53, 1")
            e("s_add_u32 s29, s29, s56")
            e("s_mov_b32 s56, s28")
        elif self.mapping == "M4":
            e("s_lshr_b32 s56, s2, 3")
            e("s_and_b32 s53, s56, 7")
            e("s_lshr_b32 s56, s56, 3")
            e("s_and_b32 s57, s52, 1")
            e("s_lshl_b32 s28, s57, 2")
            e("s_add_u32 s28, s28, s56")
            e("s_bfe_u32 s57, s52, 0x10001")
            e("s_lshl_b32 s29, s57, 4")
            e("s_lshl_b32 s57, s53, 1")
            e("s_add_u32 s29, s29, s57")
        elif self.mapping == "M2":
            e("s_lshr_b32 s56, s2, 3")
            e("s_and_b32 s53, s56, 15")
            e("s_lshr_b32 s56, s56, 4")
            e("s_and_b32 s57, s52, 3")
            e("s_lshl_b32 s28, s57, 1")
            e("s_add_u32 s28, s28, s56")
            e("s_lshl_b32 s29, s53, 1")
        if rot == 8:
            e("s_lshl_b32 s26, s56, 1\ns_lshl_b32 s57, s53, 2\ns_add_u32 s26, s26, s57\ns_and_b32 s26, s26, 14")
        elif rot == 4:
            e("s_add_u32 s26, s56, s53\ns_and_b32 s26, s26, 3\ns_lshl_b32 s26, s26, 2")
        elif rot == 44:
            e("s_and_b32 s26, s56, 3\ns_lshl_b32 s26, s26, 2")
        elif rot == 45:
            e("s_and_b32 s26, s53, 3\ns_lshl_b32 s26, s26, 2")
        elif rot == 2:
            e("s_add_u32 s26, s56, s53\ns_and_b32 s26, s26, 1\ns_lshl_b32 s26, s26, 3")
        else:
            e("s_mov_b32 s26, 0")
        e("s_and_b32 s24, s3, 1")
        e("s_lshr_b32 s25, s3, 1")
        e("v_lshrrev_b32 v27, 5, v0")
        e("s_lshl_b32 s52, s3, 3")
        e("v_add_u32 v27, s52, v27")
        e("v_and_b32 v30, 31, v0")
        for k in range(4):
            e(f"v_add_u32 v28, {2*k}, v27")
            e("v_and_b32 v29, 3, v28")
            e("v_lshlrev_b32 v29, 2, v29")
            e("v_xor_b32 v29, v29, v30")
            e("v_lshlrev_b32 v29, 4, v29")
            e(f"v_lshl_add_u32 v{V_DW[k]}, v28, 13, v29")
            if k: e(f"v_subrev_u32 v{V_DW[k]}, {k*1024}, v{V_DW[k]}")
        e("s_mul_i32 s52, s3, 5\ns_cmp_eq_u32 s3, 3\ns_cselect_b32 s53, 1, 0\ns_sub_u32 s52, s52, s53")
        e("s_lshl_b32 s57, s52, 10")
        e("s_lshl_b32 s52, s52, 3")
        e("v_lshrrev_b32 v27, 3, v0")
        e("v_add_u32 v27, s52, v27")
        e("v_and_b32 v30, 7, v0")
        for k in range(5):
            e(f"v_add_u32 v28, {8*k}, v27")
            e("v_lshrrev_b32 v29, 1, v28")
            e("v_and_b32 v29, 7, v29")
            e("v_xor_b32 v29, v29, v30")
            e("v_lshlrev_b32 v29, 4, v29")
            e(f"v_lshl_add_u32 v{V_DX[k]}, v28, 10, v29")
            if 0 < k < 4: e(f"v_subrev_u32 v{V_DX[k]}, {k*1024}, v{V_DX[k]}")
        e("s_cmp_lt_u32 s3, 2")
        e("s_cselect_b64 vcc, -1, 0")
        e("s_waitcnt lgkmcnt(0)")
        e("s_cmp_eq_u32 s27, 0")
        e("s_cselect_b32 s4, s36, s44\ns_cselect_b32 s5, s37, s45")
        e("s_cselect_b32 s12, s38, s46\ns_cselect_b32 s13, s39, s47")
        e("s_cselect_b32 s16, s40, s48\ns_cselect_b32 s17, s41, s49")
        e("s_cselect_b32 s8, s42, s50\ns_cselect_b32 s9, s43, s51")
        if self.fused: e("s_cselect_b32 s98, s98, s100\ns_cselect_b32 s99, s99, s101")
        e("s_lshl_b32 s39, s3, 11\ns_lshl_b32 s40, s25, 12")
        e("s_mul_i32 s52, s28, 147456")
        e("s_add_u32 s4, s4, s52\ns_addc_u32 s5, s5, 0\ns_mov_b32 s6, 147456\ns_mov_b32 s7, 0x20000")
        e("s_lshl_b32 s52, s29, 8")
        e("s_add_u32 s8, s8, s52\ns_addc_u32 s9, s9, 0\ns_sub_u32 s10, 0x400000, s52\ns_mov_b32 s11, 0x20000")
        e("s_lshl_b32 s38, s3, 12")
        e("s_mov_b32 s45, s57")
        e("s_lshl_b32 s46, s26, 6")
        e("s_lshl_b32 s44, s26, 18")
        for g in self.g_X(0): p.extend(g)
        for g in self.g_W(0): p.extend(g)
        stamp(p, 1, stamps)
        e("s_lshl_b32 s52, s28, 5\ns_add_u32 s52, s52, s29")
        e("s_lshr_b32 s53, s52, 15\ns_lshl_b32 s52, s52, 17")
        e("s_add_u32 s12, s12, s52\ns_addc_u32 s13, s13, s53\ns_mov_b32 s14, 262144\ns_mov_b32 s15, 0x20000")
        e("s_add_u32 s16, s16, s52\ns_addc_u32 s17, s17, s53\ns_mov_b32 s18, 262144\ns_mov_b32 s19, 0x20000")
        e("s_lshl_b32 s52, s27, 3\ns_add_u32 s52, s52, s28\ns_mul_i32 s52, s52, 1179648")
        e("s_add_u32 s20, s54, s52\ns_addc_u32 s21, s55, 0\ns_mov_b32 s22, 1179648\ns_mov_b32 s23, 0x20000")
        e("v_lshrrev_b32 v27, 4, v0")
        e("s_lshl_b32 s52, s24, 3")
        e("v_add_u32 v27, s52, v27")
        e("v_and_b32 v30, 15, v0")
        for ii in range(2):
            e(f"v_add_u32 v29, {4*ii}, v27")
            e(f"v_xor_b32 v31, v29, v30")
            e(f"v_lshlrev_b32 v31, 4, v31")
            e(f"v_lshl_add_u32 v{V_DK[ii]}, v27, 8, v31")
            e(f"v_and_b32 v29, 7, v29")
            e(f"v_lshlrev_b32 v29, 1, v29")
            e(f"v_xor_b32 v31, v29, v30")
            e(f"v_lshlrev_b32 v31, 4, v31")
            e(f"v_lshl_add_u32 v{V_DV[ii]}, v27, 8, v31")
        e("v_and_b32 v27, 15, v0")
        e("v_lshrrev_b32 v28, 4, v0")
        e("v_lshrrev_b32 v29, 1, v27")
        e("v_xor_b32 v29, v29, v28")
        e("s_lshl_b32 s52, s24, 13")
        e("v_lshlrev_b32 v30, 7, v27")
        e("v_add_u32 v30, s52, v30")
        for sp in range(2):
            e(f"v_xor_b32 v31, {4*sp}, v29")
            e(f"v_lshl_add_u32 v{V_XA[sp]}, v31, 4, v30")
        e("s_sub_u32 s52, 16384, s52")
        for sp in range(2):
            e(f"v_add_u32 v{V_XT[sp]}, s52, v{V_XA[sp]}")
        e("v_bfe_u32 v29, v0, 2, 2")
        e("v_lshl_add_u32 v30, v28, 3, v29")
        e("v_lshlrev_b32 v30, 9, v30")
        e(f"v_add_u32 v30, {WS0}, v30")
        e("v_lshlrev_b32 v29, 2, v29")
        e("v_and_b32 v31, 3, v0")
        e("v_xor_b32 v29, v29, v31")
        e("s_lshl_b32 s52, s25, 4\ns_lshl_b32 s53, s24, 3\ns_or_b32 s52, s52, s53")
        e("v_xor_b32 v29, s52, v29")
        for u in range(4):
            e(f"v_xor_b32 v31, {4*u}, v29")
            e(f"v_lshl_add_u32 v{V_WA[u]}, v31, 4, v30")
        e("v_xor_b32 v29, v27, v28")
        e("s_lshl_b32 s53, s24, 3")
        e("v_xor_b32 v29, s53, v29")
        e("s_lshl_b32 s52, s25, 13")
        e(f"s_add_u32 s52, s52, {3*SLOT}")
        e("v_lshlrev_b32 v30, 8, v27")
        e("v_add_u32 v30, s52, v30")
        for u in range(4):
            e(f"v_xor_b32 v31, {4*u}, v29")
            e(f"v_lshl_add_u32 v{V_KA[u]}, v31, 4, v30")
        e("v_bfe_u32 v29, v0, 2, 2")
        e("v_lshl_add_u32 v29, v28, 2, v29")
        e("v_lshlrev_b32 v30, 8, v29")
        e("v_and_b32 v31, 1, v0")
        e("v_lshl_add_u32 v30, v31, 3, v30")
        e("s_lshl_b32 s52, s25, 13")
        e(f"s_add_u32 s52, s52, {3*SLOT + 16384}")
        e("v_add_u32 v30, s52, v30")
        e("v_and_b32 v29, 7, v29")
        e("v_lshlrev_b32 v29, 1, v29")
        e("v_bfe_u32 v31, v0, 1, 1")
        e("v_xor_b32 v29, v29, v31")
        e("s_lshl_b32 s53, s24, 3")
        e("v_xor_b32 v29, s53, v29")
        for T in range(8):
            e(f"v_xor_b32 v31, {2*T}, v29")
            e(f"v_lshl_add_u32 v{V_VA[T]}, v31, 4, v30")
        for r in range(V_O, V_O + 144):
            e(f"v_mov_b32 v{r}, 0")
        for g in self.g_W(1): p.extend(g)

        def rdQ(buf, ks):
            q = []
            wo = (ks % 4) * 16384
            xo = XS[(ks // 2) % 2]
            sp = ks & 1
            for T in range(8):
                u = T >> 1
                q.append(f"ds_read_b64_tr_b16 {aq(FA(buf,T),2)}, v{V_WA[u]} offset:{wo + 8*(T&1)}")
                q.append(f"ds_read_b64_tr_b16 {aq(FA(buf,T)+2,2)}, v{V_WA[u]} offset:{wo + 8*(T&1)+2048}")
            for qt in range(4):
                q.append(f"ds_read_b128 {aq(FB(buf,qt))}, v{V_XA[sp]} offset:{xo + qt*2048}")
            q.append(f"ds_read_b128 {aq(FB(buf,4))}, v{V_XT[sp]} offset:{xo}")
            return mk("\n".join(q))
        def mmQ(buf):
            q = []
            for T in range(8):
                for qt in range(4):
                    q.append(f"v_mfma_f32_16x16x32_bf16 {vq(O_(T,qt))}, {aq(FA(buf,T))}, {aq(FB(buf,qt))}, {vq(O_(T,qt))}")
                if T < 4:
                    q.append(f"v_mfma_f32_16x16x32_bf16 {vq(V_OT+T*4)}, {aq(FA(buf,T))}, {aq(FB(buf,4))}, {vq(V_OT+T*4)}")
            return mk("\n".join(q))
        X = self.exp
        def qbody(s_, wait, dmas):
            if "trQ" in X: e("s_memtime s[92:93]")
            if wait is not None: e(f"s_waitcnt vmcnt({wait}) lgkmcnt(0)")
            else: e("s_waitcnt lgkmcnt(0)")
            if "trQ" in X:
                e("s_memtime s[94:95]")
            e("s_barrier")
            if "trQ" in X:
                e("s_waitcnt lgkmcnt(0)")
                e("s_mov_b32 m0, s96\ns_nop 3\nv_writelane_b32 v17, s92, m0\ns_add_u32 m0, s96, 1\ns_nop 3\nv_writelane_b32 v17, s94, m0\ns_add_u32 s96, s96, 2")
            rd = rdQ((s_ + 1) & 1, (s_ + 1) % 4 + (4 if (s_ + 1) % 4 < 0 else 0)) if (s_ < 15 and "noread" not in X) else []
            if "nodma" in X: dmas = []
            fill = merge_fills(rd, dmas)
            p.extend(interleave(mmQ(s_ & 1) if "nomfma" not in X else mk("s_nop 0"), fill, 0, 27))
        e("s_waitcnt vmcnt(4)")
        e("s_barrier")
        p.extend(rdQ(0, 0))
        for g in self.g_X(1) + self.g_W(2) + self.g_W(3): p.extend(g)
        stamp(p, 2, stamps)
        e("s_mov_b32 s30, 0")
        if "trQ" in X: e("s_mov_b32 s96, 0\nv_mov_b32 v17, 0")
        if "shq" in self.exp: e("s_nop 0")
        if "alq" in self.exp: e(".p2align 6")
        e(f"{L}_qloop:")
        if not self.regpf:
            waits = [12, 4, 12, 4]
            for k in range(4):
                d = self.g_W(k)
                if k & 1: d = d + self.g_X(((k - 1) // 2) % 2)
                qbody(k, waits[k] if "nodma" not in X else None, d)
        else:
            l24 = self.lab("q24"); ld = self.lab("qd")
            e(f"s_cmp_eq_u32 s30, 0\ns_cbranch_scc0 {l24}\ns_waitcnt vmcnt(12)\ns_branch {ld}\n{l24}:\ns_waitcnt vmcnt(24)\n{ld}:")
            qbody(0, None, self.g_W(0))
            lv = [self.lab("qv") for _ in range(3)]; lj = self.lab("qj")
            e(f"s_cmp_eq_u32 s30, 1\ns_cbranch_scc1 {lv[1]}\ns_cmp_eq_u32 s30, 2\ns_cbranch_scc1 {lv[2]}")
            for it in range(3):
                e(f"{lv[it]}:")
                qbody(1, 4, self.g_W(1) + self.g_X(0) + self.stage_loads(it + 1))
                if it < 2: e(f"s_branch {lj}")
            e(f"{lj}:")
            qbody(2, 20, self.g_W(2))
            qbody(3, 12, self.g_W(3) + self.g_X(1))
        e("s_add_u32 s30, s30, 1")
        e("s_cmp_lt_u32 s30, 3")
        e(f"s_cbranch_scc1 {L}_qloop")
        if not self.regpf:
            qbody(12, 16, self.bundle_static(-1))
            qbody(13, 4, self.bundle_static(0))
            qbody(14, 16, self.pretouch() if (self.fused and self.touch) else [])
            qbody(15, None, self.bundle_static(1))
        else:
            qbody(12, 24, self.bundle_static(-1))
            qbody(13, 4, self.bundle_static(0))
            qbody(14, 16, self.pretouch() if (self.fused and self.touch) else [])
            e("v_lshlrev_b32 v28, 4, v0\nv_add_u32 v28, s39, v28\nv_add_u32 v29, 0x10000, v28")
            qbody(15, None, self.stage_writes())
        e("s_waitcnt lgkmcnt(0)")
        stamp(p, 3, stamps)

        def rdK(buf, extra=0):
            return mk("\n".join(f"ds_read_b128 {aq(K_(buf,kt,u))}, v{V_KA[u]} offset:{kt*4096 + extra}" for kt in range(2) for u in range(4)))
        def read_k0():
            l1 = self.lab("k0p"); l2 = self.lab("k0d")
            e("s_cmp_eq_u32 s24, 0")
            e(f"s_cbranch_scc0 {l1}")
            p.extend(rdK(0, KM1))
            e(f"s_branch {l2}")
            e(f"{l1}:")
            p.extend(rdK(1, KM1))
            e(f"{l2}:")
        self.read_k0 = read_k0
        e(f"s_mov_b32 s48, {fbits(CSCALE):#x}\ns_mov_b32 s49, {fbits(CSCALE):#x}")
        T0 = 176
        k = 0
        for qt in (4, 0, 1, 2, 3):
            for u in range(4 if qt < 4 else 2):
                t = T0 + (k % 4) * 4; k += 1
                for h in range(2):
                    src = O_(2*u+h, qt) if qt < 4 else V_OT + (2*u+h)*4
                    e(f"v_pk_mul_f32 {vq(src,2)}, {vq(src,2)}, s[48:49]")
                    e(f"v_pk_mul_f32 {vq(src+2,2)}, {vq(src+2,2)}, s[48:49]")
                    e(f"v_cvt_pk_bf16_f32 v{t+2*h}, v{src}, v{src+1}")
                    e(f"v_cvt_pk_bf16_f32 v{t+2*h+1}, v{src+2}, v{src+3}")
                for r in range(4): e(f"v_accvgpr_write_b32 a{Q_(qt,u)+r}, v{t+r}")
                if qt == 4:
                    if u == 0:
                        e(f"s_add_u32 s52, s39, {QX}")
                        e(f"v_lshlrev_b32 v27, 4, v0")
                        e(f"v_add_u32 v27, s52, v27")
                    e(f"ds_write_b128 v27, {vq(t)} offset:{u*1024}")
            if qt == 4 and self.early4:
                e("s_waitcnt vmcnt(8) lgkmcnt(0)")
                e("s_barrier")
                e("v_xor_b32 v27, 0x800, v27")
                e(f"ds_read_b128 {aq(Q_(4,2))}, v27")
                e(f"ds_read_b128 {aq(Q_(4,3))}, v27 offset:1024")
                read_k0()
                e("s_waitcnt lgkmcnt(0)")
                e("s_barrier")
                for g in self.bundle_static(4): p.extend(g)
            if lead >= 3 and qt == 1 and not self.regpf:
                for g in self.bundle_static(2): p.extend(g)
            if lead >= 4 and qt == 3 and not self.regpf:
                for g in self.bundle_static(3): p.extend(g)
        if not self.early4:
            e("s_waitcnt lgkmcnt(0)")
            e("s_barrier")
            e("v_xor_b32 v27, 0x800, v27")
            e(f"ds_read_b128 {aq(Q_(4,2))}, v27")
            e(f"ds_read_b128 {aq(Q_(4,3))}, v27 offset:1024")
        for r in range(20): e(f"v_mov_b32 v{V_NM+r}, 0")
        if self.fused: self.fused_setup()
        e("s_mov_b32 s51, 0")
        e(f"{L}_attn:")
        for r in range(4): e(f"v_mov_b32 v{V_ONES+r}, 0x3f803f80")
        for r in range(V_O, V_O + 160): e(f"v_mov_b32 v{r}, 0")
        for r in range(20): e(f"v_mov_b32 v{V_P+r}, 0")
        for r in range(20): e(f"v_accvgpr_write_b32 a{A_L+r}, 0")
        if self.trim:
            lz = self.lab("vz"); lzd = self.lab("vzd")
            e(f"s_cmp_eq_u32 s24, 0\ns_cbranch_scc0 {lz}")
            for r in range(32): e(f"v_accvgpr_write_b32 a{A_V+32+r}, 0")
            e(f"s_branch {lzd}\n{lz}:")
            for r in range(32): e(f"v_accvgpr_write_b32 a{A_V+r}, 0")
            e(f"{lzd}:")
            for r in range(8): e(f"v_mov_b32 v{V_S+8+r}, 0xff800000")
        else:
            for r in range(64): e(f"v_accvgpr_write_b32 a{A_V+r}, 0")
            for r in range(24): e(f"v_mov_b32 v{V_S+r}, 0xff800000")
        stamp(p, 4, stamps)

        def rdV(buf):
            q = []
            for T in range(8):
                q.append(f"ds_read_b64_tr_b16 {aq(Vf(buf,T),2)}, v{V_VA[T]}")
                q.append(f"ds_read_b64_tr_b16 {aq(Vf(buf,T)+2,2)}, v{V_VA[T]} offset:4096")
            return mk("\n".join(q))
        if not self.early4:
            e(f"s_waitcnt vmcnt({8 if self.regpf else 8*lead}) lgkmcnt(0)")
            e("s_barrier")
            read_k0()
        e("s_mov_b32 s30, 0")
        if "trA" in self.exp: e("s_mov_b32 s96, 0")
        e("s_mov_b32 s35, 3")
        if self.fused: e("s_lshl_b32 s41, s26, 16\ns_lshl_b32 s42, s3, 12")
        if self.regpf:
            issue = []; nb = 5 if self.early4 else 4
            for j in range(16):
                if j in self.skips or nb > 15 or (self.early4 and j == 0): continue
                issue.append((j, nb)); nb += 1
            assert nb == 16, issue
            self.issue = issue
            mV = sum(1 << j for j, n in issue); mK = sum(1 << j for j, n in issue if n < 15)
            e(f"s_mov_b32 s43, {mV}\ns_mov_b32 s44, {mK}")
        nb0 = lead + (1 if self.early4 else 0)
        e(f"s_add_u32 s31, s39, {((nb0+4)%5)*SLOT}")
        e(f"s_add_u32 s32, s40, {(nb0+1)*8192}")
        e(f"s_add_u32 s33, s40, {nb0*8192}")
        e("s_cmp_eq_u32 s24, 0")
        e(f"s_cbranch_scc0 {L}_bodyB")

        def ladder(vals, tag):
            runs = []
            for j, v in enumerate(vals):
                if runs and runs[-1][2] == v: runs[-1][1] = j
                else: runs.append([j, j, v])
            done = self.lab(tag + "d")
            if len(runs) == 1:
                e(f"s_waitcnt vmcnt({vals[0]})"); return
            big = max(runs, key=lambda r: r[1] - r[0])
            labs = []
            lb = self.lab(tag)
            if big[0] == 0: e(f"s_cmp_le_u32 s30, {big[1]}\ns_cbranch_scc1 {lb}")
            else: e(f"s_sub_u32 s48, s30, {big[0]}\ns_cmp_le_u32 s48, {big[1]-big[0]}\ns_cbranch_scc1 {lb}")
            labs.append((lb, big[2]))
            rest = [r for r in runs if r is not big]
            for r in rest[:-1]:
                l = self.lab(tag); labs.append((l, r[2]))
                e(f"s_cmp_le_u32 s30, {r[1]}\ns_cbranch_scc1 {l}")
            e(f"s_waitcnt vmcnt({rest[-1][2]})")
            e(f"s_branch {done}")
            for k, (l, n) in enumerate(labs):
                e(f"{l}:\ns_waitcnt vmcnt({n})")
                if k + 1 < len(labs): e(f"s_branch {done}")
            e(f"{done}:")
        def nwait(j):
            if self.regpf:
                if j in (1, 2, 3): return 48
                if j == 0: return 8 if self.early4 else 0
                n = 0
                for (jj, nb) in self.issue:
                    if jj < j and nb > j: n += (4 if nb == 15 else 8)
                if self.fused and j == 15: n += 8
                if self.fused and self.ownfirst and "nowarm" not in self.exp and j in (14, 15): n += 6
                return n
            if self.fused and j == 15: return 8
            return sum((4 if i == 15 else 8) for i in range(j + 1, min(j + lead - 1, 15) + 1))
        def top(tag):
            vals = [nwait(j) for j in range(16)]
            if "trA" in self.exp: e("s_memtime s[92:93]")
            ladder(vals, tag)
            e("s_waitcnt lgkmcnt(0)")
            if "trA" in self.exp: e("s_memtime s[94:95]")
            e("s_barrier")
            if "trA" in self.exp:
                e("s_waitcnt lgkmcnt(0)")
                e("s_mov_b32 m0, s96\ns_nop 3\nv_writelane_b32 v18, s92, m0\ns_add_u32 m0, s96, 1\ns_nop 3\nv_writelane_b32 v18, s94, m0\ns_add_u32 s96, s96, 2")
        def dma_groups():
            limV = 16 - lead
            limK = 15 - lead
            cV = "s_bitcmp1_b32 s43, s30" if self.regpf else f"s_cmp_lt_u32 s30, {limV}"
            cK = "s_bitcmp1_b32 s44, s30" if self.regpf else f"s_cmp_lt_u32 s30, {limK}"
            post = mk(f"s_add_u32 s32, s32, 8192\ns_add_u32 s33, s33, 8192\ns_add_u32 s31, s31, 32768\n"
                      f"s_add_u32 s48, s39, {5*SLOT}\ns_cmp_ge_u32 s31, s48\ns_cselect_b32 s48, {5*SLOT}, 0\ns_sub_u32 s31, s31, s48")
            def thr():
                if self.throttle is None: return []
                par, n = self.throttle
                l = self.lab("th")
                return mk(f"s_cmp_eq_u32 s100, {par}\ns_cbranch_scc0 {l}\ns_waitcnt vmcnt({n})\n{l}:")
            gs = [self.guard(thr() + self.g_KV(r, ("s31", 0), ("s32", 0)), cK) for r in (0, 1)]
            gs += [self.guard(thr() + self.g_KV(2, ("s31", 0), ("s33", 0)), cV), self.guard(thr() + self.g_KV(3, ("s31", 0), ("s33", 0)) + post, cV)]
            return gs
        def adv_read():
            q = ["s_add_u32 s35, s35, 1", "s_cmp_eq_u32 s35, 5", f"s_mov_b32 s34, {SLOT}", f"s_cmov_b32 s34, {-4*SLOT}", "s_cselect_b32 s35, 0, s35"]
            g = [mk("\n".join(q))]
            for r in V_KA + V_VA:
                g.append(mk(f"v_add_u32 v{r}, s34, v{r}")[0])
            return g
        def QK(ebuf, qt, sb):
            q = []
            for u in range(4):
                for kt in range(2):
                    c = vq(NM_(qt)) if u == 0 else vq(S_(sb, kt))
                    q.append(f"v_mfma_f32_16x16x32_bf16 {vq(S_(sb,kt))}, {aq(K_(ebuf,kt,u))}, {aq(Q_(qt,u))}, {c}")
            return mk("\n".join(q))
        def SM(qt, sb):
            q = []
            for kt in range(2):
                b = S_(sb, kt)
                for r in range(4): q.append(f"v_exp_f32 v{b+r}, v{b+r}")
            for kt in range(2):
                b = S_(sb, kt)
                q.append(f"v_cvt_pk_bf16_f32 v{P_(qt)+2*kt}, v{b}, v{b+1}")
                q.append(f"v_cvt_pk_bf16_f32 v{P_(qt)+2*kt+1}, v{b+2}, v{b+3}")
            return mk("\n".join(q))
        def PV(vbuf, qt):
            q = []
            for T in range(8):
                q.append(f"v_mfma_f32_16x16x32_bf16 {vq(O_(T,qt))}, {aq(Vf(vbuf,T))}, {vq(P_(qt))}, {vq(O_(T,qt))}")
            q.append(f"v_mfma_f32_16x16x32_bf16 {aq(L_(qt))}, {vq(V_ONES)}, {vq(P_(qt))}, {aq(L_(qt))}")
            return mk("\n".join(q))
        def body(typ, do_qk=True):
            ebuf = 0 if typ == "A" else 1
            if typ == "A":
                qk = [0, 1, 2, 3, 4]; sb = [0, 1, 2, 0, 1]; pv = [0, 1, 2, 3]; carried = None
            else:
                qk = [0, 1, 2, 3]; sb = [2, 0, 1, 2]; pv = [0, 1, 2, 3, 4]; carried = (4, 1)
            reads = (rdK(ebuf ^ 1) + rdV(ebuf)) if do_qk else []
            dmas = dma_groups() if do_qk else []
            if self.fused:
                if do_qk:
                    pre = []
                    for c in range(2):
                        pre += mk(f"s_add_u32 m0, s42, {c*16384}\ns_add_u32 s36, s41, {c*65536}\n"
                                  f"buffer_load_dwordx4 v{V_DO[0]}, {S_WQ}, s36 offen {self.woflags} lds")
                        for k in range(1, 4):
                            pre += mk(f"buffer_load_dwordx4 v{V_DO[k]}, {S_WQ}, s36 offen offset:{1024*k} {self.woflags} lds")
                    pre += mk("s_add_u32 s41, s41, 131072\ns_add_u32 s42, s42, 32768")
                    grp = self.guard(pre, "s_cmp_ge_u32 s30, 14")
                    if self.ownfirst and "nowarm" not in self.exp:
                        wm = mk("s_add_u32 s36, s26, 4\ns_add_u32 s36, s36, s28\ns_and_b32 s36, s36, 15\ns_lshl_b32 s36, s36, 16")
                        for k in range(4):
                            wm += mk(f"buffer_load_dwordx4 a[{228+4*k}:{231+4*k}], v{V_DO[k]}, {S_WQ}, s36 offen offset:{1024*k} {self.woflags}")
                        wm += mk("s_lshr_b32 s36, s28, 1\ns_add_u32 s36, s36, s26\ns_add_u32 s36, s36, 12\ns_and_b32 s36, s36, 15\ns_lshl_b32 s36, s36, 16\n"
                                 "s_and_b32 s37, s28, 1\ns_lshl_b32 s37, s37, 13\ns_add_u32 s36, s36, s37")
                        for k in range(2):
                            wm += mk(f"buffer_load_dwordx4 a[{244+4*k}:{247+4*k}], v{V_DO[k]}, {S_WQ}, s36 offen offset:{1024*k} {self.woflags}")
                        grp = self.guard(wm, "s_cmp_eq_u32 s30, 13") + grp
                    if "nopre" not in self.exp: dmas = dmas + [grp]
            nslots = 5
            per = (len(reads) + nslots - 1) // nslots
            for k in range(nslots):
                main = []
                if do_qk and k < len(qk): main += QK(ebuf, qk[k], sb[k])
                if k < len(pv): main += PV(ebuf ^ 1, pv[k])
                fill = []
                if k == 0:
                    if carried: fill += SM(*carried)
                    if do_qk: fill = adv_read() + fill
                elif do_qk:
                    fill += SM(qk[k-1], sb[k-1])
                rd = reads[k*per:(k+1)*per]
                dm = [dmas[k]] if k < len(dmas) else []
                if k == 0:
                    fill = dm + fill + rd
                else:
                    fill = merge_fills(fill, rd, dm)
                p.extend(interleave(main, fill) if main else _flat(fill))
        from asmlib import _flat
        if "sha" in self.exp: e("s_nop 0\ns_nop 0\ns_nop 0") if False else None
        e(f"{L}_bodyA:")
        top("A"); body("A")
        e("s_add_u32 s30, s30, 1\ns_cmp_eq_u32 s30, 16")
        e(f"s_cbranch_scc1 {L}_endB")
        e(f"{L}_bodyB:")
        top("B"); body("B")
        e("s_add_u32 s30, s30, 1\ns_cmp_eq_u32 s30, 16")
        e(f"s_cbranch_scc0 {L}_bodyA")
        e("s_waitcnt lgkmcnt(0)")
        if self.ldsown: e("s_barrier")
        body("A", do_qk=False)
        e(f"s_branch {L}_epi")
        e(f"{L}_endB:")
        e("s_waitcnt lgkmcnt(0)")
        if self.ldsown: e("s_barrier")
        body("B", do_qk=False)
        e(f"{L}_epi:")
        stamp(p, 5, stamps)

        MA = 139264 if self.ldsown else 65536
        e(f"s_mul_i32 s52, s3, 5120\ns_add_u32 s52, s52, {MA}")
        e("v_lshlrev_b32 v17, 4, v0")
        e("v_add_u32 v27, s52, v17")
        for i in range(4):
            e(f"ds_write_b128 v27, {vq(O_(4+i,4))} offset:{i*1024}")
        e(f"ds_write_b128 v27, {aq(L_(4))} offset:4096")
        if self.fused: self.fused_early()
        for qt in range(5):
            e(f"v_accvgpr_read_b32 v{V_S+qt}, a{L_(qt)}")
        e(f"s_mov_b32 s52, {fbits(L_LO):#x}\ns_mov_b32 s53, {fbits(L_HI):#x}")
        self.store_O_setup()
        e("s_mov_b64 s[56:57], exec")
        for qt in range(4):
            e(f"v_cmp_le_f32 vcc, s52, v{V_S+qt}")
            e(f"v_cmp_ge_f32 s[58:59], s53, v{V_S+qt}")
            e(f"v_rcp_f32 v{V_S+qt}, v{V_S+qt}")
            e("s_and_b64 s[56:57], s[56:57], vcc")
            e("s_and_b64 s[56:57], s[56:57], s[58:59]")
        if "epi" in self.exp: stamp(p, 11, stamps)
        for qt in range(4): self.store_O_tile(qt)
        e("s_waitcnt lgkmcnt(0)")
        e("s_barrier")
        e(f"s_xor_b32 s48, s3, 1\ns_mul_i32 s48, s48, 5120\ns_add_u32 s48, s48, {MA}")
        e("v_add_u32 v27, s48, v17")
        for i in range(4):
            e(f"ds_read_b128 {vq(V_P+i*4)}, v27 offset:{i*1024}")
        e(f"ds_read_b128 {vq(V_S+12)}, v27 offset:4096")
        for i in range(4):
            for r in range(4):
                e(f"v_add_f32 v{O_(i,4)+r}, v{O_(i,4)+r}, v{V_P+i*4+r}")
        e(f"v_add_f32 v{V_S+4}, v{V_S+4}, v{V_S+12}")
        e(f"v_cmp_le_f32 vcc, s52, v{V_S+4}")
        e(f"v_cmp_ge_f32 s[58:59], s53, v{V_S+4}")
        e(f"v_rcp_f32 v{V_S+4}, v{V_S+4}")
        e("s_and_b64 s[56:57], s[56:57], vcc")
        e("s_and_b64 s[56:57], s[56:57], s[58:59]")
        e("s_cmp_eq_u64 s[56:57], exec")
        e("s_cselect_b32 s48, 0, 1")
        e("v_mov_b32 v27, s48")
        e(f"s_lshl_b32 s48, s3, 2\ns_add_u32 s48, s48, {MA + 20480}")
        e("v_mov_b32 v28, s48")
        e("ds_write_b32 v28, v27")
        self.store_O_tile(4)
        if "epi" in self.exp: stamp(p, 12, stamps)
        e("s_waitcnt vmcnt(0) lgkmcnt(0)")
        if "epi" in self.exp: stamp(p, 13, stamps)
        e("s_barrier")
        e(f"v_mov_b32 v28, {MA + 20480}")
        e(f"ds_read_b128 {vq(V_S+12)}, v28")
        e(f"v_or_b32 v27, v{V_S+12}, v{V_S+13}")
        e(f"v_or_b32 v28, v{V_S+14}, v{V_S+15}")
        e("v_or_b32 v27, v27, v28")
        e("v_readfirstlane_b32 s48, v27")
        e("s_cmp_eq_u32 s51, 0")
        e("s_cselect_b32 s48, s48, 0")
        e("s_cmp_eq_u32 s48, 0")
        e(f"s_cbranch_scc0 {L}_fallback")
        if self.fused:
            self.fused_tail()
        else:
            stamp(p, 6, stamps)
            stamp_flush(p, 7, stamps and f"{L}_stf", "s[54:55]")
        if "trQ" in self.exp or "trA" in self.exp:
            tv = 18 if "trA" in self.exp else 17
            l = self.lab("tr")
            e(f"s_cmp_eq_u32 s3, 0\ns_cbranch_scc0 {l}")
            e(f"s_lshl_b32 s58, s2, 8\ns_add_u32 s58, s58, {65*1024*1024}")
            e("v_lshlrev_b32 v251, 2, v0\nv_add_u32 v251, s58, v251")
            e(f"global_store_dword v251, v{tv}, s[54:55]\ns_waitcnt vmcnt(0)")
            e(f"{l}:")
        e(f"s_branch {L}_done")

        e(f"{L}_fallback:")
        e("s_mov_b32 s51, 1")
        e("s_waitcnt vmcnt(0)")
        e("s_barrier")
        e(f"s_mul_i32 s48, s35, {SLOT}")
        for r in V_KA + V_VA:
            e(f"v_subrev_u32 v{r}, s48, v{r}")
        for qt in range(5):
            e(f"v_mov_b32 v{V_P+qt}, 0xff800000")
        e("s_mov_b32 s30, 0")
        e("s_mov_b32 s32, s40")
        e(f"{L}_mx:")
        for r in (0, 1): p.extend(self.g_KV(r, ("s39", 0), ("s32", 0)))
        e("s_waitcnt vmcnt(0)\ns_barrier")
        p.extend(rdK(0))
        for qt in range(5):
            for u in range(4):
                for kt in range(2):
                    c = "0" if u == 0 else vq(S_(0, kt))
                    e(f"v_mfma_f32_16x16x32_bf16 {vq(S_(0,kt))}, {aq(K_(0,kt,u))}, {aq(Q_(qt,u))}, {c}")
            for r in range(0, 8, 2):
                e(f"v_max3_f32 v{V_P+qt}, v{V_S+r}, v{V_S+r+1}, v{V_P+qt}")
        e("s_waitcnt lgkmcnt(0)\ns_barrier")
        e("s_add_u32 s32, s32, 8192\ns_add_u32 s30, s30, 1\ns_cmp_lt_u32 s30, 16")
        e(f"s_cbranch_scc1 {L}_mx")
        e("v_xor_b32 v27, 16, v0\nv_lshlrev_b32 v27, 2, v27")
        e("v_xor_b32 v28, 32, v0\nv_lshlrev_b32 v28, 2, v28")
        for qt in range(5):
            e(f"ds_bpermute_b32 v{V_S}, v27, v{V_P+qt}")
            e(f"v_max_f32 v{V_P+qt}, v{V_P+qt}, v{V_S}")
            e(f"ds_bpermute_b32 v{V_S}, v28, v{V_P+qt}")
            e(f"v_max_f32 v{V_P+qt}, v{V_P+qt}, v{V_S}")
            for r in range(4):
                e(f"v_sub_f32 v{NM_(qt)+r}, 0, v{V_P+qt}")
        for r in V_KA + V_VA:
            e(f"v_add_u32 v{r}, {3*SLOT}, v{r}")
        for j in range(-1, lead):
            for g in self.bundle_static(j): p.extend(g)
        e("s_waitcnt vmcnt(0)")
        if self.early4:
            e("s_barrier")
            self.read_k0()
            e("s_waitcnt lgkmcnt(0)")
            e("s_barrier")
            for g in self.bundle_static(4): p.extend(g)
        e(f"s_branch {L}_attn")
        e(f"{L}_done:")
        e("s_endpgm")
        return p

    def g_Wo(self, slot, kimm):
        gs = [mk(f"s_add_u32 m0, s38, {slot*16384}\ns_add_u32 s36, s41, {kimm*65536}\n"
                 f"buffer_load_dwordx4 v{V_DO[0]}, {S_WQ}, s36 offen {self.woflags} lds")]
        for k in range(1, 4):
            gs.append(mk(f"buffer_load_dwordx4 v{V_DO[k]}, {S_WQ}, s36 offen offset:{1024*k} {self.woflags} lds"))
        return gs
    def pretouch(self):
        q = []
        q.append("s_lshl_b32 s52, s27, 3\ns_add_u32 s52, s52, s28\ns_mul_i32 s53, s52, 1179648")
        q.append("s_bfe_u32 s48, s2, 0x20003\ns_lshl_b32 s52, s52, 2\ns_add_u32 s52, s52, s48\ns_mul_i32 s52, s52, 294912")
        q.append(f"s_add_u32 s52, s52, {PART0}")
        q.append("v_mov_b32 v209, s53")
        q.append("s_add_u32 s53, s53, 0x100000\nv_writelane_b32 v209, s53, 1")
        q.append(f"s_mov_b32 s53, {FLAG1}\nv_writelane_b32 v209, s53, 2")
        q.append("v_writelane_b32 v209, s52, 3\ns_add_u32 s52, s52, 0x47ffc\nv_writelane_b32 v209, s52, 4")
        q.append("global_load_dword v210, v209, s[54:55]")
        q.append("s_mul_i32 s52, s28, 294912\nv_mov_b32 v209, s52\ns_add_u32 s52, s52, 0x47ffc\nv_writelane_b32 v209, s52, 1")
        q.append("global_load_dword v211, v209, s[84:85]")
        q.append("s_and_b32 s52, s2, 3\ns_lshl_b32 s52, s52, 20\nv_mov_b32 v209, s52\ns_add_u32 s52, s52, 0xffffc\nv_writelane_b32 v209, s52, 1")
        q.append("global_load_dword v199, v209, s[98:99]")
        l = self.lab("pt")
        return [mk(f"s_cmp_eq_u32 s3, 3\ns_cbranch_scc0 {l}") + mk("\n".join(q)) + mk(f"{l}:")]
    def fused_setup(self):
        e = self.p.e
        e("s_and_b32 s46, s2, 3\ns_bfe_u32 s47, s2, 0x20003")
        if self.ownfirst: e("s_lshl_b32 s26, s47, 2")
        if self.throttle is not None:
            e("s_getreg_b32 s100, hwreg(HW_REG_XCC_ID)\ns_and_b32 s100, s100, 1")
        e("s_lshl_b32 s52, s46, 20\ns_lshl_b32 s53, s47, 8\ns_add_u32 s52, s52, s53")
        e("s_add_u32 s8, s98, s52\ns_addc_u32 s9, s99, 0\ns_sub_u32 s10, 0x400000, s52\ns_mov_b32 s11, 0x20000")
        if self.wonat:
            e("v_and_b32 v29, 15, v0")
            for k in range(2):
                e(f"v_lshrrev_b32 v27, 4, v0\nv_add_u32 v27, {4*k}, v27")
                e("v_lshlrev_b32 v28, 1, v27\nv_xor_b32 v28, v28, v29\nv_lshlrev_b32 v28, 4, v28")
                e("s_lshl_b32 s52, s3, 4\nv_add_u32 v27, s52, v27")
                e(f"v_lshl_add_u32 v{V_DO[k]}, v27, 10, v28")
                if k: e(f"v_subrev_u32 v{V_DO[k]}, 1024, v{V_DO[k]}")
            for k in range(2, 4): e(f"v_add_u32 v{V_DO[k]}, {8192 - 2048}, v{V_DO[k-2]}")
        else:
            e("v_lshrrev_b32 v27, 4, v0")
            e("v_lshlrev_b32 v28, 2, v27")
            e("v_and_b32 v29, 15, v0")
            e("v_xor_b32 v28, v28, v29")
            e("v_lshlrev_b32 v28, 4, v28")
            e("s_lshl_b32 s52, s3, 4")
            e("v_add_u32 v27, s52, v27")
            e(f"v_lshl_add_u32 v{V_DO[0]}, v27, 10, v28")
            for k in range(1, 4): e(f"v_add_u32 v{V_DO[k]}, {3072*k}, v{V_DO[0]}")
        e("v_lshlrev_b32 v27, 4, v0")
        e(f"v_add_u32 v{V_DOO}, s45, v27")
        e(f"v_add_u32 v{V_BO[0]}, {OB0}, v27")
        e(f"v_add_u32 v{V_BO[1]}, {OB0 + 2*18432}, v27")
        if self.wonat:
            e("v_lshrrev_b32 v27, 4, v0\nv_bfe_u32 v28, v0, 2, 2\nv_lshl_add_u32 v27, v27, 2, v28")
            e("v_and_b32 v28, 7, v27\nv_lshlrev_b32 v28, 1, v28")
            e("v_bfe_u32 v29, v0, 1, 1\ns_lshl_b32 s52, s3, 2\nv_add_u32 v29, s52, v29\nv_xor_b32 v28, v28, v29")
            e("v_and_b32 v29, 1, v0\nv_lshlrev_b32 v29, 3, v29\nv_lshl_add_u32 v27, v27, 8, v29")
            e(f"v_lshl_add_u32 v{V_AO}, v28, 4, v27")
            e(f"v_xor_b32 v28, 2, v28\nv_lshl_add_u32 v{V_AO1}, v28, 4, v27")
        else:
            e("v_lshrrev_b32 v27, 4, v0")
            e("v_bfe_u32 v28, v0, 2, 2")
            e("v_lshl_add_u32 v27, v27, 2, v28")
            e("v_lshlrev_b32 v28, 2, v28")
            e("v_and_b32 v29, 3, v0")
            e("s_lshl_b32 s52, s3, 2")
            e("v_add_u32 v29, s52, v29")
            e("v_xor_b32 v28, v28, v29")
            e("v_lshlrev_b32 v28, 4, v28")
            e(f"v_lshl_add_u32 v{V_AO}, v27, 8, v28")
        l = self.lab("nonce")
        e(f"s_cmp_eq_u32 s2, 0\ns_cbranch_scc0 {l}\ns_cmp_eq_u32 s3, 0\ns_cbranch_scc0 {l}")
        e("s_memrealtime s[88:89]\ns_waitcnt lgkmcnt(0)\ns_or_b32 s88, s88, 1")
        e("v_mov_b32 v30, s88\nv_mov_b32 v31, s89\nv_mov_b32 v29, 0")
        e("s_mov_b64 exec, 1\ns_nop 4")
        e("global_store_dwordx2 v29, v[30:31], s[86:87] sc1")
        e("s_mov_b64 exec, -1")
        e(f"{l}:")
    def fused_early(self):
        e = self.p.e
        l = self.lab("early")
        if not self.wavex: e(f"s_cmp_eq_u32 s3, 0\ns_cbranch_scc0 {l}")
        e("v_mov_b32 v27, 0")
        e("global_load_dwordx2 v[240:241], v27, s[86:87] sc1")
        if self.inv: e("buffer_inv sc1")
        e(f"{l}:")
    def poll(self, base_sreg, tag, stride_shift=3):
        e = self.p.e
        lp = self.lab(tag + "p"); dn = self.lab(tag + "d")
        e("s_mov_b64 exec, 15\ns_nop 4")
        e(f"v_lshlrev_b32 v27, {stride_shift}, v0\nv_add_u32 v27, {base_sreg}, v27")
        e("s_mov_b32 s97, 0")
        e(f"{lp}:")
        e("global_load_dwordx2 v[30:31], v27, s[54:55] sc1")
        e("s_waitcnt vmcnt(0)")
        e("v_cmp_eq_u32 vcc, s88, v30\nv_cmp_eq_u32 s[56:57], s89, v31")
        e("s_nop 3\ns_and_b64 s[56:57], s[56:57], vcc\ns_cmp_eq_u64 s[56:57], exec")
        e(f"s_cbranch_scc1 {dn}")
        e(f"s_sleep 1\ns_add_u32 s97, s97, 1\ns_cmp_lt_u32 s97, 0x40000\ns_cbranch_scc1 {lp}")
        e(f"{dn}:")
        e("s_mov_b64 exec, -1")
    def poll_issue(self, base_sreg, vdst):
        e = self.p.e
        e("s_mov_b64 exec, 15\ns_nop 4")
        e(f"v_lshlrev_b32 v16, 3, v0\nv_add_u32 v16, {base_sreg}, v16")
        e(f"global_load_dwordx2 v[{vdst}:{vdst+1}], v16, s[54:55] sc1")
        e("s_mov_b64 exec, -1")
    def poll_check(self, vdst, own_sreg, wait, done):
        e = self.p.e
        if wait is not None: e(f"s_waitcnt vmcnt({wait})")
        e("s_mov_b64 exec, 15\ns_nop 4")
        e(f"v_cmp_eq_u32 vcc, s88, v{vdst}\nv_cmp_eq_u32 s[56:57], s89, v{vdst+1}")
        e(f"s_lshl_b32 s48, 1, {own_sreg}\ns_nop 3\ns_and_b64 s[56:57], s[56:57], vcc\ns_or_b32 s56, s56, s48")
        e("s_cmp_eq_u64 s[56:57], exec\ns_mov_b64 exec, -1")
        e(f"s_cbranch_scc1 {done}")
    def signal(self, base_sreg, member_sreg):
        e = self.p.e
        e(f"s_lshl_b32 s48, {member_sreg}, 3\ns_add_u32 s48, s48, {base_sreg}")
        e("v_mov_b32 v27, s48\nv_mov_b32 v30, s88\nv_mov_b32 v31, s89")
        e("s_mov_b64 exec, 1\ns_nop 4")
        e("global_store_dwordx2 v27, v[30:31], s[54:55] sc1")
        e("s_mov_b64 exec, -1")
    def fused_tail(self):
        p = self.p; e = p.e; L = self.name; stamps = self.stamps
        stamp(p, 6, stamps)
        e("s_and_b32 s46, s2, 3\ns_bfe_u32 s47, s2, 0x20003")
        e("s_lshl_b32 s52, s27, 2\ns_add_u32 s52, s52, s46\ns_lshl_b32 s52, s52, 3\ns_add_u32 s52, s52, s28")
        e(f"s_lshl_b32 s52, s52, 7\ns_add_u32 s43, s52, {FLAG1}")
        e("s_lshl_b32 s52, s27, 3\ns_add_u32 s52, s52, s28\ns_lshl_b32 s52, s52, 2\ns_add_u32 s52, s52, s47")
        e(f"s_mul_i32 s53, s52, 294912\ns_add_u32 s53, s53, {PART0}")
        e(f"s_lshl_b32 s52, s52, 7\ns_add_u32 s44, s52, {FLAG2}")
        e("s_add_u32 s4, s54, s53\ns_addc_u32 s5, s55, 0\ns_mov_b32 s6, 294912\ns_mov_b32 s7, 0x20000")
        e("s_mov_b32 s12, s84\ns_mov_b32 s13, s85\ns_mov_b32 s14, 2359296\ns_mov_b32 s15, 0x20000")
        e("s_mul_i32 s45, s3, 5\ns_cmp_eq_u32 s3, 3\ns_cselect_b32 s53, 1, 0\ns_sub_u32 s45, s45, s53\ns_lshl_b32 s45, s45, 10")
        def g_O(slot, kimm):
            fl = self.oloadflags
            gs = [mk(f"s_add_u32 m0, s45, {OB0 + slot*18432}\ns_add_u32 s37, s50, {kimm*18432}\n"
                     f"buffer_load_dwordx4 v{V_DOO}, {S_OW}, s37 offen {fl} lds")]
            for k in range(1, 4):
                gs.append(mk(f"buffer_load_dwordx4 v{V_DOO}, {S_OW}, s37 offen offset:{k*1024} {fl} lds"))
            l = self.lab("o5")
            gs.append(mk(f"s_cbranch_vccz {l}\ns_add_u32 m0, s45, {OB0 + slot*18432 + 4096}\ns_add_u32 s37, s37, 4096\n"
                         f"buffer_load_dwordx4 v{V_DOO}, {S_OW}, s37 offen {fl} lds\n{l}:"))
            return gs
        def get_tag():
            lp = self.lab("np"); dn = self.lab("nd")
            e("s_mov_b32 s97, 0\nv_mov_b32 v27, 0")
            e("v_readfirstlane_b32 s88, v240\nv_readfirstlane_b32 s89, v241")
            e(f"s_nop 3\ns_cmp_lg_u32 s88, 0\ns_cbranch_scc1 {dn}")
            e(f"{lp}:")
            e("global_load_dwordx2 v[30:31], v27, s[86:87] sc1\ns_waitcnt vmcnt(0)")
            e("v_readfirstlane_b32 s88, v30\nv_readfirstlane_b32 s89, v31")
            e(f"s_nop 3\ns_cmp_lg_u32 s88, 0\ns_cbranch_scc1 {dn}")
            e(f"s_sleep 1\ns_add_u32 s97, s97, 1\ns_cmp_lt_u32 s97, 0x40000\ns_cbranch_scc1 {lp}")
            e(f"{dn}:")
        if self.wavex: get_tag()
        lw = self.lab("w0")
        e(f"s_cmp_eq_u32 s3, 0\ns_cbranch_scc0 {lw}")
        if not self.wavex: get_tag()
        self.signal("s43", "s47")
        if self.prepoll and self.ldsown: self.poll_issue("s43", 28)
        e(f"{lw}:")
        e("s_lshl_b32 s38, s3, 12")
        e(f"s_mul_i32 s33, s46, 294912")
        def FAo(buf, ks, ee): return buf * 88 + ks * 8 + ee * 4
        def FBo(buf, ks, qt): return buf * 88 + 16 + (ks * 9 + qt) * 4
        def acc(ee, qt): return 32 + (ee * 9 + qt) * 4
        def rdO(buf, slot):
            q = []
            for ks in range(2):
                for ee in range(2):
                    for hf in range(2):
                        if self.wonat:
                            q.append(f"ds_read_b64_tr_b16 {aq(FAo(buf,ks,ee)+2*hf,2)}, v{V_AO1 if ee else V_AO} offset:{slot*16384 + ks*8192 + hf*4096}")
                        else:
                            q.append(f"ds_read_b64_tr_b16 {aq(FAo(buf,ks,ee)+2*hf,2)}, v{V_AO} offset:{slot*16384 + ks*8192 + hf*4096 + 8*ee}")
                for qt in range(9):
                    q.append(f"ds_read_b128 {aq(FBo(buf,ks,qt))}, v{V_BO[slot >> 1]} offset:{(slot & 1)*18432 + (ks*9+qt)*1024}")
            return mk("\n".join(q))
        def mmO(buf):
            q = []
            for ks in range(2):
                for ee in range(2):
                    for qt in range(9):
                        q.append(f"v_mfma_f32_16x16x32_bf16 {vq(acc(ee,qt))}, {aq(FAo(buf,ks,ee))}, {aq(FBo(buf,ks,qt))}, {vq(acc(ee,qt))}")
            return mk("\n".join(q))
        X = self.exp
        if self.ldsown:
            e("s_cmp_lt_u32 s3, 2\ns_cselect_b64 vcc, -1, 0")
            for r in range(32, 104): e(f"v_mov_b32 v{r}, 0")
            stamp(p, 7, stamps)
        elif self.ownfirst:
            e("s_cmp_lt_u32 s3, 2\ns_cselect_b64 vcc, -1, 0")
            e("s_mul_i32 s48, s26, 18432\ns_add_u32 s50, s33, s48")
            for g in g_O(0, 0) + g_O(1, 1): p.extend(g)
            for r in range(32, 104): e(f"v_mov_b32 v{r}, 0")
            lw = self.lab("w0b")
            e(f"s_cmp_eq_u32 s3, 0\ns_cbranch_scc0 {lw}")
            self.poll("s43", "f1")
            e("s_cmp_lt_u32 s3, 2\ns_cselect_b64 vcc, -1, 0")
            e(f"{lw}:")
            e("s_waitcnt vmcnt(4)")
            e("s_barrier")
            stamp(p, 7, stamps)
        else:
            if self.readback:
                e("s_cmp_lt_u32 s3, 2\ns_cselect_b64 vcc, -1, 0")
                e("s_mul_i32 s48, s47, 73728\ns_add_u32 s50, s33, s48")
                for sl in range(4):
                    for g in g_O(sl, sl): p.extend(g)
            for r in range(32, 104): e(f"v_mov_b32 v{r}, 0")
            lw = self.lab("w0b")
            e(f"s_cmp_eq_u32 s3, 0\ns_cbranch_scc0 {lw}")
            self.poll("s43", "f1")
            e(f"{lw}:")
            e("s_barrier")
            stamp(p, 7, stamps)
            e("s_cmp_lt_u32 s3, 2\ns_cselect_b64 vcc, -1, 0")
            e("s_mul_i32 s48, s26, 18432\ns_add_u32 s50, s33, s48")
            for g in g_O(0, 0) + g_O(1, 1): p.extend(g)
            e("s_waitcnt vmcnt(4)")
            e("s_barrier")
        p.extend(rdO(0, 0))
        if not self.ldsown:
            for g in g_O(2, 2) + g_O(3, 3): p.extend(g)
        e("s_add_u32 s34, s26, 4\ns_and_b32 s34, s34, 15")
        e("s_mul_i32 s48, s34, 18432\ns_add_u32 s50, s33, s48\ns_lshl_b32 s41, s34, 16")
        if self.ldsown:
            e("s_mov_b32 s32, s50\ns_mul_i32 s48, s26, 18432\ns_add_u32 s50, s33, s48")
        e("s_mov_b32 s30, 0")
        if "trO" in self.exp: e("s_mov_b32 s96, 0")
        if "olp" in self.exp: stamp(p, 11, stamps)
        if "sho" in self.exp: e("s_nop 0")
        if "alo" in self.exp: e(".p2align 6")
        e(f"{L}_oloop:")
        for k in range(4):
            if "trO" in X: e("s_memtime s[92:93]")
            if self.ldsown:
                if k < 3:
                    lc = self.lab("oc"); ld = self.lab("od")
                    e(f"s_cmp_eq_u32 s30, 0\ns_cbranch_scc1 {ld}\ns_waitcnt vmcnt(16)\n{ld}:")
                else:
                    e("s_waitcnt vmcnt(16)")
                if k == 1:
                    lp = self.lab("op")
                    e(f"s_cmp_eq_u32 s30, 0\ns_cbranch_scc0 {lp}\ns_cmp_eq_u32 s3, 0\ns_cbranch_scc0 {lp}")
                    lq = self.lab("oq")
                    if self.prepoll: self.poll_check(28, "s47", 9, lq)
                    self.poll("s43", "f1")
                    e(f"{lq}:")
                    e("s_cmp_lt_u32 s3, 2\ns_cselect_b64 vcc, -1, 0")
                    e(f"{lp}:")
            elif k < 3:
                lc = self.lab("oc"); ld = self.lab("od")
                first = [8, 8, 16][k]
                if first != 16:
                    e(f"s_cmp_eq_u32 s30, 0\ns_cbranch_scc0 {lc}\ns_waitcnt vmcnt({[8, 12, 16][k]})\ns_branch {ld}\n{lc}:\ns_waitcnt vmcnt(16)\n{ld}:")
                else:
                    e("s_waitcnt vmcnt(16)")
            else:
                e("s_waitcnt vmcnt(16)")
            e("s_waitcnt lgkmcnt(0)")
            if "trO" in X: e("s_memtime s[94:95]")
            e("s_barrier")
            if "trO" in X:
                e("s_waitcnt lgkmcnt(0)")
                e("s_mov_b32 m0, s96\ns_nop 3\nv_writelane_b32 v18, s92, m0\ns_add_u32 m0, s96, 1\ns_nop 3\nv_writelane_b32 v18, s94, m0\ns_add_u32 s96, s96, 2")
            if self.ldsown and k == 1:
                lx = self.lab("ox")
                e(f"s_cmp_eq_u32 s30, 0\ns_cbranch_scc0 {lx}\ns_mov_b32 s50, s32")
                for g in g_O(0, 0): p.extend(g)
                e(f"{lx}:")
            dm = ([] if "onoO" in X else g_O(k, k)) + ([] if "onoW" in X else self.g_Wo(k, k))
            fill = merge_fills(rdO((k + 1) & 1, (k + 1) & 3) if "onord" not in X else [], dm)
            p.extend(interleave(mmO(k & 1) if "onomm" not in X else mk("s_nop 0"), fill, 0, 29))
        e("s_add_u32 s34, s34, 4\ns_and_b32 s34, s34, 15")
        e("s_mul_i32 s48, s34, 18432\ns_add_u32 s50, s33, s48\ns_lshl_b32 s41, s34, 16")
        if self.oobtail:
            e("s_cmp_eq_u32 s30, 2\ns_cselect_b32 s50, 0x7f000000, s50\ns_cselect_b32 s41, 0x7f000000, s41")
        e("s_add_u32 s30, s30, 1\ns_cmp_lt_u32 s30, 4")
        e(f"s_cbranch_scc1 {L}_oloop")
        e("s_waitcnt lgkmcnt(0)")
        stamp(p, 8, stamps)
        e("v_lshlrev_b32 v27, 4, v0\ns_lshl_b32 s52, s3, 11\nv_add_u32 v26, s52, v27")
        e(f"v_and_b32 v25, 15, v0\nv_lshlrev_b32 v25, 11, v25\nv_lshrrev_b32 v24, 4, v0\nv_lshl_add_u32 v25, v24, {3 if self.wonat else 4}, v25")
        e("s_lshl_b32 s52, s3, 6\nv_add_u32 v25, s52, v25")
        e("s_mul_i32 s52, s28, 294912\ns_lshl_b32 s53, s27, 10\ns_add_u32 s52, s52, s53\ns_lshl_b32 s53, s47, 8\ns_add_u32 s45, s52, s53")
        e("s_mul_i32 s42, s46, 73728")
        labs = [self.lab(f"oc{o}") for o in range(4)]
        fin = self.lab("ofin")
        for o in range(1, 4):
            e(f"s_cmp_eq_u32 s46, {o}\ns_cbranch_scc1 {labs[o]}")
        for o in range(4):
            e(f"{labs[o]}:")
            if self.prepoll and not self.wavex:
                le = self.lab("pe")
                e(f"s_cmp_eq_u32 s3, 0\ns_cbranch_scc0 {le}")
                self.poll_issue("s44", 104)
                e(f"{le}:")
            for qt in range(9):
                if qt in OWN[o]: continue
                if self.pbf16:
                    a0, a1 = acc(0, qt), acc(1, qt)
                    e(f"v_cvt_pk_bf16_f32 v{a0}, v{a0}, v{a0+1}\nv_cvt_pk_bf16_f32 v{a0+1}, v{a0+2}, v{a0+3}")
                    e(f"v_cvt_pk_bf16_f32 v{a0+2}, v{a1}, v{a1+1}\nv_cvt_pk_bf16_f32 v{a0+3}, v{a1+2}, v{a1+3}")
                    e(f"s_add_u32 s48, s42, {qt*8192}")
                    e(f"buffer_store_dwordx4 {vq(a0)}, v26, s[4:7], s48 offen sc1")
                    continue
                e(f"s_add_u32 s48, s42, {qt*8192}")
                for ee in range(2):
                    e(f"buffer_store_dwordx4 {vq(acc(ee,qt))}, v26, s[4:7], s48 offen offset:{ee*1024} sc1")
            if self.wavex:
                e("s_waitcnt vmcnt(0)")
                e("s_lshl_b32 s48, s46, 2\ns_add_u32 s49, s48, s3")
                self.signal("s44", "s49")
                e("s_lshl_b32 s48, s3, 3\ns_add_u32 s49, s44, s48")
                self.poll("s49", "f2", stride_shift=5)
            else:
                e("s_waitcnt vmcnt(0)\ns_barrier")
                lw = self.lab("w1")
                e(f"s_cmp_eq_u32 s3, 0\ns_cbranch_scc0 {lw}")
                self.signal("s44", "s46")
                lq2 = self.lab("pq")
                if self.prepoll: self.poll_check(104, "s46", None, lq2)
                self.poll("s44", "f2")
                e(f"{lq2}:")
                e(f"{lw}:")
                e("s_barrier")
            stamp(p, 9, stamps)
            T = 112
            k = 0
            for d in range(1, 4):
                src = (o + d) & 3
                for qt in OWN[o]:
                    e(f"s_mov_b32 s48, {src*73728 + qt*8192}")
                    for ee in range(1 if self.pbf16 else 2):
                        e(f"buffer_load_dwordx4 {vq(T + k*4)}, v26, s[4:7], s48 offen offset:{ee*1024} sc1"); k += 1
            nl = k
            k = 0
            for d in range(1, 4):
                for qt in OWN[o]:
                    if self.pbf16:
                        e(f"s_waitcnt vmcnt({nl - 1 - k})")
                        t = T + k * 4
                        for r in range(4):
                            ee, i = r >> 1, (r & 1) * 2
                            e(f"v_lshlrev_b32 v106, 16, v{t+r}\nv_and_b32 v107, 0xffff0000, v{t+r}")
                            e(f"v_add_f32 v{acc(ee,qt)+i}, v{acc(ee,qt)+i}, v106\nv_add_f32 v{acc(ee,qt)+i+1}, v{acc(ee,qt)+i+1}, v107")
                        k += 1
                        continue
                    for ee in range(2):
                        e(f"s_waitcnt vmcnt({nl - 1 - k})")
                        for r in range(4):
                            e(f"v_add_f32 v{acc(ee,qt)+r}, v{acc(ee,qt)+r}, v{T + k*4 + r}")
                        k += 1
            for qt in OWN[o]:
                a0, a1 = acc(0, qt), acc(1, qt)
                e(f"v_cvt_pk_bf16_f32 v{a0}, v{a0}, v{a0+1}\nv_cvt_pk_bf16_f32 v{a0+1}, v{a0+2}, v{a0+3}")
                e(f"v_cvt_pk_bf16_f32 v{a0+2}, v{a1}, v{a1+1}\nv_cvt_pk_bf16_f32 v{a0+3}, v{a1+2}, v{a1+3}")
                e(f"s_add_u32 s48, s45, {qt*32768}")
                if self.wonat:
                    e(f"buffer_store_dwordx2 {vq(a0,2)}, v25, s[12:15], s48 offen")
                    e(f"buffer_store_dwordx2 {vq(a0+2,2)}, v25, s[12:15], s48 offen offset:32")
                else:
                    e(f"buffer_store_dwordx4 {vq(a0)}, v25, s[12:15], s48 offen {self.outflags}")
            if o < 3: e(f"s_branch {fin}")
        e(f"{fin}:")
        e("s_waitcnt vmcnt(0)")
        stamp(p, 10, stamps)
        if stamps and "xcc" in self.exp: e("s_getreg_b32 s71, hwreg(HW_REG_XCC_ID)")
        stamp_flush(p, 12 if "xcc" in self.exp else 14 if ("epi" in self.exp or "olp" in self.exp) else 11, stamps and f"{L}_stf", "s[54:55]")
        if "trO" in self.exp:
            l = self.lab("tr")
            e(f"s_cmp_eq_u32 s3, 0\ns_cbranch_scc0 {l}")
            e(f"s_lshl_b32 s58, s2, 8\ns_add_u32 s58, s58, {65*1024*1024}")
            e("v_lshlrev_b32 v251, 2, v0\nv_add_u32 v251, s58, v251")
            e(f"global_store_dword v251, v18, s[54:55]\ns_waitcnt vmcnt(0)")
            e(f"{l}:")
    def store_O_setup(self):
        e = self.p.e
        if self.ldsown:
            e("s_lshl_b32 s36, s25, 1\ns_add_u32 s37, s36, s24\ns_mul_i32 s37, s37, 18432")
            e("s_xor_b32 s48, s24, 1\ns_add_u32 s48, s48, s36\ns_mul_i32 s48, s48, 18432")
            e(f"s_add_u32 s37, s37, {OB0}\ns_add_u32 s48, s48, {OB0}\ns_lshl_b32 s36, s24, 12")
            e("v_add_u32 v31, s37, v17")
            e("v_add_u32 v29, s36, v31")
            e("s_add_u32 s48, s48, s36\nv_add_u32 v30, s48, v17")
        e("s_add_u32 s36, s29, s25")
        e("s_lshl_b32 s36, s36, 2")
        e("s_lshl_b32 s37, s24, 1")
        for u in range(4):
            e(f"s_xor_b32 s48, s37, {u}")
            e("s_add_u32 s48, s48, s36")
            e("s_mul_i32 s48, s48, 9216")
            e("s_lshl_b32 s49, s24, 12")
            e(f"s_add_u32 s{42+u}, s48, s49")
            if u < 2: e(f"s_add_u32 s{46+u}, s48, 8192")
    def store_O_tile(self, qt):
        e = self.p.e
        rc = V_S + qt
        e(f"v_mov_b32 v{V_S+9}, v{rc}\nv_mov_b32 v{V_S+8}, v{rc}")
        for u in range(4 if qt < 4 else 2):
            a, b = O_(2*u, qt), O_(2*u+1, qt)
            for x in (a, a+2, b, b+2):
                e(f"v_pk_mul_f32 {vq(x,2)}, {vq(x,2)}, {vq(V_S+8,2)}")
            e(f"v_cvt_pk_bf16_f32 v{a}, v{a}, v{a+1}")
            e(f"v_cvt_pk_bf16_f32 v{a+1}, v{a+2}, v{a+3}")
            e(f"v_cvt_pk_bf16_f32 v{a+2}, v{b}, v{b+1}")
            e(f"v_cvt_pk_bf16_f32 v{a+3}, v{b+2}, v{b+3}")
            if qt < 4:
                e(f"buffer_store_dwordx4 {vq(a)}, v17, {S_OW}, s{42+u} offen offset:{qt*1024} {self.oflags}")
                if self.ldsown: e(f"ds_write_b128 v{29 if u < 2 else 30}, {vq(a)} offset:{((u & 1)*9 + qt)*1024}")
            else:
                e(f"buffer_store_dwordx4 {vq(a)}, v17, {S_OW}, s{46+u} offen {self.oflags}")
                if self.ldsown: e(f"ds_write_b128 v31, {vq(a)} offset:{((u & 1)*9 + 8)*1024}")

def gen_k1(name, **kw):
    return K1(name, **kw).gen()

if __name__ == "__main__":
    import sys
    st = len(sys.argv) > 1
    def out(fn, **kw):
        p = gen_k1("k1_kernel", stamps=st, **kw)
        txt, n = finalize(p, "k1_kernel")
        print(fn, "nops inserted", n, "instrs", len(p))
        open(fn, "w").write("; @launch kernel=k1_kernel grid=(256,1,1) block=(256,1,1) lds=163840\n.amdgcn_target \"amdgcn-amd-amdhsa--gfx950\"\n.text\n" + txt + kd("k1_kernel"))
    out("k1_only.s")
    for x in sys.argv[2:]:
        if x.startswith("rot"): out(f"k1_{x}.s", rot=int(x[3:]))
        elif x == "regpf": out(f"k1_{x}.s", regpf=True, lead=4)
        elif x.startswith("lead"): out(f"k1_{x}.s", lead=int(x[4:]))
        elif x.startswith("M"): out(f"k1_{x}.s", mapping=x)
        elif x.startswith("fused"): out(f"k1_{x}.s", fused=True, oflags="sc1", inv=("noinv" not in x), oloadflags=("sc1" if "osc1" in x else ""))
        elif x.startswith("o_"): out(f"k1_{x}.s", oflags=x[2:].replace("_", " "))
        elif x == "wnt": out(f"k1_{x}.s", wflags="nt")
        elif x == "kvdef": out(f"k1_{x}.s", kvflags="")
        else: out(f"k1_{x}.s", exp=x)
```
